```python
import torch

def _softmax(x, axis=-1):
    return torch.softmax(x, dim=axis)

def _gelu(x):
    return torch.nn.functional.gelu(x, approximate='tanh')

def _silu(x):
    return torch.nn.functional.silu(x)

def _sigmoid(x):
    return torch.sigmoid(x)

def _layernorm(x, axis=-1, eps=1e-05):
    m = x.mean(dim=axis, keepdim=True)
    v = x.var(dim=axis, keepdim=True, unbiased=False)
    return (x - m) / torch.sqrt(v + eps)

def _scatter_add(tgt, idx, src, axis=0):
    return tgt.clone().index_add_(axis, idx, src)

def _segment_sum(src, seg, n):
    out = torch.zeros((n,) + src.shape[1:], dtype=src.dtype)
    return out.index_add_(0, seg, src)

def _pad(x, pw):
    flat = tuple((v for pair in reversed(pw) for v in pair))
    return torch.nn.functional.pad(x, flat)
kernel_name = 'standalone__tree_speculative_verify_tree_attention_over_candidate_token_tree__decode'

def setup_inputs():

    _w = lambda a: (lambda t: t.to(torch.bfloat16) if t.is_floating_point() else t)(torch.as_tensor(a))
    B, Hq, Hkv, T, C, D = (2, 32, 8, 1, 8192, 128)
    tree_mask = torch.zeros((B, T, T), dtype=float)
    for b in range(B):
        parent = torch.zeros(T, dtype=torch.int64)
        for i in range(1, T):
            parent[i] = int(torch.randint(0, i, (1,)).item())
        for i in range(T):
            j = i
            tree_mask[b, i, j] = 1.0
            while j > 0:
                j = parent[j]
                tree_mask[b, i, j] = 1.0
    return {'q': _w((lambda *s: torch.randn(*s, dtype=torch.bfloat16) * 0.8)(B, Hq, T, D)), 'k_cache': _w((lambda *s: torch.randn(*s, dtype=torch.bfloat16) * 0.8)(B, Hkv, C, D)), 'v_cache': _w((lambda *s: torch.randn(*s, dtype=torch.bfloat16) * 0.05)(B, Hkv, C, D)), 'k_tree': _w((lambda *s: torch.randn(*s, dtype=torch.bfloat16) * 0.8)(B, Hkv, T, D)), 'v_tree': _w((lambda *s: torch.randn(*s, dtype=torch.bfloat16) * 0.05)(B, Hkv, T, D)), 'tree_mask': _w(tree_mask)}

def reference(q, k_cache, v_cache, k_tree, v_tree, tree_mask):
    B, Hq, T, D = q.shape
    Hkv, C = (k_cache.shape[1], k_cache.shape[2])
    rep = Hq // Hkv
    kc = (lambda x, n, axis: torch.repeat_interleave(x, n, dim=axis))(k_cache, rep, axis=1)
    vc = (lambda x, n, axis: torch.repeat_interleave(x, n, dim=axis))(v_cache, rep, axis=1)
    kt = (lambda x, n, axis: torch.repeat_interleave(x, n, dim=axis))(k_tree, rep, axis=1)
    vt = (lambda x, n, axis: torch.repeat_interleave(x, n, dim=axis))(v_tree, rep, axis=1)
    k = torch.concatenate([kc, kt], axis=2)
    v = torch.concatenate([vc, vt], axis=2)
    scale = D ** (-0.5)
    scores = torch.einsum('bhqd,bhkd->bhqk', q, k) * scale
    ctx_mask = torch.ones((B, 1, T, C), dtype=scores.dtype)
    tm = tree_mask[:, None, :, :].clone()
    full_mask = torch.concatenate([ctx_mask, tm], axis=-1)
    scores = scores + (1.0 - full_mask) * -1000000000.0
    p = _softmax(scores, axis=-1)
    return torch.einsum('bhqk,bhkd->bhqd', p, v)
```

```python
import sys, math

NAME = "standalone__tree_speculative_verify_tree_attention_over_candidate_token_tree__decode"

HEADER = """; Kernarg layout for this problem (72 bytes, ptrs only, base s[0:1]):
"""

def f32hex(x):
    import struct
    return "0x%08x" % struct.unpack("<I", struct.pack("<f", x))[0]

class Asm:
    def __init__(self):
        self.lines = []
    def __call__(self, s):
        self.lines.append("    " + s)
    def label(self, s):
        self.lines.append(s + ":")
    def c(self, s):
        self.lines.append("    ; " + s)
    def text(self):
        return "\n".join(self.lines) + "\n"

def vq(base, n=4):
    return "v[%d:%d]" % (base, base + n - 1)

def gen(kmode="direct", ldflags="", vflags=None, stflags=None):
    if vflags is None: vflags = ldflags
    a = Asm()
    LOG2E = 1.4426950408889634
    SCALE = 128 ** -0.5
    C = SCALE * LOG2E
    Q = 8
    KT = 24
    K = 40
    V = 104
    S = 168
    ST = 184
    P = 188
    O = 196
    T = 228
    VT = 40
    L_M = 0
    L_PT = 128
    L_M2 = 144
    L_L = 160
    L_FLAG = 288
    L_O = 512
    if kmode == "lds":
        L_K = 512 + 16384
        LDS = L_K + 8 * 16384
    else:
        LDS = 512 + 16384

    a("s_load_dwordx16 s[4:19], s[0:1], 0")
    a("s_load_dwordx2 s[20:21], s[0:1], 64")
    a("s_cmp_ge_u32 s2, 256")
    a("s_cbranch_scc1 L_end")
    a("v_and_b32 v1, 63, v0")
    a("v_lshrrev_b32 v2, 6, v0")
    a("v_and_b32 v3, 15, v0")
    a("v_bfe_u32 v4, v0, 4, 2")
    a("v_readfirstlane_b32 s3, v2")
    a("v_lshlrev_b32 v5, 14, v2")
    a("v_lshl_add_u32 v6, v1, 4, v5")
    if kmode == "direct":
        a("v_and_b32 v7, 3, v3")
        a("v_lshlrev_b32 v7, 2, v7")
        a("v_lshrrev_b32 v240, 2, v3")
        a("v_add_u32 v7, v7, v240")
        a("v_lshlrev_b32 v7, 8, v7")
        a("v_lshl_add_u32 v7, v4, 4, v7")
        a("v_add_u32 v7, v7, v5")
    else:
        pass
    a("s_lshr_b32 s22, s2, 4")
    a("s_and_b32 s23, s2, 15")
    a("v_and_b32 v241, 3, v3")
    a("v_lshlrev_b32 v241, 8, v241")
    a("v_lshl_add_u32 v241, v4, 4, v241")
    a("s_lshl_b32 s36, s22, 10")
    a("v_add_u32 v241, s36, v241")
    a("s_lshl_b32 s37, s22, 8")
    a("v_lshlrev_b32 v242, 4, v4")
    a("v_add_u32 v242, s37, v242")
    a("v_lshlrev_b32 v243, 4, v3")
    a("v_bfe_u32 v240, v0, 4, 3")
    a("v_lshl_add_u32 v243, v240, 1, v243")
    a("v_add_u32 v243, s37, v243")
    a("s_mov_b32 s38, 4096")
    a("s_mov_b32 s39, 8192")
    a("s_mov_b32 s40, 12288")
    a("s_lshl_b32 s41, s2, 17")
    a("s_mov_b32 s26, 0x20000")
    a("s_mov_b32 s27, 0x00020000")
    a("s_mov_b32 s30, 0x20000")
    a("s_mov_b32 s31, 0x00020000")
    a("s_waitcnt lgkmcnt(0)")
    a("s_add_u32 s24, s6, s41")
    a("s_addc_u32 s25, s7, 0")
    a("s_add_u32 s28, s8, s41")
    a("s_addc_u32 s29, s9, 0")
    a("s_and_b32 s25, s25, 0xffff")
    a("s_and_b32 s29, s29, 0xffff")
    a("s_load_dword s42, s[14:15], 0")
    for j in range(4):
        a("global_load_dwordx4 %s, v241, s[4:5] offset:%d" % (vq(Q + 4 * j), j * 64))
    soff = ["0", "s38", "s39", "s40"]
    nload = 4
    if kmode == "direct":
        for t in range(4):
            for j in range(4):
                a("buffer_load_dwordx4 %s, v7, s[24:27], %s offen offset:%d %s" % (vq(K + (t * 4 + j) * 4), soff[t], j * 64, ldflags))
    else:
        raise NotImplementedError
    for u in range(2):
        for i in range(8):
            a("buffer_load_dwordx4 %s, v6, s[28:31], %s offen offset:%d %s" % (vq(V + (u * 8 + i) * 4), soff[2 * u + (i >> 2)], (i & 3) * 1024, vflags))
    for j in range(4):
        a("global_load_dwordx4 %s, v242, s[10:11] offset:%d" % (vq(KT + 4 * j), j * 64))
    a("global_load_ushort v244, v243, s[12:13]")
    total = 41
    for t in range(4):
        a("s_waitcnt vmcnt(%d)" % (total - 4 - 4 * (t + 1)))
        for j in range(4):
            srcc = "0" if j == 0 else vq(S + 4 * t)
            a("v_mfma_f32_16x16x32_bf16 %s, %s, %s, %s" % (vq(S + 4 * t), vq(K + (t * 4 + j) * 4), vq(Q + 4 * j), srcc))
    a("s_nop 7")
    a("v_max3_f32 v%d, v%d, v%d, v%d" % (T, S + 0, S + 1, S + 2))
    a("v_max3_f32 v%d, v%d, v%d, v%d" % (T + 1, S + 3, S + 4, S + 5))
    a("v_max3_f32 v%d, v%d, v%d, v%d" % (T + 2, S + 6, S + 7, S + 8))
    a("v_max3_f32 v%d, v%d, v%d, v%d" % (T + 3, S + 9, S + 10, S + 11))
    a("s_nop 3")
    a("v_max3_f32 v%d, v%d, v%d, v%d" % (T, T, S + 12, S + 13))
    a("v_max3_f32 v%d, v%d, v%d, v%d" % (T + 1, T + 1, S + 14, S + 15))
    a("v_max3_f32 v%d, v%d, v%d, v%d" % (T, T, T + 1, T + 2))
    a("v_max_f32 v%d, v%d, v%d" % (T, T, T + 3))
    def xlane(op, r, t):
        a("v_mov_b32 v%d, v%d" % (t, r))
        a("s_nop 1")
        a("v_permlane32_swap_b32 v%d, v%d" % (r, t))
        a("s_nop 1")
        a("%s v%d, v%d, v%d" % (op, r, r, t))
        a("v_mov_b32 v%d, v%d" % (t, r))
        a("s_nop 1")
        a("v_permlane16_swap_b32 v%d, v%d" % (r, t))
        a("s_nop 1")
        a("%s v%d, v%d, v%d" % (op, r, r, t))
    xlane("v_max_f32", T, T + 1)
    a("v_and_b32 v%d, 3, v3" % (T + 2))
    a("v_lshlrev_b32 v%d, 5, v%d" % (T + 2, T + 2))
    a("s_lshl_b32 s43, s3, 2")
    a("v_add_u32 v%d, s43, v%d" % (T + 3, T + 2))
    a("s_mov_b64 exec, 0xf")
    a("ds_write_b32 v%d, v%d offset:%d" % (T + 3, T, L_M))
    a("s_mov_b64 exec, -1")
    a("s_waitcnt lgkmcnt(0)")
    a("s_barrier")
    a("ds_read_b128 %s, v%d offset:%d" % (vq(T + 4), T + 2, L_M))
    a("ds_read_b128 %s, v%d offset:%d" % (vq(T + 8), T + 2, L_M + 16))
    a("s_mov_b32 s44, %s" % f32hex(C))
    a("s_waitcnt lgkmcnt(0)")
    a("v_max3_f32 v%d, v%d, v%d, v%d" % (T, T + 4, T + 5, T + 6))
    a("v_max3_f32 v%d, v%d, v%d, v%d" % (T + 1, T + 7, T + 8, T + 9))
    a("v_max3_f32 v%d, v%d, v%d, v%d" % (T, T, T + 10, T + 11))
    a("v_max_f32 v%d, v%d, v%d" % (T, T, T + 1))
    a("v_mul_f32 v%d, s44, v%d" % (T, T))
    for r in range(16):
        a("v_fma_f32 v%d, v%d, s44, -v%d" % (S + r, S + r, T))
    for r in range(16):
        a("v_exp_f32 v%d, v%d" % (S + r, S + r))
    a("s_nop 0")
    a("v_add_f32 v%d, v%d, v%d" % (T + 1, S + 0, S + 1))
    a("v_add_f32 v%d, v%d, v%d" % (T + 4, S + 2, S + 3))
    for r in range(4, 16, 2):
        a("v_add_f32 v%d, v%d, v%d" % (T + 1, T + 1, S + r))
        a("v_add_f32 v%d, v%d, v%d" % (T + 4, T + 4, S + r + 1))
    a("v_add_f32 v%d, v%d, v%d" % (T + 1, T + 1, T + 4))
    for u in range(2):
        for hq in range(2):
            t = 2 * u + hq
            a("v_cvt_pk_bf16_f32 v%d, v%d, v%d" % (P + 4 * u + 2 * hq, S + 4 * t, S + 4 * t + 1))
            a("v_cvt_pk_bf16_f32 v%d, v%d, v%d" % (P + 4 * u + 2 * hq + 1, S + 4 * t + 2, S + 4 * t + 3))
    xlane("v_add_f32", T + 1, T + 4)
    a("s_mov_b32 s45, 0x05040100")
    a("s_mov_b32 s46, 0x07060302")
    for u in range(2):
        a("s_waitcnt vmcnt(%d)" % (total - 4 - 16 - 8 * (u + 1)))
        for c in range(4):
            tb = VT + (c & 1) * 8 + u * 16
            for r in range(4):
                la = V + (u * 8 + 2 * r) * 4 + c
                lb = V + (u * 8 + 2 * r + 1) * 4 + c
                a("v_perm_b32 v%d, v%d, v%d, s45" % (tb + r, lb, la))
                a("v_perm_b32 v%d, v%d, v%d, s46" % (tb + 4 + r, lb, la))
            a("s_nop 1")
            for par in range(2):
                j = 2 * c + par
                srcc = "0" if u == 0 else vq(O + 4 * j)
                a("v_mfma_f32_16x16x32_bf16 %s, %s, %s, %s" % (vq(O + 4 * j), vq(P + 4 * u), vq(tb + 4 * par), srcc))
    a("s_waitcnt vmcnt(0)")
    for j in range(4):
        srcc = "0" if j == 0 else vq(ST)
        a("v_mfma_f32_16x16x32_bf16 %s, %s, %s, %s" % (vq(ST), vq(KT + 4 * j), vq(Q + 4 * j), srcc))
    a("v_lshlrev_b32 v%d, 2, v3" % (T + 2))
    a("s_lshl_b32 s43, s3, 4")
    a("v_add_u32 v%d, s43, v%d" % (T + 3, T + 2))
    a("s_mov_b64 exec, 0xf")
    a("ds_write_b32 v%d, v%d offset:%d" % (T + 3, T + 1, L_L))
    a("s_mov_b64 exec, -1")
    a("s_waitcnt lgkmcnt(0)")
    a("s_lshr_b32 s47, s22, 3")
    a("s_lshl_b32 s47, s47, 4")
    a("s_lshr_b32 s47, s42, s47")
    a("s_lshl_b32 s47, s47, 16")
    a("v_mov_b32 v%d, s47" % (T + 4))
    a("v_sub_f32 v%d, 1.0, v%d" % (T + 4, T + 4))
    a("s_mov_b32 s48, %s" % f32hex(-1e9 * LOG2E))
    a("v_mul_f32 v%d, s48, v%d" % (T + 4, T + 4))
    a("s_nop 4")
    a("v_fma_f32 v%d, v%d, s44, v%d" % (T + 4, ST, T + 4))
    a("s_cmp_eq_u32 s3, 0")
    a("s_cbranch_scc0 L_noml")
    a("s_mov_b64 exec, 0xf")
    a("ds_write_b32 v%d, v%d offset:%d" % (T + 2, T, L_M2))
    a("ds_write_b32 v%d, v%d offset:%d" % (T + 2, T + 4, L_PT))
    a("s_mov_b64 exec, -1")
    a.label("L_noml")
    a("s_lshl_b32 s43, s3, 11")
    a("v_lshlrev_b32 v%d, 4, v3" % (T + 5))
    a("v_add_u32 v%d, s43, v%d" % (T + 5, T + 5))
    a("s_mov_b64 exec, 0xffff")
    a("s_nop 4")
    for j in range(8):
        a("ds_write_b128 v%d, %s offset:%d" % (T + 5, vq(O + 4 * j), L_O + j * 256))
    a("s_mov_b64 exec, -1")
    a("s_waitcnt lgkmcnt(0)")
    a("s_barrier")
    a("s_cmp_ge_u32 s3, 2")
    a("s_cbranch_scc1 L_join")
    a("v_lshlrev_b32 v%d, 4, v0" % T)
    for w in range(8):
        a("ds_read_b128 %s, v%d offset:%d" % (vq(K + 4 * w), T, L_O + w * 2048))
    a("v_mov_b32 v%d, 0" % (T + 1))
    for w in range(8):
        a("ds_read_b128 %s, v%d offset:%d" % (vq(K + 32 + 4 * w), T + 1, L_L + w * 16))
    a("ds_read_b128 %s, v%d offset:%d" % (vq(K + 64), T + 1, L_M2))
    a("s_waitcnt lgkmcnt(9)")
    for w in range(1, 8):
        for h in range(4):
            a("v_add_f32 v%d, v%d, v%d" % (K + h, K + h, K + 4 * w + h))
    a("s_waitcnt lgkmcnt(0)")
    for w in range(1, 8):
        for h in range(4):
            a("v_add_f32 v%d, v%d, v%d" % (K + 32 + h, K + 32 + h, K + 32 + 4 * w + h))
    a("s_lshl_b32 s43, s2, 11")
    a("v_add_u32 v%d, s43, v%d" % (T + 2, T))
    a("global_store_dwordx4 v%d, %s, s[20:21] sc1" % (T + 2, vq(K)))
    a("s_lshl_b32 s43, s2, 5")
    a("s_add_u32 s43, s43, 0x100000")
    a("v_mov_b32 v%d, s43" % (T + 3))
    a("s_cmp_eq_u32 s3, 0")
    a("s_cbranch_scc0 L_nostml")
    a("s_mov_b64 exec, 1")
    a("global_store_dwordx4 v%d, %s, s[20:21] sc1" % (T + 3, vq(K + 64)))
    a("global_store_dwordx4 v%d, %s, s[20:21] offset:16 sc1" % (T + 3, vq(K + 32)))
    a("s_mov_b64 exec, -1")
    a.label("L_nostml")
    a("s_waitcnt vmcnt(0)")
    a.label("L_join")
    a("s_barrier")
    a("s_cmp_eq_u32 s3, 0")
    a("s_cbranch_scc0 L_wait2")
    a("s_lshl_b32 s43, s22, 2")
    a("v_mov_b32 v%d, s43" % T)
    a("v_mov_b32 v%d, 1" % (T + 1))
    a("s_mov_b64 exec, 1")
    a("global_atomic_add v%d, v%d, v%d, s[18:19] sc0" % (T + 2, T, T + 1))
    a("s_waitcnt vmcnt(0)")
    a("v_mov_b32 v%d, 0" % (T + 3))
    a("ds_write_b32 v%d, v%d offset:%d" % (T + 3, T + 2, L_FLAG))
    a("s_mov_b64 exec, -1")
    a("s_waitcnt lgkmcnt(0)")
    a.label("L_wait2")
    a("s_barrier")
    a("v_mov_b32 v%d, 0" % (T + 3))
    a("ds_read_b32 v%d, v%d offset:%d" % (T + 2, T + 3, L_FLAG))
    a("ds_read_b128 %s, v%d offset:%d" % (vq(K + 80), T + 3, L_PT))
    a("s_waitcnt lgkmcnt(0)")
    a("v_readfirstlane_b32 s43, v%d" % (T + 2))
    a("s_cmp_eq_u32 s43, 15")
    a("s_cbranch_scc0 L_end")
    a("s_lshl_b32 s43, s22, 15")
    a("s_lshl_b32 s49, s3, 8")
    a("s_add_u32 s43, s43, s49")
    a("v_lshlrev_b32 v%d, 13, v4" % T)
    a("v_lshl_add_u32 v%d, v3, 4, v%d" % (T, T))
    a("v_add_u32 v%d, s43, v%d" % (T, T))
    a("s_lshl_b32 s43, s22, 9")
    a("s_add_u32 s43, s43, 0x100000")
    a("v_lshlrev_b32 v%d, 7, v4" % (T + 1))
    a("v_add_u32 v%d, s43, v%d" % (T + 1, T + 1))
    for i in range(4):
        a("global_load_dwordx4 %s, v%d, s[20:21] offset:%d sc1" % (vq(K + 8 * i), T + 1, i * 32))
        a("global_load_dwordx4 %s, v%d, s[20:21] offset:%d sc1" % (vq(K + 8 * i + 4), T + 1, i * 32 + 16))
    a("v_add_u32 v%d, 0x1000, v%d" % (T + 4, T))
    a("global_load_dwordx4 %s, v%d, s[20:21] sc1" % (vq(K + 32), T))
    a("global_load_dwordx4 %s, v%d, s[20:21] offset:2048 sc1" % (vq(K + 36), T))
    a("global_load_dwordx4 %s, v%d, s[20:21] sc1" % (vq(K + 40), T + 4))
    a("global_load_dwordx4 %s, v%d, s[20:21] offset:2048 sc1" % (vq(K + 44), T + 4))
    a("s_lshl_b32 s43, s22, 8")
    a("s_lshl_b32 s49, s3, 1")
    a("s_add_u32 s43, s43, s49")
    a("v_lshlrev_b32 v%d, 4, v3" % (T + 5))
    a("v_add_u32 v%d, s43, v%d" % (T + 5, T + 5))
    a("global_load_ushort v%d, v%d, s[12:13]" % (T + 6, T + 5))
    a("s_waitcnt vmcnt(5)")
    MM = K + 48
    FF = K + 52
    FT = K + 68
    LL = K + 72
    OO = K + 76
    for h in range(4):
        a("v_max3_f32 v%d, v%d, v%d, v%d" % (MM + h, K + h, K + 8 + h, K + 16 + h))
        a("v_max3_f32 v%d, v%d, v%d, v%d" % (MM + h, MM + h, K + 24 + h, K + 80 + h))
    for h in range(4):
        xlane("v_max_f32", MM + h, T + 7)
    for i in range(4):
        for h in range(4):
            a("v_sub_f32 v%d, v%d, v%d" % (FF + 4 * i + h, K + 8 * i + h, MM + h))
    for h in range(4):
        a("v_sub_f32 v%d, v%d, v%d" % (FT + h, K + 80 + h, MM + h))
    for i in range(4):
        for h in range(4):
            a("v_exp_f32 v%d, v%d" % (FF + 4 * i + h, FF + 4 * i + h))
    for h in range(4):
        a("v_exp_f32 v%d, v%d" % (FT + h, FT + h))
    a("s_nop 0")
    for h in range(4):
        a("v_mul_f32 v%d, v%d, v%d" % (LL + h, FF + h, K + 4 + h))
    for i in range(1, 4):
        for h in range(4):
            a("v_fmac_f32 v%d, v%d, v%d" % (LL + h, FF + 4 * i + h, K + 8 * i + 4 + h))
    a("s_waitcnt vmcnt(0)")
    for h in range(4):
        a("v_mul_f32 v%d, v%d, v%d" % (OO + h, FF + h, K + 32 + h))
    for i in range(1, 4):
        for h in range(4):
            a("v_fmac_f32 v%d, v%d, v%d" % (OO + h, FF + 4 * i + h, K + 32 + 4 * i + h))
    for h in range(4):
        xlane("v_add_f32", LL + h, T + 7)
        xlane("v_add_f32", OO + h, T + 7)
    a("v_lshlrev_b32 v%d, 16, v%d" % (T + 6, T + 6))
    for h in range(4):
        a("v_add_f32 v%d, v%d, v%d" % (LL + h, LL + h, FT + h))
        a("v_fmac_f32 v%d, v%d, v%d" % (OO + h, FT + h, T + 6))
    for h in range(4):
        a("v_rcp_f32 v%d, v%d" % (LL + h, LL + h))
    a("s_nop 0")
    for h in range(4):
        a("v_mul_f32 v%d, v%d, v%d" % (OO + h, OO + h, LL + h))
    a("v_cvt_pk_bf16_f32 v%d, v%d, v%d" % (OO, OO, OO + 1))
    a("v_cvt_pk_bf16_f32 v%d, v%d, v%d" % (OO + 2, OO + 2, OO + 3))
    a("s_lshl_b32 s43, s22, 10")
    a("s_lshl_b32 s49, s3, 1")
    a("s_add_u32 s43, s43, s49")
    a("v_lshlrev_b32 v%d, 4, v3" % (T + 5))
    a("v_add_u32 v%d, s43, v%d" % (T + 5, T + 5))
    a("s_mov_b64 exec, 0xffff")
    a("global_store_short v%d, v%d, s[16:17]" % (T + 5, OO))
    a("global_store_short_d16_hi v%d, v%d, s[16:17] offset:256" % (T + 5, OO))
    a("global_store_short v%d, v%d, s[16:17] offset:512" % (T + 5, OO + 2))
    a("global_store_short_d16_hi v%d, v%d, s[16:17] offset:768" % (T + 5, OO + 2))
    a.label("L_end")
    a("s_endpgm")

    body = a.text()
    out = HEADER + "; @launch grid=(256,1,1) block=(512,1,1) lds=%d\n" % LDS
    out += '.amdgcn_target "amdgcn-amd-amdhsa--gfx950"\n.text\n.globl %s_kernel\n.p2align 8\n.type %s_kernel,@function\n%s_kernel:\n' % (NAME, NAME, NAME)
    out += body
    out += """.section .rodata,"a"
.p2align 6
.amdhsa_kernel %s_kernel
  .amdhsa_next_free_vgpr 248
  .amdhsa_next_free_sgpr 64
  .amdhsa_accum_offset 248
  .amdhsa_group_segment_fixed_size 0
  .amdhsa_kernarg_size 72
  .amdhsa_user_sgpr_count 2
  .amdhsa_user_sgpr_kernarg_segment_ptr 1
  .amdhsa_system_sgpr_workgroup_id_x 1
  .amdhsa_float_denorm_mode_32 3
.end_amdhsa_kernel
""" % NAME
    return out

if __name__ == "__main__":
    import argparse
    p = argparse.ArgumentParser()
    p.add_argument("-o", default="cdna_kernels/%s.s" % NAME)
    p.add_argument("--kmode", default="direct")
    p.add_argument("--ld", default="")
    args = p.parse_args()
    open(args.o, "w").write(gen(args.kmode, args.ld))
```

```python
import sys, math

NAME = "standalone__tree_speculative_verify_tree_attention_over_candidate_token_tree__decode"

HEADER = """; Kernarg layout for this problem (72 bytes, ptrs only, base s[0:1]):
"""

def f32hex(x):
    import struct
    return "0x%08x" % struct.unpack("<I", struct.pack("<f", x))[0]

class Asm:
    def __init__(self):
        self.lines = []
    def __call__(self, s):
        self.lines.append("    " + s)
    def label(self, s):
        self.lines.append(s + ":")
    def c(self, s):
        self.lines.append("    ; " + s)
    def text(self):
        return "\n".join(self.lines) + "\n"

def vq(base, n=4):
    return "v[%d:%d]" % (base, base + n - 1)

def gen(kmode="direct", ldflags="", vflags=None, stflags=None, stamps=False):
    if vflags is None: vflags = ldflags
    a = Asm()
    LOG2E = 1.4426950408889634
    SCALE = 128 ** -0.5
    C = SCALE * LOG2E
    Q = 8
    KT = 24
    K = 40
    V = 104
    S = 168
    ST = 184
    P = 188
    O = 196
    T = 228
    VT = 40
    L_M = 0
    L_PT = 128
    L_M2 = 144
    L_L = 160
    L_FLAG = 288
    L_O = 512
    if kmode == "lds":
        L_K = 512 + 16384
        LDS = L_K + 8 * 16384
    else:
        LDS = 512 + 16384

    def stamp(i):
        if stamps:
            a("s_memrealtime s[%d:%d]" % (64 + 2 * i, 65 + 2 * i))
    def stamp_flush(n):
        if stamps:
            a("s_waitcnt lgkmcnt(0)")
            a("s_cmp_eq_u32 s3, 0")
            a("s_cbranch_scc0 L_nostamp%d" % n)
            a("s_lshl_b32 s43, s2, 7")
            a("s_add_u32 s43, s43, 0x1000000")
            a("v_mov_b32 v250, s43")
            a("s_mov_b64 exec, 1")
            for i in range(n):
                a("v_mov_b32 v252, s%d" % (64 + 2 * i))
                a("v_mov_b32 v253, s%d" % (65 + 2 * i))
                a("global_store_dwordx2 v250, v[252:253], s[20:21] offset:%d" % (8 * i))
                a("s_nop 1")
            a("s_mov_b64 exec, -1")
            a.label("L_nostamp%d" % n)
    stamp(0)
    a("s_load_dwordx16 s[4:19], s[0:1], 0")
    a("s_load_dwordx2 s[20:21], s[0:1], 64")
    a("s_cmp_ge_u32 s2, 256")
    a("s_cbranch_scc1 L_end")
    a("v_and_b32 v1, 63, v0")
    a("v_lshrrev_b32 v2, 6, v0")
    a("v_and_b32 v3, 15, v0")
    a("v_bfe_u32 v4, v0, 4, 2")
    a("v_readfirstlane_b32 s3, v2")
    a("v_lshlrev_b32 v5, 14, v2")
    a("v_lshl_add_u32 v6, v1, 4, v5")
    if kmode == "direct":
        a("v_and_b32 v7, 3, v3")
        a("v_lshlrev_b32 v7, 2, v7")
        a("v_lshrrev_b32 v240, 2, v3")
        a("v_add_u32 v7, v7, v240")
        a("v_lshlrev_b32 v7, 8, v7")
        a("v_lshl_add_u32 v7, v4, 4, v7")
        a("v_add_u32 v7, v7, v5")
    else:
        pass
    a("s_lshr_b32 s22, s2, 4")
    a("s_and_b32 s23, s2, 15")
    a("v_and_b32 v241, 3, v3")
    a("v_lshlrev_b32 v241, 8, v241")
    a("v_lshl_add_u32 v241, v4, 4, v241")
    a("s_lshl_b32 s36, s22, 10")
    a("v_add_u32 v241, s36, v241")
    a("s_lshl_b32 s37, s22, 8")
    a("v_lshlrev_b32 v242, 4, v4")
    a("v_add_u32 v242, s37, v242")
    a("v_lshlrev_b32 v243, 4, v3")
    a("v_bfe_u32 v240, v0, 4, 3")
    a("v_lshl_add_u32 v243, v240, 1, v243")
    a("v_add_u32 v243, s37, v243")
    a("s_mov_b32 s38, 4096")
    a("s_mov_b32 s39, 8192")
    a("s_mov_b32 s40, 12288")
    a("s_lshl_b32 s41, s2, 17")
    a("s_mov_b32 s26, 0x20000")
    a("s_mov_b32 s27, 0x00020000")
    a("s_mov_b32 s30, 0x20000")
    a("s_mov_b32 s31, 0x00020000")
    a("s_waitcnt lgkmcnt(0)")
    stamp(1)
    a("s_add_u32 s24, s6, s41")
    a("s_addc_u32 s25, s7, 0")
    a("s_add_u32 s28, s8, s41")
    a("s_addc_u32 s29, s9, 0")
    a("s_and_b32 s25, s25, 0xffff")
    a("s_and_b32 s29, s29, 0xffff")
    a("s_load_dword s42, s[14:15], 0")
    for j in range(4):
        a("global_load_dwordx4 %s, v241, s[4:5] offset:%d" % (vq(Q + 4 * j), j * 64))
    soff = ["0", "s38", "s39", "s40"]
    nload = 4
    if kmode == "direct":
        for t in range(4):
            for j in range(4):
                a("buffer_load_dwordx4 %s, v7, s[24:27], %s offen offset:%d %s" % (vq(K + (t * 4 + j) * 4), soff[t], j * 64, ldflags))
    else:
        raise NotImplementedError
    for u in range(2):
        for i in range(8):
            a("buffer_load_dwordx4 %s, v6, s[28:31], %s offen offset:%d %s" % (vq(V + (u * 8 + i) * 4), soff[2 * u + (i >> 2)], (i & 3) * 1024, vflags))
    for j in range(4):
        a("global_load_dwordx4 %s, v242, s[10:11] offset:%d" % (vq(KT + 4 * j), j * 64))
    a("global_load_ushort v244, v243, s[12:13]")
    total = 41
    for t in range(4):
        a("s_waitcnt vmcnt(%d)" % (total - 4 - 4 * (t + 1)))
        for j in range(4):
            srcc = "0" if j == 0 else vq(S + 4 * t)
            a("v_mfma_f32_16x16x32_bf16 %s, %s, %s, %s" % (vq(S + 4 * t), vq(K + (t * 4 + j) * 4), vq(Q + 4 * j), srcc))
    stamp(2)
    a("s_nop 7")
    a("v_max3_f32 v%d, v%d, v%d, v%d" % (T, S + 0, S + 1, S + 2))
    a("v_max3_f32 v%d, v%d, v%d, v%d" % (T + 1, S + 3, S + 4, S + 5))
    a("v_max3_f32 v%d, v%d, v%d, v%d" % (T + 2, S + 6, S + 7, S + 8))
    a("v_max3_f32 v%d, v%d, v%d, v%d" % (T + 3, S + 9, S + 10, S + 11))
    a("s_nop 3")
    a("v_max3_f32 v%d, v%d, v%d, v%d" % (T, T, S + 12, S + 13))
    a("v_max3_f32 v%d, v%d, v%d, v%d" % (T + 1, T + 1, S + 14, S + 15))
    a("v_max3_f32 v%d, v%d, v%d, v%d" % (T, T, T + 1, T + 2))
    a("v_max_f32 v%d, v%d, v%d" % (T, T, T + 3))
    def xlane(op, r, t):
        a("v_mov_b32 v%d, v%d" % (t, r))
        a("s_nop 1")
        a("v_permlane32_swap_b32 v%d, v%d" % (r, t))
        a("s_nop 1")
        a("%s v%d, v%d, v%d" % (op, r, r, t))
        a("v_mov_b32 v%d, v%d" % (t, r))
        a("s_nop 1")
        a("v_permlane16_swap_b32 v%d, v%d" % (r, t))
        a("s_nop 1")
        a("%s v%d, v%d, v%d" % (op, r, r, t))
    xlane("v_max_f32", T, T + 1)
    a("v_and_b32 v%d, 3, v3" % (T + 2))
    a("v_lshlrev_b32 v%d, 5, v%d" % (T + 2, T + 2))
    a("s_lshl_b32 s43, s3, 2")
    a("v_add_u32 v%d, s43, v%d" % (T + 3, T + 2))
    a("s_mov_b64 exec, 0xf")
    a("ds_write_b32 v%d, v%d offset:%d" % (T + 3, T, L_M))
    a("s_mov_b64 exec, -1")
    a("s_waitcnt lgkmcnt(0)")
    a("s_barrier")
    a("ds_read_b128 %s, v%d offset:%d" % (vq(T + 4), T + 2, L_M))
    a("ds_read_b128 %s, v%d offset:%d" % (vq(T + 8), T + 2, L_M + 16))
    a("s_mov_b32 s44, %s" % f32hex(C))
    a("s_waitcnt lgkmcnt(0)")
    a("v_max3_f32 v%d, v%d, v%d, v%d" % (T, T + 4, T + 5, T + 6))
    a("v_max3_f32 v%d, v%d, v%d, v%d" % (T + 1, T + 7, T + 8, T + 9))
    a("v_max3_f32 v%d, v%d, v%d, v%d" % (T, T, T + 10, T + 11))
    a("v_max_f32 v%d, v%d, v%d" % (T, T, T + 1))
    a("v_mul_f32 v%d, s44, v%d" % (T, T))
    for r in range(16):
        a("v_fma_f32 v%d, v%d, s44, -v%d" % (S + r, S + r, T))
    for r in range(16):
        a("v_exp_f32 v%d, v%d" % (S + r, S + r))
    a("s_nop 0")
    a("v_add_f32 v%d, v%d, v%d" % (T + 1, S + 0, S + 1))
    a("v_add_f32 v%d, v%d, v%d" % (T + 4, S + 2, S + 3))
    for r in range(4, 16, 2):
        a("v_add_f32 v%d, v%d, v%d" % (T + 1, T + 1, S + r))
        a("v_add_f32 v%d, v%d, v%d" % (T + 4, T + 4, S + r + 1))
    a("v_add_f32 v%d, v%d, v%d" % (T + 1, T + 1, T + 4))
    for u in range(2):
        for hq in range(2):
            t = 2 * u + hq
            a("v_cvt_pk_bf16_f32 v%d, v%d, v%d" % (P + 4 * u + 2 * hq, S + 4 * t, S + 4 * t + 1))
            a("v_cvt_pk_bf16_f32 v%d, v%d, v%d" % (P + 4 * u + 2 * hq + 1, S + 4 * t + 2, S + 4 * t + 3))
    xlane("v_add_f32", T + 1, T + 4)
    a("s_mov_b32 s45, 0x05040100")
    a("s_mov_b32 s46, 0x07060302")
    for u in range(2):
        a("s_waitcnt vmcnt(%d)" % (total - 4 - 16 - 8 * (u + 1)))
        for c in range(4):
            tb = VT + (c & 1) * 8 + u * 16
            for r in range(4):
                la = V + (u * 8 + 2 * r) * 4 + c
                lb = V + (u * 8 + 2 * r + 1) * 4 + c
                a("v_perm_b32 v%d, v%d, v%d, s45" % (tb + r, lb, la))
                a("v_perm_b32 v%d, v%d, v%d, s46" % (tb + 4 + r, lb, la))
            a("s_nop 1")
            for par in range(2):
                j = 2 * c + par
                srcc = "0" if u == 0 else vq(O + 4 * j)
                a("v_mfma_f32_16x16x32_bf16 %s, %s, %s, %s" % (vq(O + 4 * j), vq(P + 4 * u), vq(tb + 4 * par), srcc))
    a("s_waitcnt vmcnt(0)")
    stamp(3)
    for j in range(4):
        srcc = "0" if j == 0 else vq(ST)
        a("v_mfma_f32_16x16x32_bf16 %s, %s, %s, %s" % (vq(ST), vq(KT + 4 * j), vq(Q + 4 * j), srcc))
    a("v_lshlrev_b32 v%d, 2, v3" % (T + 2))
    a("s_lshl_b32 s43, s3, 4")
    a("v_add_u32 v%d, s43, v%d" % (T + 3, T + 2))
    a("s_mov_b64 exec, 0xf")
    a("ds_write_b32 v%d, v%d offset:%d" % (T + 3, T + 1, L_L))
    a("s_mov_b64 exec, -1")
    a("s_waitcnt lgkmcnt(0)")
    a("s_lshr_b32 s47, s22, 3")
    a("s_lshl_b32 s47, s47, 4")
    a("s_lshr_b32 s47, s42, s47")
    a("s_lshl_b32 s47, s47, 16")
    a("v_mov_b32 v%d, s47" % (T + 4))
    a("v_sub_f32 v%d, 1.0, v%d" % (T + 4, T + 4))
    a("s_mov_b32 s48, %s" % f32hex(-1e9 * LOG2E))
    a("v_mul_f32 v%d, s48, v%d" % (T + 4, T + 4))
    a("s_nop 4")
    a("v_fma_f32 v%d, v%d, s44, v%d" % (T + 4, ST, T + 4))
    a("s_cmp_eq_u32 s3, 0")
    a("s_cbranch_scc0 L_noml")
    a("s_mov_b64 exec, 0xf")
    a("ds_write_b32 v%d, v%d offset:%d" % (T + 2, T, L_M2))
    a("ds_write_b32 v%d, v%d offset:%d" % (T + 2, T + 4, L_PT))
    a("s_mov_b64 exec, -1")
    a.label("L_noml")
    a("s_lshl_b32 s43, s3, 11")
    a("v_lshlrev_b32 v%d, 4, v3" % (T + 5))
    a("v_add_u32 v%d, s43, v%d" % (T + 5, T + 5))
    a("s_mov_b64 exec, 0xffff")
    a("s_nop 4")
    for j in range(8):
        a("ds_write_b128 v%d, %s offset:%d" % (T + 5, vq(O + 4 * j), L_O + j * 256))
    a("s_mov_b64 exec, -1")
    a("s_waitcnt lgkmcnt(0)")
    a("s_barrier")
    a("s_cmp_ge_u32 s3, 2")
    a("s_cbranch_scc1 L_join")
    a("v_lshlrev_b32 v%d, 4, v0" % T)
    for w in range(8):
        a("ds_read_b128 %s, v%d offset:%d" % (vq(K + 4 * w), T, L_O + w * 2048))
    a("v_mov_b32 v%d, 0" % (T + 1))
    for w in range(8):
        a("ds_read_b128 %s, v%d offset:%d" % (vq(K + 32 + 4 * w), T + 1, L_L + w * 16))
    a("ds_read_b128 %s, v%d offset:%d" % (vq(K + 64), T + 1, L_M2))
    a("s_waitcnt lgkmcnt(9)")
    for w in range(1, 8):
        for h in range(4):
            a("v_add_f32 v%d, v%d, v%d" % (K + h, K + h, K + 4 * w + h))
    a("s_waitcnt lgkmcnt(0)")
    for w in range(1, 8):
        for h in range(4):
            a("v_add_f32 v%d, v%d, v%d" % (K + 32 + h, K + 32 + h, K + 32 + 4 * w + h))
    a("s_lshl_b32 s43, s2, 11")
    a("v_add_u32 v%d, s43, v%d" % (T + 2, T))
    a("global_store_dwordx4 v%d, %s, s[20:21] sc1" % (T + 2, vq(K)))
    a("s_lshl_b32 s43, s2, 5")
    a("s_add_u32 s43, s43, 0x100000")
    a("v_mov_b32 v%d, s43" % (T + 3))
    a("s_cmp_eq_u32 s3, 0")
    a("s_cbranch_scc0 L_nostml")
    a("s_mov_b64 exec, 1")
    a("global_store_dwordx4 v%d, %s, s[20:21] sc1" % (T + 3, vq(K + 64)))
    a("global_store_dwordx4 v%d, %s, s[20:21] offset:16 sc1" % (T + 3, vq(K + 32)))
    a("s_mov_b64 exec, -1")
    a.label("L_nostml")
    a("s_waitcnt vmcnt(0)")
    a.label("L_join")
    a("s_barrier")
    stamp(4)
    a("s_cmp_eq_u32 s3, 0")
    a("s_cbranch_scc0 L_wait2")
    a("s_lshl_b32 s43, s22, 2")
    a("v_mov_b32 v%d, s43" % T)
    a("v_mov_b32 v%d, 1" % (T + 1))
    a("s_mov_b64 exec, 1")
    a("global_atomic_add v%d, v%d, v%d, s[18:19] sc0" % (T + 2, T, T + 1))
    a("s_waitcnt vmcnt(0)")
    a("v_mov_b32 v%d, 0" % (T + 3))
    a("ds_write_b32 v%d, v%d offset:%d" % (T + 3, T + 2, L_FLAG))
    a("s_mov_b64 exec, -1")
    a("s_waitcnt lgkmcnt(0)")
    a.label("L_wait2")
    a("s_barrier")
    a("v_mov_b32 v%d, 0" % (T + 3))
    a("ds_read_b32 v%d, v%d offset:%d" % (T + 2, T + 3, L_FLAG))
    a("ds_read_b128 %s, v%d offset:%d" % (vq(K + 80), T + 3, L_PT))
    a("s_waitcnt lgkmcnt(0)")
    a("v_readfirstlane_b32 s43, v%d" % (T + 2))
    stamp(5)
    a("s_mov_b32 s50, s43")
    stamp_flush(6)
    a("s_cmp_eq_u32 s50, 15")
    a("s_cbranch_scc0 L_end")
    a("s_lshl_b32 s43, s22, 15")
    a("s_lshl_b32 s49, s3, 8")
    a("s_add_u32 s43, s43, s49")
    a("v_lshlrev_b32 v%d, 13, v4" % T)
    a("v_lshl_add_u32 v%d, v3, 4, v%d" % (T, T))
    a("v_add_u32 v%d, s43, v%d" % (T, T))
    a("s_lshl_b32 s43, s22, 9")
    a("s_add_u32 s43, s43, 0x100000")
    a("v_lshlrev_b32 v%d, 7, v4" % (T + 1))
    a("v_add_u32 v%d, s43, v%d" % (T + 1, T + 1))
    for i in range(4):
        a("global_load_dwordx4 %s, v%d, s[20:21] offset:%d sc1" % (vq(K + 8 * i), T + 1, i * 32))
        a("global_load_dwordx4 %s, v%d, s[20:21] offset:%d sc1" % (vq(K + 8 * i + 4), T + 1, i * 32 + 16))
    a("v_add_u32 v%d, 0x1000, v%d" % (T + 4, T))
    a("global_load_dwordx4 %s, v%d, s[20:21] sc1" % (vq(K + 32), T))
    a("global_load_dwordx4 %s, v%d, s[20:21] offset:2048 sc1" % (vq(K + 36), T))
    a("global_load_dwordx4 %s, v%d, s[20:21] sc1" % (vq(K + 40), T + 4))
    a("global_load_dwordx4 %s, v%d, s[20:21] offset:2048 sc1" % (vq(K + 44), T + 4))
    a("s_lshl_b32 s43, s22, 8")
    a("s_lshl_b32 s49, s3, 1")
    a("s_add_u32 s43, s43, s49")
    a("v_lshlrev_b32 v%d, 4, v3" % (T + 5))
    a("v_add_u32 v%d, s43, v%d" % (T + 5, T + 5))
    a("global_load_ushort v%d, v%d, s[12:13]" % (T + 6, T + 5))
    a("s_waitcnt vmcnt(5)")
    MM = K + 48
    FF = K + 52
    FT = K + 68
    LL = K + 72
    OO = K + 76
    for h in range(4):
        a("v_max3_f32 v%d, v%d, v%d, v%d" % (MM + h, K + h, K + 8 + h, K + 16 + h))
        a("v_max3_f32 v%d, v%d, v%d, v%d" % (MM + h, MM + h, K + 24 + h, K + 80 + h))
    for h in range(4):
        xlane("v_max_f32", MM + h, T + 7)
    for i in range(4):
        for h in range(4):
            a("v_sub_f32 v%d, v%d, v%d" % (FF + 4 * i + h, K + 8 * i + h, MM + h))
    for h in range(4):
        a("v_sub_f32 v%d, v%d, v%d" % (FT + h, K + 80 + h, MM + h))
    for i in range(4):
        for h in range(4):
            a("v_exp_f32 v%d, v%d" % (FF + 4 * i + h, FF + 4 * i + h))
    for h in range(4):
        a("v_exp_f32 v%d, v%d" % (FT + h, FT + h))
    a("s_nop 0")
    for h in range(4):
        a("v_mul_f32 v%d, v%d, v%d" % (LL + h, FF + h, K + 4 + h))
    for i in range(1, 4):
        for h in range(4):
            a("v_fmac_f32 v%d, v%d, v%d" % (LL + h, FF + 4 * i + h, K + 8 * i + 4 + h))
    a("s_waitcnt vmcnt(0)")
    for h in range(4):
        a("v_mul_f32 v%d, v%d, v%d" % (OO + h, FF + h, K + 32 + h))
    for i in range(1, 4):
        for h in range(4):
            a("v_fmac_f32 v%d, v%d, v%d" % (OO + h, FF + 4 * i + h, K + 32 + 4 * i + h))
    for h in range(4):
        xlane("v_add_f32", LL + h, T + 7)
        xlane("v_add_f32", OO + h, T + 7)
    a("v_lshlrev_b32 v%d, 16, v%d" % (T + 6, T + 6))
    for h in range(4):
        a("v_add_f32 v%d, v%d, v%d" % (LL + h, LL + h, FT + h))
        a("v_fmac_f32 v%d, v%d, v%d" % (OO + h, FT + h, T + 6))
    for h in range(4):
        a("v_rcp_f32 v%d, v%d" % (LL + h, LL + h))
    a("s_nop 0")
    for h in range(4):
        a("v_mul_f32 v%d, v%d, v%d" % (OO + h, OO + h, LL + h))
    a("v_cvt_pk_bf16_f32 v%d, v%d, v%d" % (OO, OO, OO + 1))
    a("v_cvt_pk_bf16_f32 v%d, v%d, v%d" % (OO + 2, OO + 2, OO + 3))
    a("s_lshl_b32 s43, s22, 10")
    a("s_lshl_b32 s49, s3, 1")
    a("s_add_u32 s43, s43, s49")
    a("v_lshlrev_b32 v%d, 4, v3" % (T + 5))
    a("v_add_u32 v%d, s43, v%d" % (T + 5, T + 5))
    a("s_mov_b64 exec, 0xffff")
    a("global_store_short v%d, v%d, s[16:17]" % (T + 5, OO))
    a("global_store_short_d16_hi v%d, v%d, s[16:17] offset:256" % (T + 5, OO))
    a("global_store_short v%d, v%d, s[16:17] offset:512" % (T + 5, OO + 2))
    a("global_store_short_d16_hi v%d, v%d, s[16:17] offset:768" % (T + 5, OO + 2))
    if stamps:
        a("s_waitcnt vmcnt(0)")
    stamp(6)
    stamp_flush(7)
    a.label("L_end")
    a("s_endpgm")

    body = a.text()
    out = HEADER + "; @launch grid=(256,1,1) block=(512,1,1) lds=%d\n" % LDS
    out += '.amdgcn_target "amdgcn-amd-amdhsa--gfx950"\n.text\n.globl %s_kernel\n.p2align 8\n.type %s_kernel,@function\n%s_kernel:\n' % (NAME, NAME, NAME)
    out += body
    out += """.section .rodata,"a"
.p2align 6
.amdhsa_kernel %s_kernel
  .amdhsa_next_free_vgpr 256
  .amdhsa_next_free_sgpr 96
  .amdhsa_accum_offset 256
  .amdhsa_group_segment_fixed_size 0
  .amdhsa_kernarg_size 72
  .amdhsa_user_sgpr_count 2
  .amdhsa_user_sgpr_kernarg_segment_ptr 1
  .amdhsa_system_sgpr_workgroup_id_x 1
  .amdhsa_float_denorm_mode_32 3
.end_amdhsa_kernel
""" % NAME
    return out

if __name__ == "__main__":
    import argparse
    p = argparse.ArgumentParser()
    p.add_argument("-o", default="cdna_kernels/%s.s" % NAME)
    p.add_argument("--kmode", default="direct")
    p.add_argument("--ld", default="")
    p.add_argument("--stamps", action="store_true")
    args = p.parse_args()
    open(args.o, "w").write(gen(args.kmode, args.ld, stamps=args.stamps))
```

```python
import sys, math

NAME = "standalone__tree_speculative_verify_tree_attention_over_candidate_token_tree__decode"

HEADER = """; Kernarg layout for this problem (72 bytes, ptrs only, base s[0:1]):
"""

def f32hex(x):
    import struct
    return "0x%08x" % struct.unpack("<I", struct.pack("<f", x))[0]

class Asm:
    def __init__(self):
        self.lines = []
    def __call__(self, s):
        self.lines.append("    " + s)
    def label(self, s):
        self.lines.append(s + ":")
    def c(self, s):
        self.lines.append("    ; " + s)
    def text(self):
        return "\n".join(self.lines) + "\n"

def vq(base, n=4):
    return "v[%d:%d]" % (base, base + n - 1)

def gen(kmode="direct", ldflags="", vflags=None, stflags=None, stamps=False, spin=0):
    if vflags is None: vflags = ldflags
    a = Asm()
    LOG2E = 1.4426950408889634
    SCALE = 128 ** -0.5
    C = SCALE * LOG2E
    Q = 8
    KT = 24
    K = 40
    V = 104
    S = 168
    ST = 184
    P = 188
    O = 196
    T = 228
    VT = 40
    L_M = 0
    L_PT = 128
    L_M2 = 144
    L_L = 160
    L_FLAG = 288
    L_O = 512
    if kmode == "lds":
        L_K = 512 + 16384
        LDS = L_K + 8 * 16384
    else:
        LDS = 512 + 16384

    def stamp(i):
        if stamps:
            a("s_memrealtime s[%d:%d]" % (64 + 2 * i, 65 + 2 * i))
    def stamp_flush(n):
        if stamps:
            a("s_waitcnt lgkmcnt(0)")
            a("s_cmp_eq_u32 s3, 0")
            a("s_cbranch_scc0 L_nostamp%d" % n)
            a("s_lshl_b32 s43, s2, 7")
            a("s_add_u32 s43, s43, 0x1000000")
            a("v_mov_b32 v250, s43")
            a("s_mov_b64 exec, 1")
            for i in range(n):
                a("v_mov_b32 v252, s%d" % (64 + 2 * i))
                a("v_mov_b32 v253, s%d" % (65 + 2 * i))
                a("global_store_dwordx2 v250, v[252:253], s[20:21] offset:%d" % (8 * i))
                a("s_nop 1")
            a("s_mov_b64 exec, -1")
            a.label("L_nostamp%d" % n)
    stamp(0)
    if spin:
        a("s_memrealtime s[80:81]")
    a("s_load_dwordx16 s[4:19], s[0:1], 0")
    a("s_load_dwordx2 s[20:21], s[0:1], 64")
    a("s_cmp_ge_u32 s2, 256")
    a("s_cbranch_scc1 L_end")
    a("v_and_b32 v1, 63, v0")
    a("v_lshrrev_b32 v2, 6, v0")
    a("v_and_b32 v3, 15, v0")
    a("v_bfe_u32 v4, v0, 4, 2")
    a("v_readfirstlane_b32 s3, v2")
    a("v_lshlrev_b32 v5, 14, v2")
    a("v_lshl_add_u32 v6, v1, 4, v5")
    if kmode == "direct":
        a("v_and_b32 v7, 3, v3")
        a("v_lshlrev_b32 v7, 2, v7")
        a("v_lshrrev_b32 v240, 2, v3")
        a("v_add_u32 v7, v7, v240")
        a("v_lshlrev_b32 v7, 8, v7")
        a("v_lshl_add_u32 v7, v4, 4, v7")
        a("v_add_u32 v7, v7, v5")
    else:
        pass
    a("s_lshr_b32 s22, s2, 4")
    a("s_and_b32 s23, s2, 15")
    a("v_and_b32 v241, 3, v3")
    a("v_lshlrev_b32 v241, 8, v241")
    a("v_lshl_add_u32 v241, v4, 4, v241")
    a("s_lshl_b32 s36, s22, 10")
    a("v_add_u32 v241, s36, v241")
    a("s_lshl_b32 s37, s22, 8")
    a("v_lshlrev_b32 v242, 4, v4")
    a("v_add_u32 v242, s37, v242")
    a("v_lshlrev_b32 v243, 4, v3")
    a("v_bfe_u32 v240, v0, 4, 3")
    a("v_lshl_add_u32 v243, v240, 1, v243")
    a("v_add_u32 v243, s37, v243")
    a("s_mov_b32 s38, 4096")
    a("s_mov_b32 s39, 8192")
    a("s_mov_b32 s40, 12288")
    a("s_lshl_b32 s41, s2, 17")
    a("s_mov_b32 s26, 0x20000")
    a("s_mov_b32 s27, 0x00020000")
    a("s_mov_b32 s30, 0x20000")
    a("s_mov_b32 s31, 0x00020000")
    a("s_waitcnt lgkmcnt(0)")
    stamp(1)
    a("s_add_u32 s24, s6, s41")
    a("s_addc_u32 s25, s7, 0")
    a("s_add_u32 s28, s8, s41")
    a("s_addc_u32 s29, s9, 0")
    a("s_and_b32 s25, s25, 0xffff")
    a("s_and_b32 s29, s29, 0xffff")
    a("s_load_dword s42, s[14:15], 0")
    for j in range(4):
        a("global_load_dwordx4 %s, v241, s[4:5] offset:%d" % (vq(Q + 4 * j), j * 64))
    soff = ["0", "s38", "s39", "s40"]
    nload = 4
    if kmode == "direct":
        for t in range(4):
            for j in range(4):
                a("buffer_load_dwordx4 %s, v7, s[24:27], %s offen offset:%d %s" % (vq(K + (t * 4 + j) * 4), soff[t], j * 64, ldflags))
    else:
        raise NotImplementedError
    for u in range(2):
        for i in range(8):
            a("buffer_load_dwordx4 %s, v6, s[28:31], %s offen offset:%d %s" % (vq(V + (u * 8 + i) * 4), soff[2 * u + (i >> 2)], (i & 3) * 1024, vflags))
    for j in range(4):
        a("global_load_dwordx4 %s, v242, s[10:11] offset:%d" % (vq(KT + 4 * j), j * 64))
    a("global_load_ushort v244, v243, s[12:13]")
    total = 41
    for t in range(4):
        a("s_waitcnt vmcnt(%d)" % (total - 4 - 4 * (t + 1)))
        for j in range(4):
            srcc = "0" if j == 0 else vq(S + 4 * t)
            a("v_mfma_f32_16x16x32_bf16 %s, %s, %s, %s" % (vq(S + 4 * t), vq(K + (t * 4 + j) * 4), vq(Q + 4 * j), srcc))
    stamp(2)
    a("s_nop 7")
    a("v_max3_f32 v%d, v%d, v%d, v%d" % (T, S + 0, S + 1, S + 2))
    a("v_max3_f32 v%d, v%d, v%d, v%d" % (T + 1, S + 3, S + 4, S + 5))
    a("v_max3_f32 v%d, v%d, v%d, v%d" % (T + 2, S + 6, S + 7, S + 8))
    a("v_max3_f32 v%d, v%d, v%d, v%d" % (T + 3, S + 9, S + 10, S + 11))
    a("s_nop 3")
    a("v_max3_f32 v%d, v%d, v%d, v%d" % (T, T, S + 12, S + 13))
    a("v_max3_f32 v%d, v%d, v%d, v%d" % (T + 1, T + 1, S + 14, S + 15))
    a("v_max3_f32 v%d, v%d, v%d, v%d" % (T, T, T + 1, T + 2))
    a("v_max_f32 v%d, v%d, v%d" % (T, T, T + 3))
    def xlane(op, r, t):
        a("v_mov_b32 v%d, v%d" % (t, r))
        a("s_nop 1")
        a("v_permlane32_swap_b32 v%d, v%d" % (r, t))
        a("s_nop 1")
        a("%s v%d, v%d, v%d" % (op, r, r, t))
        a("v_mov_b32 v%d, v%d" % (t, r))
        a("s_nop 1")
        a("v_permlane16_swap_b32 v%d, v%d" % (r, t))
        a("s_nop 1")
        a("%s v%d, v%d, v%d" % (op, r, r, t))
    xlane("v_max_f32", T, T + 1)
    a("v_and_b32 v%d, 3, v3" % (T + 2))
    a("v_lshlrev_b32 v%d, 5, v%d" % (T + 2, T + 2))
    a("s_lshl_b32 s43, s3, 2")
    a("v_add_u32 v%d, s43, v%d" % (T + 3, T + 2))
    a("s_mov_b64 exec, 0xf")
    a("ds_write_b32 v%d, v%d offset:%d" % (T + 3, T, L_M))
    a("s_mov_b64 exec, -1")
    a("s_waitcnt lgkmcnt(0)")
    a("s_barrier")
    a("ds_read_b128 %s, v%d offset:%d" % (vq(T + 4), T + 2, L_M))
    a("ds_read_b128 %s, v%d offset:%d" % (vq(T + 8), T + 2, L_M + 16))
    a("s_mov_b32 s44, %s" % f32hex(C))
    a("s_waitcnt lgkmcnt(0)")
    a("v_max3_f32 v%d, v%d, v%d, v%d" % (T, T + 4, T + 5, T + 6))
    a("v_max3_f32 v%d, v%d, v%d, v%d" % (T + 1, T + 7, T + 8, T + 9))
    a("v_max3_f32 v%d, v%d, v%d, v%d" % (T, T, T + 10, T + 11))
    a("v_max_f32 v%d, v%d, v%d" % (T, T, T + 1))
    a("v_mul_f32 v%d, s44, v%d" % (T, T))
    for r in range(16):
        a("v_fma_f32 v%d, v%d, s44, -v%d" % (S + r, S + r, T))
    for r in range(16):
        a("v_exp_f32 v%d, v%d" % (S + r, S + r))
    a("s_nop 0")
    a("v_add_f32 v%d, v%d, v%d" % (T + 1, S + 0, S + 1))
    a("v_add_f32 v%d, v%d, v%d" % (T + 4, S + 2, S + 3))
    for r in range(4, 16, 2):
        a("v_add_f32 v%d, v%d, v%d" % (T + 1, T + 1, S + r))
        a("v_add_f32 v%d, v%d, v%d" % (T + 4, T + 4, S + r + 1))
    a("v_add_f32 v%d, v%d, v%d" % (T + 1, T + 1, T + 4))
    for u in range(2):
        for hq in range(2):
            t = 2 * u + hq
            a("v_cvt_pk_bf16_f32 v%d, v%d, v%d" % (P + 4 * u + 2 * hq, S + 4 * t, S + 4 * t + 1))
            a("v_cvt_pk_bf16_f32 v%d, v%d, v%d" % (P + 4 * u + 2 * hq + 1, S + 4 * t + 2, S + 4 * t + 3))
    xlane("v_add_f32", T + 1, T + 4)
    a("s_mov_b32 s45, 0x05040100")
    a("s_mov_b32 s46, 0x07060302")
    for u in range(2):
        a("s_waitcnt vmcnt(%d)" % (total - 4 - 16 - 8 * (u + 1)))
        for c in range(4):
            tb = VT + (c & 1) * 8 + u * 16
            for r in range(4):
                la = V + (u * 8 + 2 * r) * 4 + c
                lb = V + (u * 8 + 2 * r + 1) * 4 + c
                a("v_perm_b32 v%d, v%d, v%d, s45" % (tb + r, lb, la))
                a("v_perm_b32 v%d, v%d, v%d, s46" % (tb + 4 + r, lb, la))
            a("s_nop 1")
            for par in range(2):
                j = 2 * c + par
                srcc = "0" if u == 0 else vq(O + 4 * j)
                a("v_mfma_f32_16x16x32_bf16 %s, %s, %s, %s" % (vq(O + 4 * j), vq(P + 4 * u), vq(tb + 4 * par), srcc))
    a("s_waitcnt vmcnt(0)")
    stamp(3)
    for j in range(4):
        srcc = "0" if j == 0 else vq(ST)
        a("v_mfma_f32_16x16x32_bf16 %s, %s, %s, %s" % (vq(ST), vq(KT + 4 * j), vq(Q + 4 * j), srcc))
    a("v_lshlrev_b32 v%d, 2, v3" % (T + 2))
    a("s_lshl_b32 s43, s3, 4")
    a("v_add_u32 v%d, s43, v%d" % (T + 3, T + 2))
    a("s_mov_b64 exec, 0xf")
    a("ds_write_b32 v%d, v%d offset:%d" % (T + 3, T + 1, L_L))
    a("s_mov_b64 exec, -1")
    a("s_waitcnt lgkmcnt(0)")
    a("s_lshr_b32 s47, s22, 3")
    a("s_lshl_b32 s47, s47, 4")
    a("s_lshr_b32 s47, s42, s47")
    a("s_lshl_b32 s47, s47, 16")
    a("v_mov_b32 v%d, s47" % (T + 4))
    a("v_sub_f32 v%d, 1.0, v%d" % (T + 4, T + 4))
    a("s_mov_b32 s48, %s" % f32hex(-1e9 * LOG2E))
    a("v_mul_f32 v%d, s48, v%d" % (T + 4, T + 4))
    a("s_nop 4")
    a("v_fma_f32 v%d, v%d, s44, v%d" % (T + 4, ST, T + 4))
    a("s_cmp_eq_u32 s3, 0")
    a("s_cbranch_scc0 L_noml")
    a("s_mov_b64 exec, 0xf")
    a("ds_write_b32 v%d, v%d offset:%d" % (T + 2, T, L_M2))
    a("ds_write_b32 v%d, v%d offset:%d" % (T + 2, T + 4, L_PT))
    a("s_mov_b64 exec, -1")
    a.label("L_noml")
    a("s_lshl_b32 s43, s3, 11")
    a("v_lshlrev_b32 v%d, 4, v3" % (T + 5))
    a("v_add_u32 v%d, s43, v%d" % (T + 5, T + 5))
    a("s_mov_b64 exec, 0xffff")
    a("s_nop 4")
    for j in range(8):
        a("ds_write_b128 v%d, %s offset:%d" % (T + 5, vq(O + 4 * j), L_O + j * 256))
    a("s_mov_b64 exec, -1")
    a("s_waitcnt lgkmcnt(0)")
    a("s_barrier")
    a("s_cmp_ge_u32 s3, 2")
    a("s_cbranch_scc1 L_join")
    a("v_lshlrev_b32 v%d, 4, v0" % T)
    for w in range(8):
        a("ds_read_b128 %s, v%d offset:%d" % (vq(K + 4 * w), T, L_O + w * 2048))
    a("v_mov_b32 v%d, 0" % (T + 1))
    for w in range(8):
        a("ds_read_b128 %s, v%d offset:%d" % (vq(K + 32 + 4 * w), T + 1, L_L + w * 16))
    a("ds_read_b128 %s, v%d offset:%d" % (vq(K + 64), T + 1, L_M2))
    a("s_waitcnt lgkmcnt(9)")
    for w in range(1, 8):
        for h in range(4):
            a("v_add_f32 v%d, v%d, v%d" % (K + h, K + h, K + 4 * w + h))
    a("s_waitcnt lgkmcnt(0)")
    for w in range(1, 8):
        for h in range(4):
            a("v_add_f32 v%d, v%d, v%d" % (K + 32 + h, K + 32 + h, K + 32 + 4 * w + h))
    a("s_lshl_b32 s43, s2, 11")
    a("v_add_u32 v%d, s43, v%d" % (T + 2, T))
    a("global_store_dwordx4 v%d, %s, s[20:21] sc1" % (T + 2, vq(K)))
    a("s_lshl_b32 s43, s2, 5")
    a("s_add_u32 s43, s43, 0x100000")
    a("v_mov_b32 v%d, s43" % (T + 3))
    a("s_cmp_eq_u32 s3, 0")
    a("s_cbranch_scc0 L_nostml")
    a("s_mov_b64 exec, 1")
    a("global_store_dwordx4 v%d, %s, s[20:21] sc1" % (T + 3, vq(K + 64)))
    a("global_store_dwordx4 v%d, %s, s[20:21] offset:16 sc1" % (T + 3, vq(K + 32)))
    a("s_mov_b64 exec, -1")
    a.label("L_nostml")
    a("s_waitcnt vmcnt(0)")
    a.label("L_join")
    a("s_barrier")
    stamp(4)
    a("s_cmp_eq_u32 s3, 0")
    a("s_cbranch_scc0 L_wait2")
    a("s_lshl_b32 s43, s22, 2")
    a("v_mov_b32 v%d, s43" % T)
    a("v_mov_b32 v%d, 1" % (T + 1))
    a("s_mov_b64 exec, 1")
    a("global_atomic_add v%d, v%d, v%d, s[18:19] sc0" % (T + 2, T, T + 1))
    a("s_waitcnt vmcnt(0)")
    a("v_mov_b32 v%d, 0" % (T + 3))
    a("ds_write_b32 v%d, v%d offset:%d" % (T + 3, T + 2, L_FLAG))
    a("s_mov_b64 exec, -1")
    a("s_waitcnt lgkmcnt(0)")
    a.label("L_wait2")
    a("s_barrier")
    a("v_mov_b32 v%d, 0" % (T + 3))
    a("ds_read_b32 v%d, v%d offset:%d" % (T + 2, T + 3, L_FLAG))
    a("ds_read_b128 %s, v%d offset:%d" % (vq(K + 80), T + 3, L_PT))
    a("s_waitcnt lgkmcnt(0)")
    a("v_readfirstlane_b32 s43, v%d" % (T + 2))
    stamp(5)
    a("s_mov_b32 s50, s43")
    stamp_flush(6)
    a("s_cmp_eq_u32 s50, 15")
    a("s_cbranch_scc0 L_end")
    a("s_lshl_b32 s43, s22, 15")
    a("s_lshl_b32 s49, s3, 8")
    a("s_add_u32 s43, s43, s49")
    a("v_lshlrev_b32 v%d, 13, v4" % T)
    a("v_lshl_add_u32 v%d, v3, 4, v%d" % (T, T))
    a("v_add_u32 v%d, s43, v%d" % (T, T))
    a("s_lshl_b32 s43, s22, 9")
    a("s_add_u32 s43, s43, 0x100000")
    a("v_lshlrev_b32 v%d, 7, v4" % (T + 1))
    a("v_add_u32 v%d, s43, v%d" % (T + 1, T + 1))
    for i in range(4):
        a("global_load_dwordx4 %s, v%d, s[20:21] offset:%d sc1" % (vq(K + 8 * i), T + 1, i * 32))
        a("global_load_dwordx4 %s, v%d, s[20:21] offset:%d sc1" % (vq(K + 8 * i + 4), T + 1, i * 32 + 16))
    a("v_add_u32 v%d, 0x1000, v%d" % (T + 4, T))
    a("global_load_dwordx4 %s, v%d, s[20:21] sc1" % (vq(K + 32), T))
    a("global_load_dwordx4 %s, v%d, s[20:21] offset:2048 sc1" % (vq(K + 36), T))
    a("global_load_dwordx4 %s, v%d, s[20:21] sc1" % (vq(K + 40), T + 4))
    a("global_load_dwordx4 %s, v%d, s[20:21] offset:2048 sc1" % (vq(K + 44), T + 4))
    a("s_lshl_b32 s43, s22, 8")
    a("s_lshl_b32 s49, s3, 1")
    a("s_add_u32 s43, s43, s49")
    a("v_lshlrev_b32 v%d, 4, v3" % (T + 5))
    a("v_add_u32 v%d, s43, v%d" % (T + 5, T + 5))
    a("global_load_ushort v%d, v%d, s[12:13]" % (T + 6, T + 5))
    a("s_waitcnt vmcnt(5)")
    MM = K + 48
    FF = K + 52
    FT = K + 68
    LL = K + 72
    OO = K + 76
    for h in range(4):
        a("v_max3_f32 v%d, v%d, v%d, v%d" % (MM + h, K + h, K + 8 + h, K + 16 + h))
        a("v_max3_f32 v%d, v%d, v%d, v%d" % (MM + h, MM + h, K + 24 + h, K + 80 + h))
    for h in range(4):
        xlane("v_max_f32", MM + h, T + 7)
    for i in range(4):
        for h in range(4):
            a("v_sub_f32 v%d, v%d, v%d" % (FF + 4 * i + h, K + 8 * i + h, MM + h))
    for h in range(4):
        a("v_sub_f32 v%d, v%d, v%d" % (FT + h, K + 80 + h, MM + h))
    for i in range(4):
        for h in range(4):
            a("v_exp_f32 v%d, v%d" % (FF + 4 * i + h, FF + 4 * i + h))
    for h in range(4):
        a("v_exp_f32 v%d, v%d" % (FT + h, FT + h))
    a("s_nop 0")
    for h in range(4):
        a("v_mul_f32 v%d, v%d, v%d" % (LL + h, FF + h, K + 4 + h))
    for i in range(1, 4):
        for h in range(4):
            a("v_fmac_f32 v%d, v%d, v%d" % (LL + h, FF + 4 * i + h, K + 8 * i + 4 + h))
    a("s_waitcnt vmcnt(0)")
    for h in range(4):
        a("v_mul_f32 v%d, v%d, v%d" % (OO + h, FF + h, K + 32 + h))
    for i in range(1, 4):
        for h in range(4):
            a("v_fmac_f32 v%d, v%d, v%d" % (OO + h, FF + 4 * i + h, K + 32 + 4 * i + h))
    for h in range(4):
        xlane("v_add_f32", LL + h, T + 7)
        xlane("v_add_f32", OO + h, T + 7)
    a("v_lshlrev_b32 v%d, 16, v%d" % (T + 6, T + 6))
    for h in range(4):
        a("v_add_f32 v%d, v%d, v%d" % (LL + h, LL + h, FT + h))
        a("v_fmac_f32 v%d, v%d, v%d" % (OO + h, FT + h, T + 6))
    for h in range(4):
        a("v_rcp_f32 v%d, v%d" % (LL + h, LL + h))
    a("s_nop 0")
    for h in range(4):
        a("v_mul_f32 v%d, v%d, v%d" % (OO + h, OO + h, LL + h))
    a("v_cvt_pk_bf16_f32 v%d, v%d, v%d" % (OO, OO, OO + 1))
    a("v_cvt_pk_bf16_f32 v%d, v%d, v%d" % (OO + 2, OO + 2, OO + 3))
    a("s_lshl_b32 s43, s22, 10")
    a("s_lshl_b32 s49, s3, 1")
    a("s_add_u32 s43, s43, s49")
    a("v_lshlrev_b32 v%d, 4, v3" % (T + 5))
    a("v_add_u32 v%d, s43, v%d" % (T + 5, T + 5))
    a("s_mov_b64 exec, 0xffff")
    a("global_store_short v%d, v%d, s[16:17]" % (T + 5, OO))
    a("global_store_short_d16_hi v%d, v%d, s[16:17] offset:256" % (T + 5, OO))
    a("global_store_short v%d, v%d, s[16:17] offset:512" % (T + 5, OO + 2))
    a("global_store_short_d16_hi v%d, v%d, s[16:17] offset:768" % (T + 5, OO + 2))
    if stamps:
        a("s_waitcnt vmcnt(0)")
    stamp(6)
    stamp_flush(7)
    a.label("L_end")
    if spin:
        a("s_waitcnt vmcnt(0) lgkmcnt(0)")
        a.label("L_spin")
        a("s_memrealtime s[82:83]")
        a("s_waitcnt lgkmcnt(0)")
        a("s_sub_u32 s84, s82, s80")
        a("s_cmp_lt_u32 s84, %d" % spin)
        a("s_cbranch_scc1 L_spin")
    a("s_endpgm")

    body = a.text()
    out = HEADER + "; @launch grid=(256,1,1) block=(512,1,1) lds=%d\n" % LDS
    out += '.amdgcn_target "amdgcn-amd-amdhsa--gfx950"\n.text\n.globl %s_kernel\n.p2align 8\n.type %s_kernel,@function\n%s_kernel:\n' % (NAME, NAME, NAME)
    out += body
    out += """.section .rodata,"a"
.p2align 6
.amdhsa_kernel %s_kernel
  .amdhsa_next_free_vgpr 256
  .amdhsa_next_free_sgpr 96
  .amdhsa_accum_offset 256
  .amdhsa_group_segment_fixed_size 0
  .amdhsa_kernarg_size 72
  .amdhsa_user_sgpr_count 2
  .amdhsa_user_sgpr_kernarg_segment_ptr 1
  .amdhsa_system_sgpr_workgroup_id_x 1
  .amdhsa_float_denorm_mode_32 3
.end_amdhsa_kernel
""" % NAME
    return out

if __name__ == "__main__":
    import argparse
    p = argparse.ArgumentParser()
    p.add_argument("-o", default="cdna_kernels/%s.s" % NAME)
    p.add_argument("--kmode", default="direct")
    p.add_argument("--ld", default="")
    p.add_argument("--stamps", action="store_true")
    p.add_argument("--spin", type=int, default=0)
    args = p.parse_args()
    open(args.o, "w").write(gen(args.kmode, args.ld, stamps=args.stamps, spin=args.spin))
```

```python
import sys, math

NAME = "standalone__tree_speculative_verify_tree_attention_over_candidate_token_tree__decode"

HEADER = """; Kernarg layout for this problem (72 bytes, ptrs only, base s[0:1]):
"""

def f32hex(x):
    import struct
    return "0x%08x" % struct.unpack("<I", struct.pack("<f", x))[0]

class Asm:
    def __init__(self):
        self.lines = []
    def __call__(self, s):
        self.lines.append("    " + s)
    def label(self, s):
        self.lines.append(s + ":")
    def c(self, s):
        self.lines.append("    ; " + s)
    def text(self):
        return "\n".join(self.lines) + "\n"

def vq(base, n=4):
    return "v[%d:%d]" % (base, base + n - 1)

def gen(kmode="direct", ldflags="", vflags=None, stflags=None, stamps=False, spin=0, spinref=None):
    if vflags is None: vflags = ldflags
    a = Asm()
    LOG2E = 1.4426950408889634
    SCALE = 128 ** -0.5
    C = SCALE * LOG2E
    Q = 8
    KT = 24
    K = 40
    V = 104
    S = 168
    ST = 184
    P = 188
    O = 196
    T = 228
    VT = 40
    L_M = 0
    L_PT = 128
    L_M2 = 144
    L_L = 160
    L_FLAG = 288
    L_O = 512
    if kmode == "lds":
        L_K = 512 + 16384
        LDS = L_K + 8 * 16384
    else:
        LDS = 512 + 16384

    def stamp(i):
        if spinref == i:
            a("s_memrealtime s[96:97]")
        if stamps:
            a("s_memrealtime s[%d:%d]" % (64 + 2 * i, 65 + 2 * i))
    def stamp_flush(n):
        if stamps:
            a("s_waitcnt lgkmcnt(0)")
            a("s_cmp_eq_u32 s3, 0")
            a("s_cbranch_scc0 L_nostamp%d" % n)
            a("s_lshl_b32 s43, s2, 7")
            a("s_add_u32 s43, s43, 0x1000000")
            a("v_mov_b32 v250, s43")
            a("s_mov_b64 exec, 1")
            for i in range(n):
                a("v_mov_b32 v252, s%d" % (64 + 2 * i))
                a("v_mov_b32 v253, s%d" % (65 + 2 * i))
                a("global_store_dwordx2 v250, v[252:253], s[20:21] offset:%d" % (8 * i))
                a("s_nop 1")
            a("s_mov_b64 exec, -1")
            a.label("L_nostamp%d" % n)
    stamp(0)
    if spin:
        a("s_memrealtime s[90:91]")
    a("s_load_dwordx16 s[4:19], s[0:1], 0")
    a("s_load_dwordx2 s[20:21], s[0:1], 64")
    a("s_cmp_ge_u32 s2, 256")
    a("s_cbranch_scc1 L_end")
    a("v_and_b32 v1, 63, v0")
    a("v_lshrrev_b32 v2, 6, v0")
    a("v_and_b32 v3, 15, v0")
    a("v_bfe_u32 v4, v0, 4, 2")
    a("v_readfirstlane_b32 s3, v2")
    a("v_lshlrev_b32 v5, 14, v2")
    a("v_lshl_add_u32 v6, v1, 4, v5")
    if kmode == "direct":
        a("v_and_b32 v7, 3, v3")
        a("v_lshlrev_b32 v7, 2, v7")
        a("v_lshrrev_b32 v240, 2, v3")
        a("v_add_u32 v7, v7, v240")
        a("v_lshlrev_b32 v7, 8, v7")
        a("v_lshl_add_u32 v7, v4, 4, v7")
        a("v_add_u32 v7, v7, v5")
    else:
        pass
    a("s_lshr_b32 s22, s2, 4")
    a("s_and_b32 s23, s2, 15")
    a("v_and_b32 v241, 3, v3")
    a("v_lshlrev_b32 v241, 8, v241")
    a("v_lshl_add_u32 v241, v4, 4, v241")
    a("s_lshl_b32 s36, s22, 10")
    a("v_add_u32 v241, s36, v241")
    a("s_lshl_b32 s37, s22, 8")
    a("v_lshlrev_b32 v242, 4, v4")
    a("v_add_u32 v242, s37, v242")
    a("v_lshlrev_b32 v243, 4, v3")
    a("v_bfe_u32 v240, v0, 4, 3")
    a("v_lshl_add_u32 v243, v240, 1, v243")
    a("v_add_u32 v243, s37, v243")
    a("s_mov_b32 s38, 4096")
    a("s_mov_b32 s39, 8192")
    a("s_mov_b32 s40, 12288")
    a("s_lshl_b32 s41, s2, 17")
    a("s_mov_b32 s26, 0x20000")
    a("s_mov_b32 s27, 0x00020000")
    a("s_mov_b32 s30, 0x20000")
    a("s_mov_b32 s31, 0x00020000")
    a("s_waitcnt lgkmcnt(0)")
    stamp(1)
    a("s_add_u32 s24, s6, s41")
    a("s_addc_u32 s25, s7, 0")
    a("s_add_u32 s28, s8, s41")
    a("s_addc_u32 s29, s9, 0")
    a("s_and_b32 s25, s25, 0xffff")
    a("s_and_b32 s29, s29, 0xffff")
    a("s_load_dword s42, s[14:15], 0")
    for j in range(4):
        a("global_load_dwordx4 %s, v241, s[4:5] offset:%d" % (vq(Q + 4 * j), j * 64))
    soff = ["0", "s38", "s39", "s40"]
    nload = 4
    if kmode == "direct":
        for t in range(4):
            for j in range(4):
                a("buffer_load_dwordx4 %s, v7, s[24:27], %s offen offset:%d %s" % (vq(K + (t * 4 + j) * 4), soff[t], j * 64, ldflags))
    else:
        raise NotImplementedError
    for u in range(2):
        for i in range(8):
            a("buffer_load_dwordx4 %s, v6, s[28:31], %s offen offset:%d %s" % (vq(V + (u * 8 + i) * 4), soff[2 * u + (i >> 2)], (i & 3) * 1024, vflags))
    for j in range(4):
        a("global_load_dwordx4 %s, v242, s[10:11] offset:%d" % (vq(KT + 4 * j), j * 64))
    a("global_load_ushort v244, v243, s[12:13]")
    total = 41
    for t in range(4):
        a("s_waitcnt vmcnt(%d)" % (total - 4 - 4 * (t + 1)))
        for j in range(4):
            srcc = "0" if j == 0 else vq(S + 4 * t)
            a("v_mfma_f32_16x16x32_bf16 %s, %s, %s, %s" % (vq(S + 4 * t), vq(K + (t * 4 + j) * 4), vq(Q + 4 * j), srcc))
    stamp(2)
    a("s_nop 7")
    a("v_max3_f32 v%d, v%d, v%d, v%d" % (T, S + 0, S + 1, S + 2))
    a("v_max3_f32 v%d, v%d, v%d, v%d" % (T + 1, S + 3, S + 4, S + 5))
    a("v_max3_f32 v%d, v%d, v%d, v%d" % (T + 2, S + 6, S + 7, S + 8))
    a("v_max3_f32 v%d, v%d, v%d, v%d" % (T + 3, S + 9, S + 10, S + 11))
    a("s_nop 3")
    a("v_max3_f32 v%d, v%d, v%d, v%d" % (T, T, S + 12, S + 13))
    a("v_max3_f32 v%d, v%d, v%d, v%d" % (T + 1, T + 1, S + 14, S + 15))
    a("v_max3_f32 v%d, v%d, v%d, v%d" % (T, T, T + 1, T + 2))
    a("v_max_f32 v%d, v%d, v%d" % (T, T, T + 3))
    def xlane(op, r, t):
        a("v_mov_b32 v%d, v%d" % (t, r))
        a("s_nop 1")
        a("v_permlane32_swap_b32 v%d, v%d" % (r, t))
        a("s_nop 1")
        a("%s v%d, v%d, v%d" % (op, r, r, t))
        a("v_mov_b32 v%d, v%d" % (t, r))
        a("s_nop 1")
        a("v_permlane16_swap_b32 v%d, v%d" % (r, t))
        a("s_nop 1")
        a("%s v%d, v%d, v%d" % (op, r, r, t))
    xlane("v_max_f32", T, T + 1)
    a("v_and_b32 v%d, 3, v3" % (T + 2))
    a("v_lshlrev_b32 v%d, 5, v%d" % (T + 2, T + 2))
    a("s_lshl_b32 s43, s3, 2")
    a("v_add_u32 v%d, s43, v%d" % (T + 3, T + 2))
    a("s_mov_b64 exec, 0xf")
    a("ds_write_b32 v%d, v%d offset:%d" % (T + 3, T, L_M))
    a("s_mov_b64 exec, -1")
    a("s_waitcnt lgkmcnt(0)")
    a("s_barrier")
    a("ds_read_b128 %s, v%d offset:%d" % (vq(T + 4), T + 2, L_M))
    a("ds_read_b128 %s, v%d offset:%d" % (vq(T + 8), T + 2, L_M + 16))
    a("s_mov_b32 s44, %s" % f32hex(C))
    a("s_waitcnt lgkmcnt(0)")
    a("v_max3_f32 v%d, v%d, v%d, v%d" % (T, T + 4, T + 5, T + 6))
    a("v_max3_f32 v%d, v%d, v%d, v%d" % (T + 1, T + 7, T + 8, T + 9))
    a("v_max3_f32 v%d, v%d, v%d, v%d" % (T, T, T + 10, T + 11))
    a("v_max_f32 v%d, v%d, v%d" % (T, T, T + 1))
    a("v_mul_f32 v%d, s44, v%d" % (T, T))
    for r in range(16):
        a("v_fma_f32 v%d, v%d, s44, -v%d" % (S + r, S + r, T))
    for r in range(16):
        a("v_exp_f32 v%d, v%d" % (S + r, S + r))
    a("s_nop 0")
    a("v_add_f32 v%d, v%d, v%d" % (T + 1, S + 0, S + 1))
    a("v_add_f32 v%d, v%d, v%d" % (T + 4, S + 2, S + 3))
    for r in range(4, 16, 2):
        a("v_add_f32 v%d, v%d, v%d" % (T + 1, T + 1, S + r))
        a("v_add_f32 v%d, v%d, v%d" % (T + 4, T + 4, S + r + 1))
    a("v_add_f32 v%d, v%d, v%d" % (T + 1, T + 1, T + 4))
    for u in range(2):
        for hq in range(2):
            t = 2 * u + hq
            a("v_cvt_pk_bf16_f32 v%d, v%d, v%d" % (P + 4 * u + 2 * hq, S + 4 * t, S + 4 * t + 1))
            a("v_cvt_pk_bf16_f32 v%d, v%d, v%d" % (P + 4 * u + 2 * hq + 1, S + 4 * t + 2, S + 4 * t + 3))
    xlane("v_add_f32", T + 1, T + 4)
    a("s_mov_b32 s45, 0x05040100")
    a("s_mov_b32 s46, 0x07060302")
    for u in range(2):
        a("s_waitcnt vmcnt(%d)" % (total - 4 - 16 - 8 * (u + 1)))
        for c in range(4):
            tb = VT + (c & 1) * 8 + u * 16
            for r in range(4):
                la = V + (u * 8 + 2 * r) * 4 + c
                lb = V + (u * 8 + 2 * r + 1) * 4 + c
                a("v_perm_b32 v%d, v%d, v%d, s45" % (tb + r, lb, la))
                a("v_perm_b32 v%d, v%d, v%d, s46" % (tb + 4 + r, lb, la))
            a("s_nop 1")
            for par in range(2):
                j = 2 * c + par
                srcc = "0" if u == 0 else vq(O + 4 * j)
                a("v_mfma_f32_16x16x32_bf16 %s, %s, %s, %s" % (vq(O + 4 * j), vq(P + 4 * u), vq(tb + 4 * par), srcc))
    a("s_waitcnt vmcnt(0)")
    stamp(3)
    for j in range(4):
        srcc = "0" if j == 0 else vq(ST)
        a("v_mfma_f32_16x16x32_bf16 %s, %s, %s, %s" % (vq(ST), vq(KT + 4 * j), vq(Q + 4 * j), srcc))
    a("v_lshlrev_b32 v%d, 2, v3" % (T + 2))
    a("s_lshl_b32 s43, s3, 4")
    a("v_add_u32 v%d, s43, v%d" % (T + 3, T + 2))
    a("s_mov_b64 exec, 0xf")
    a("ds_write_b32 v%d, v%d offset:%d" % (T + 3, T + 1, L_L))
    a("s_mov_b64 exec, -1")
    a("s_waitcnt lgkmcnt(0)")
    a("s_lshr_b32 s47, s22, 3")
    a("s_lshl_b32 s47, s47, 4")
    a("s_lshr_b32 s47, s42, s47")
    a("s_lshl_b32 s47, s47, 16")
    a("v_mov_b32 v%d, s47" % (T + 4))
    a("v_sub_f32 v%d, 1.0, v%d" % (T + 4, T + 4))
    a("s_mov_b32 s48, %s" % f32hex(-1e9 * LOG2E))
    a("v_mul_f32 v%d, s48, v%d" % (T + 4, T + 4))
    a("s_nop 4")
    a("v_fma_f32 v%d, v%d, s44, v%d" % (T + 4, ST, T + 4))
    a("s_cmp_eq_u32 s3, 0")
    a("s_cbranch_scc0 L_noml")
    a("s_mov_b64 exec, 0xf")
    a("ds_write_b32 v%d, v%d offset:%d" % (T + 2, T, L_M2))
    a("ds_write_b32 v%d, v%d offset:%d" % (T + 2, T + 4, L_PT))
    a("s_mov_b64 exec, -1")
    a.label("L_noml")
    a("s_lshl_b32 s43, s3, 11")
    a("v_lshlrev_b32 v%d, 4, v3" % (T + 5))
    a("v_add_u32 v%d, s43, v%d" % (T + 5, T + 5))
    a("s_mov_b64 exec, 0xffff")
    a("s_nop 4")
    for j in range(8):
        a("ds_write_b128 v%d, %s offset:%d" % (T + 5, vq(O + 4 * j), L_O + j * 256))
    a("s_mov_b64 exec, -1")
    a("s_waitcnt lgkmcnt(0)")
    a("s_barrier")
    a("s_cmp_ge_u32 s3, 2")
    a("s_cbranch_scc1 L_join")
    a("v_lshlrev_b32 v%d, 4, v0" % T)
    for w in range(8):
        a("ds_read_b128 %s, v%d offset:%d" % (vq(K + 4 * w), T, L_O + w * 2048))
    a("v_mov_b32 v%d, 0" % (T + 1))
    for w in range(8):
        a("ds_read_b128 %s, v%d offset:%d" % (vq(K + 32 + 4 * w), T + 1, L_L + w * 16))
    a("ds_read_b128 %s, v%d offset:%d" % (vq(K + 64), T + 1, L_M2))
    a("s_waitcnt lgkmcnt(9)")
    for w in range(1, 8):
        for h in range(4):
            a("v_add_f32 v%d, v%d, v%d" % (K + h, K + h, K + 4 * w + h))
    a("s_waitcnt lgkmcnt(0)")
    for w in range(1, 8):
        for h in range(4):
            a("v_add_f32 v%d, v%d, v%d" % (K + 32 + h, K + 32 + h, K + 32 + 4 * w + h))
    a("s_lshl_b32 s43, s2, 11")
    a("v_add_u32 v%d, s43, v%d" % (T + 2, T))
    a("global_store_dwordx4 v%d, %s, s[20:21] sc1" % (T + 2, vq(K)))
    a("s_lshl_b32 s43, s2, 5")
    a("s_add_u32 s43, s43, 0x100000")
    a("v_mov_b32 v%d, s43" % (T + 3))
    a("s_cmp_eq_u32 s3, 0")
    a("s_cbranch_scc0 L_nostml")
    a("s_mov_b64 exec, 1")
    a("global_store_dwordx4 v%d, %s, s[20:21] sc1" % (T + 3, vq(K + 64)))
    a("global_store_dwordx4 v%d, %s, s[20:21] offset:16 sc1" % (T + 3, vq(K + 32)))
    a("s_mov_b64 exec, -1")
    a.label("L_nostml")
    a("s_waitcnt vmcnt(0)")
    a.label("L_join")
    a("s_barrier")
    stamp(4)
    a("s_cmp_eq_u32 s3, 0")
    a("s_cbranch_scc0 L_wait2")
    a("s_lshl_b32 s43, s22, 2")
    a("v_mov_b32 v%d, s43" % T)
    a("v_mov_b32 v%d, 1" % (T + 1))
    a("s_mov_b64 exec, 1")
    a("global_atomic_add v%d, v%d, v%d, s[18:19] sc0" % (T + 2, T, T + 1))
    a("s_waitcnt vmcnt(0)")
    a("v_mov_b32 v%d, 0" % (T + 3))
    a("ds_write_b32 v%d, v%d offset:%d" % (T + 3, T + 2, L_FLAG))
    a("s_mov_b64 exec, -1")
    a("s_waitcnt lgkmcnt(0)")
    a.label("L_wait2")
    a("s_barrier")
    a("v_mov_b32 v%d, 0" % (T + 3))
    a("ds_read_b32 v%d, v%d offset:%d" % (T + 2, T + 3, L_FLAG))
    a("ds_read_b128 %s, v%d offset:%d" % (vq(K + 80), T + 3, L_PT))
    a("s_waitcnt lgkmcnt(0)")
    a("v_readfirstlane_b32 s43, v%d" % (T + 2))
    stamp(5)
    a("s_mov_b32 s50, s43")
    stamp_flush(6)
    a("s_cmp_eq_u32 s50, 15")
    a("s_cbranch_scc0 L_end")
    a("s_lshl_b32 s43, s22, 15")
    a("s_lshl_b32 s49, s3, 8")
    a("s_add_u32 s43, s43, s49")
    a("v_lshlrev_b32 v%d, 13, v4" % T)
    a("v_lshl_add_u32 v%d, v3, 4, v%d" % (T, T))
    a("v_add_u32 v%d, s43, v%d" % (T, T))
    a("s_lshl_b32 s43, s22, 9")
    a("s_add_u32 s43, s43, 0x100000")
    a("v_lshlrev_b32 v%d, 7, v4" % (T + 1))
    a("v_add_u32 v%d, s43, v%d" % (T + 1, T + 1))
    for i in range(4):
        a("global_load_dwordx4 %s, v%d, s[20:21] offset:%d sc1" % (vq(K + 8 * i), T + 1, i * 32))
        a("global_load_dwordx4 %s, v%d, s[20:21] offset:%d sc1" % (vq(K + 8 * i + 4), T + 1, i * 32 + 16))
    a("v_add_u32 v%d, 0x1000, v%d" % (T + 4, T))
    a("global_load_dwordx4 %s, v%d, s[20:21] sc1" % (vq(K + 32), T))
    a("global_load_dwordx4 %s, v%d, s[20:21] offset:2048 sc1" % (vq(K + 36), T))
    a("global_load_dwordx4 %s, v%d, s[20:21] sc1" % (vq(K + 40), T + 4))
    a("global_load_dwordx4 %s, v%d, s[20:21] offset:2048 sc1" % (vq(K + 44), T + 4))
    a("s_lshl_b32 s43, s22, 8")
    a("s_lshl_b32 s49, s3, 1")
    a("s_add_u32 s43, s43, s49")
    a("v_lshlrev_b32 v%d, 4, v3" % (T + 5))
    a("v_add_u32 v%d, s43, v%d" % (T + 5, T + 5))
    a("global_load_ushort v%d, v%d, s[12:13]" % (T + 6, T + 5))
    stamp(6)
    a("s_waitcnt vmcnt(5)")
    stamp(7)
    MM = K + 48
    FF = K + 52
    FT = K + 68
    LL = K + 72
    OO = K + 76
    for h in range(4):
        a("v_max3_f32 v%d, v%d, v%d, v%d" % (MM + h, K + h, K + 8 + h, K + 16 + h))
        a("v_max3_f32 v%d, v%d, v%d, v%d" % (MM + h, MM + h, K + 24 + h, K + 80 + h))
    for h in range(4):
        xlane("v_max_f32", MM + h, T + 7)
    for i in range(4):
        for h in range(4):
            a("v_sub_f32 v%d, v%d, v%d" % (FF + 4 * i + h, K + 8 * i + h, MM + h))
    for h in range(4):
        a("v_sub_f32 v%d, v%d, v%d" % (FT + h, K + 80 + h, MM + h))
    for i in range(4):
        for h in range(4):
            a("v_exp_f32 v%d, v%d" % (FF + 4 * i + h, FF + 4 * i + h))
    for h in range(4):
        a("v_exp_f32 v%d, v%d" % (FT + h, FT + h))
    a("s_nop 0")
    for h in range(4):
        a("v_mul_f32 v%d, v%d, v%d" % (LL + h, FF + h, K + 4 + h))
    for i in range(1, 4):
        for h in range(4):
            a("v_fmac_f32 v%d, v%d, v%d" % (LL + h, FF + 4 * i + h, K + 8 * i + 4 + h))
    a("s_waitcnt vmcnt(0)")
    stamp(8)
    for h in range(4):
        a("v_mul_f32 v%d, v%d, v%d" % (OO + h, FF + h, K + 32 + h))
    for i in range(1, 4):
        for h in range(4):
            a("v_fmac_f32 v%d, v%d, v%d" % (OO + h, FF + 4 * i + h, K + 32 + 4 * i + h))
    for h in range(4):
        xlane("v_add_f32", LL + h, T + 7)
        xlane("v_add_f32", OO + h, T + 7)
    a("v_lshlrev_b32 v%d, 16, v%d" % (T + 6, T + 6))
    for h in range(4):
        a("v_add_f32 v%d, v%d, v%d" % (LL + h, LL + h, FT + h))
        a("v_fmac_f32 v%d, v%d, v%d" % (OO + h, FT + h, T + 6))
    for h in range(4):
        a("v_rcp_f32 v%d, v%d" % (LL + h, LL + h))
    a("s_nop 0")
    for h in range(4):
        a("v_mul_f32 v%d, v%d, v%d" % (OO + h, OO + h, LL + h))
    a("v_cvt_pk_bf16_f32 v%d, v%d, v%d" % (OO, OO, OO + 1))
    a("v_cvt_pk_bf16_f32 v%d, v%d, v%d" % (OO + 2, OO + 2, OO + 3))
    a("s_lshl_b32 s43, s22, 10")
    a("s_lshl_b32 s49, s3, 1")
    a("s_add_u32 s43, s43, s49")
    a("v_lshlrev_b32 v%d, 4, v3" % (T + 5))
    a("v_add_u32 v%d, s43, v%d" % (T + 5, T + 5))
    stamp(9)
    a("s_mov_b64 exec, 0xffff")
    a("global_store_short v%d, v%d, s[16:17]" % (T + 5, OO))
    a("global_store_short_d16_hi v%d, v%d, s[16:17] offset:256" % (T + 5, OO))
    a("global_store_short v%d, v%d, s[16:17] offset:512" % (T + 5, OO + 2))
    a("global_store_short_d16_hi v%d, v%d, s[16:17] offset:768" % (T + 5, OO + 2))
    if stamps:
        a("s_waitcnt vmcnt(0)")
    stamp(10)
    a("s_mov_b64 exec, -1")
    stamp_flush(11)
    a.label("L_end")
    if spin:
        a("s_waitcnt vmcnt(0) lgkmcnt(0)")
        a.label("L_spin")
        a("s_memrealtime s[92:93]")
        a("s_waitcnt lgkmcnt(0)")
        a("s_sub_u32 s94, s92, s90")
        if spinref is not None:
            a("s_sub_u32 s95, s96, s90")
            a("s_sub_u32 s94, s94, s95")
        a("s_cmp_lt_u32 s94, %d" % spin)
        a("s_cbranch_scc1 L_spin")
    a("s_endpgm")

    body = a.text()
    out = HEADER + "; @launch grid=(256,1,1) block=(512,1,1) lds=%d\n" % LDS
    out += '.amdgcn_target "amdgcn-amd-amdhsa--gfx950"\n.text\n.globl %s_kernel\n.p2align 8\n.type %s_kernel,@function\n%s_kernel:\n' % (NAME, NAME, NAME)
    out += body
    out += """.section .rodata,"a"
.p2align 6
.amdhsa_kernel %s_kernel
  .amdhsa_next_free_vgpr 256
  .amdhsa_next_free_sgpr 100
  .amdhsa_accum_offset 256
  .amdhsa_group_segment_fixed_size 0
  .amdhsa_kernarg_size 72
  .amdhsa_user_sgpr_count 2
  .amdhsa_user_sgpr_kernarg_segment_ptr 1
  .amdhsa_system_sgpr_workgroup_id_x 1
  .amdhsa_float_denorm_mode_32 3
.end_amdhsa_kernel
""" % NAME
    return out

if __name__ == "__main__":
    import argparse
    p = argparse.ArgumentParser()
    p.add_argument("-o", default="cdna_kernels/%s.s" % NAME)
    p.add_argument("--kmode", default="direct")
    p.add_argument("--ld", default="")
    p.add_argument("--stamps", action="store_true")
    p.add_argument("--spin", type=int, default=0)
    p.add_argument("--spinref", type=int, default=None)
    args = p.parse_args()
    open(args.o, "w").write(gen(args.kmode, args.ld, stamps=args.stamps, spin=args.spin, spinref=args.spinref))
```

```python
import sys, math, struct
NAME = "standalone__tree_speculative_verify_tree_attention_over_candidate_token_tree__decode"
HEADER = """; Kernarg layout for this problem (72 bytes, ptrs only, base s[0:1]):
"""
def f32hex(x):
    return "0x%08x" % struct.unpack("<I", struct.pack("<f", x))[0]
class Asm:
    def __init__(self): self.lines = []
    def __call__(self, s): self.lines.append("    " + s)
    def label(self, s): self.lines.append(s + ":")
    def c(self, s): self.lines.append("    ; " + s)
    def text(self): return "\n".join(self.lines) + "\n"
def vq(base, n=4): return "v[%d:%d]" % (base, base + n - 1)

def gen(ld="nt", hs="sc1", stamps=False, spin=0, spinref=None, issue_barrier=True, kmode="direct", nononce=False, qlate=False, vsplit=8, cons=15, sleep=1):
    a = Asm()
    LOG2E = 1.4426950408889634
    SCALE = 128 ** -0.5
    C = SCALE * LOG2E
    Q, KT, K, V, S, ST, P, O, T = 12, 28, 44, 108, 172, 188, 192, 200, 232
    VT = K
    vKoff, vVoff, vQoff, vKToff, vVT = 5, 6, 7, 8, 9
    vOoff, vMLoff = 10, 11
    vTagO, vTagM = 248, 249
    vHead = 250
    vNonce = 251
    KD, KR = 100, 104
    L_M, L_L, L_NONCE, L_TICKET, L_MQ, L_PT, L_O = 0, 128, 256, 260, 272, 288, 512
    LDS = L_O + 8 * 2048
    OSTR = 2048
    if kmode == "lds":
        L_K = 512
        OSTR = 16384
        LDS = L_K + 8 * 16384
    WS_W = 0x90000
    WS_ML = 0x80000
    def stamp(i):
        if spinref == i: a("s_memrealtime s[96:97]")
        if stamps: a("s_memrealtime s[%d:%d]" % (64 + 2 * i, 65 + 2 * i))
    nfl = [0]
    def stamp_flush(n):
        if stamps:
            nfl[0] += 1
            a("s_waitcnt lgkmcnt(0)")
            a("s_cmp_eq_u32 s3, 0")
            a("s_cbranch_scc0 L_nostamp%d" % nfl[0])
            a("s_lshl_b32 s58, s2, 7")
            a("s_add_u32 s58, s58, 0x1000000")
            a("v_mov_b32 v252, s58")
            a("s_mov_b64 exec, 1")
            for i in range(n):
                a("v_mov_b32 v254, s%d" % (64 + 2 * i))
                a("v_mov_b32 v255, s%d" % (65 + 2 * i))
                a("global_store_dwordx2 v252, v[254:255], s[20:21] offset:%d" % (8 * i))
                a("s_nop 1")
            a("s_mov_b64 exec, -1")
            a.label("L_nostamp%d" % nfl[0])
    stamp(0)
    if spin: a("s_memrealtime s[90:91]")
    a("s_load_dwordx16 s[4:19], s[0:1], 0")
    a("s_load_dwordx2 s[20:21], s[0:1], 64")
    a("s_cmp_ge_u32 s2, 256")
    a("s_cbranch_scc1 L_end")
    a("v_and_b32 v1, 63, v0")
    a("v_lshrrev_b32 v2, 6, v0")
    a("v_and_b32 v3, 15, v0")
    a("v_bfe_u32 v4, v0, 4, 2")
    a("v_readfirstlane_b32 s3, v2")
    a("v_lshlrev_b32 v%d, 10, v2" % T)
    a("v_lshl_add_u32 v%d, v1, 4, v%d" % (vVoff, T))
    a("v_and_b32 v%d, 3, v3" % (T + 1))
    if kmode == "direct":
        a("v_lshl_add_u32 v%d, v%d, 13, v%d" % (vKoff, T + 1, T))
        a("v_lshrrev_b32 v%d, 2, v3" % (T + 2))
        a("v_lshl_add_u32 v%d, v%d, 8, v%d" % (vKoff, T + 2, vKoff))
        a("v_lshl_add_u32 v%d, v4, 4, v%d" % (vKoff, vKoff))
    else:
        a("v_lshlrev_b32 v%d, 2, v4" % (T + 2))
        a("v_xor_b32 v%d, v3, v%d" % (T + 2, T + 2))
        a("v_lshl_add_u32 v%d, v4, 8, v%d" % (T + 3, T))
        for r in range(4):
            a("v_xor_b32 v%d, %d, v%d" % (KD + r, r, T + 2))
            a("v_lshl_add_u32 v%d, v%d, 4, v%d" % (KD + r, KD + r, T + 3))
        a("v_lshlrev_b32 v%d, 14, v2" % (T + 3))
        a("v_lshl_add_u32 v%d, v%d, 10, v%d" % (T + 3, T + 1, T + 3))
        a("v_lshrrev_b32 v%d, 2, v3" % (T + 2))
        a("v_lshl_add_u32 v%d, v%d, 8, v%d" % (T + 3, T + 2, T + 3))
        a("v_xor_b32 v%d, v4, v3" % (T + 2))
        for j in range(4):
            a("v_xor_b32 v%d, %d, v%d" % (KR + j, 4 * j, T + 2))
            a("v_lshl_add_u32 v%d, v%d, 4, v%d" % (KR + j, KR + j, T + 3))
    a("s_lshr_b32 s22, s2, 4")
    a("s_and_b32 s23, s2, 15")
    a("v_lshlrev_b32 v%d, 8, v%d" % (vQoff, T + 1))
    a("v_lshl_add_u32 v%d, v4, 4, v%d" % (vQoff, vQoff))
    a("s_lshl_b32 s52, s22, 10")
    a("v_add_u32 v%d, s52, v%d" % (vQoff, vQoff))
    a("s_lshl_b32 s53, s22, 8")
    a("v_lshlrev_b32 v%d, 4, v4" % vKToff)
    a("v_add_u32 v%d, s53, v%d" % (vKToff, vKToff))
    a("v_lshlrev_b32 v%d, 4, v3" % vVT)
    a("v_lshl_add_u32 v%d, v2, 1, v%d" % (vVT, vVT))
    a("v_add_u32 v%d, s53, v%d" % (vVT, vVT))
    a("s_lshl_b32 s54, s2, 17")
    a("s_mov_b32 s26, 0x20000")
    a("s_mov_b32 s27, 0x00020000")
    a("s_mov_b32 s30, 0x20000")
    a("s_mov_b32 s31, 0x00020000")
    a("s_mov_b32 s34, 0x100000")
    a("s_mov_b32 s35, 0x00020000")
    a("s_mov_b32 s55, 0x8000")
    a("s_mov_b32 s56, 0x10000")
    a("s_mov_b32 s57, 0x18000")
    a("s_waitcnt lgkmcnt(0)")
    stamp(1)
    a("s_add_u32 s24, s6, s54")
    a("s_addc_u32 s25, s7, 0")
    a("s_add_u32 s28, s8, s54")
    a("s_addc_u32 s29, s9, 0")
    a("s_and_b32 s25, s25, 0xffff")
    a("s_and_b32 s29, s29, 0xffff")
    a("s_mov_b32 s32, s20")
    a("s_and_b32 s33, s21, 0xffff")
    a("s_load_dword s62, s[14:15], 0")
    a("s_lshl_b32 s58, s22, 7")
    a("s_add_u32 s60, s58, 0x%x" % WS_W)
    a("buffer_load_dword v%d, off, s[32:35], s60 %s" % (vNonce, hs))
    def qloads():
        for j in range(4):
            a("global_load_dwordx4 %s, v%d, s[4:5] offset:%d" % (vq(Q + 4 * j), vQoff, j * 64))
        for j in range(4):
            a("global_load_dwordx4 %s, v%d, s[10:11] offset:%d" % (vq(KT + 4 * j), vKToff, j * 64))
        a("global_load_ushort v%d, v%d, s[12:13]" % (vVT, vVT))
    if not qlate: qloads()
    soffK = ["0", "s55", "s56", "s57"]
    if kmode == "direct":
        for t in range(4):
            for j in range(4):
                a("buffer_load_dwordx4 %s, v%d, s[24:27], %s offen offset:%d %s" % (vq(K + (t * 4 + j) * 4), vKoff, soffK[t], j * 64, ld))
    else:
        a("s_lshl_b32 s58, s3, 14")
        a("s_add_u32 m0, s58, %d" % L_K)
        a("s_mov_b32 s58, 0")
        for i in range(16):
            a("buffer_load_dwordx4 v%d, s[24:27], s58 offen %s lds" % (KD + (i & 3), ld))
            if i < 15:
                a("s_add_u32 m0, m0, 1024")
                a("s_add_u32 s58, s58, 0x2000")
    if qlate: qloads()
    if issue_barrier:
        a("s_barrier")
    def vloads(i0, i1):
        a("s_mov_b32 s58, 0x%x" % (i0 * 0x2000))
        for i in range(i0, i1):
            a("buffer_load_dwordx4 %s, v%d, s[28:31], s58 offen %s" % (vq(V + i * 4), vVoff, ld))
            if i < i1 - 1: a("s_add_u32 s58, s58, 0x2000")
    vloads(0, vsplit)
    a("s_lshl_b32 s59, s22, 15")
    for t in range(15):
        a("s_add_u32 s%d, s23, %d" % (36 + t, t + 1))
        a("s_and_b32 s%d, s%d, 15" % (36 + t, 36 + t))
        a("s_lshl_b32 s%d, s%d, 11" % (36 + t, 36 + t))
        a("s_add_u32 s%d, s%d, s59" % (36 + t, 36 + t))
    a("v_lshlrev_b32 v%d, 8, v2" % vOoff)
    a("v_lshl_add_u32 v%d, v1, 2, v%d" % (vOoff, vOoff))
    a("v_and_b32 v%d, 1, v4" % (T + 8))
    a("v_lshlrev_b32 v%d, 1, v%d" % (T + 8, T + 8))
    a("v_lshrrev_b32 v%d, 1, v4" % (T + 9))
    a("v_or_b32 v%d, v%d, v%d" % (vHead, T + 8, T + 9))
    a("v_add_u32 v%d, s23, v3" % (T + 8))
    a("v_add_u32 v%d, 1, v%d" % (T + 8, T + 8))
    a("v_and_b32 v%d, 15, v%d" % (T + 8, T + 8))
    a("v_lshlrev_b32 v%d, 5, v%d" % (T + 8, T + 8))
    a("v_lshl_add_u32 v%d, v%d, 3, v%d" % (T + 8, vHead, T + 8))
    a("s_lshl_b32 s59, s22, 9")
    a("s_add_u32 s59, s59, 0x%x" % WS_ML)
    a("v_add_u32 v%d, s59, v%d" % (vMLoff, T + 8))
    for t in range(4):
        a("s_waitcnt vmcnt(%d)" % (vsplit if qlate else 12 + vsplit - 4 * t))
        if t == 0:
            for j in range(4):
                a("v_mfma_f32_16x16x32_bf16 %s, %s, %s, %s" % (vq(ST), vq(KT + 4 * j), vq(Q + 4 * j), "0" if j == 0 else vq(ST)))
        if kmode == "direct":
            for j in range(4):
                a("v_mfma_f32_16x16x32_bf16 %s, %s, %s, %s" % (vq(S + 4 * t), vq(K + (t * 4 + j) * 4), vq(Q + 4 * j), "0" if j == 0 else vq(S + 4 * t)))
        else:
            kb = K + (t & 1) * 16
            for j in range(4):
                a("ds_read_b128 %s, v%d offset:%d" % (vq(kb + 4 * j), KR + j, L_K + t * 4096))
            for j in range(4):
                a("s_waitcnt lgkmcnt(%d)" % (3 - j))
                a("v_mfma_f32_16x16x32_bf16 %s, %s, %s, %s" % (vq(S + 4 * t), vq(kb + 4 * j), vq(Q + 4 * j), "0" if j == 0 else vq(S + 4 * t)))
    stamp(2)
    a("s_waitcnt lgkmcnt(0)")
    a("s_lshr_b32 s58, s22, 3")
    a("s_lshl_b32 s58, s58, 4")
    a("s_lshr_b32 s58, s62, s58")
    a("s_lshl_b32 s58, s58, 16")
    a("v_mov_b32 v%d, s58" % (T + 8))
    a("v_sub_f32 v%d, 1.0, v%d" % (T + 8, T + 8))
    a("s_mov_b32 s58, %s" % f32hex(-1e9 / SCALE))
    a("s_mov_b32 s59, %s" % f32hex(-3.0e38))
    a("v_fma_f32 v%d, v%d, s58, v%d" % (T + 8, T + 8, ST))
    a("s_cmp_eq_u32 s23, 0")
    a("s_cbranch_scc1 L_tree0")
    a("v_mov_b32 v%d, s59" % (T + 8))
    a.label("L_tree0")
    a("v_max3_f32 v%d, v%d, v%d, v%d" % (T, S + 0, S + 1, S + 2))
    a("v_max3_f32 v%d, v%d, v%d, v%d" % (T + 1, S + 3, S + 4, S + 5))
    a("v_max3_f32 v%d, v%d, v%d, v%d" % (T + 2, S + 6, S + 7, S + 8))
    a("v_max3_f32 v%d, v%d, v%d, v%d" % (T + 3, S + 9, S + 10, S + 11))
    a("v_max3_f32 v%d, v%d, v%d, v%d" % (T, T, S + 12, S + 13))
    a("v_max3_f32 v%d, v%d, v%d, v%d" % (T + 1, T + 1, S + 14, S + 15))
    a("v_max3_f32 v%d, v%d, v%d, v%d" % (T, T, T + 1, T + 2))
    a("v_max_f32 v%d, v%d, v%d" % (T, T, T + 3))
    def xlane(op, r, t):
        a("v_mov_b32 v%d, v%d" % (t, r))
        a("s_nop 1")
        a("v_permlane32_swap_b32 v%d, v%d" % (r, t))
        a("%s v%d, v%d, v%d" % (op, r, r, t))
        a("v_mov_b32 v%d, v%d" % (t, r))
        a("s_nop 1")
        a("v_permlane16_swap_b32 v%d, v%d" % (r, t))
        a("%s v%d, v%d, v%d" % (op, r, r, t))
    xlane("v_max_f32", T, T + 1)
    a("v_and_b32 v%d, 3, v3" % (T + 2))
    a("v_lshlrev_b32 v%d, 5, v%d" % (T + 2, T + 2))
    a("s_lshl_b32 s58, s3, 2")
    a("v_add_u32 v%d, s58, v%d" % (T + 3, T + 2))
    a("s_mov_b64 exec, 0xf")
    a("ds_write_b32 v%d, v%d offset:%d" % (T + 3, T, L_M))
    a("s_mov_b64 exec, -1")
    a("s_waitcnt lgkmcnt(0)")
    a("s_barrier")
    stamp(3)
    if vsplit < 16: vloads(vsplit, 16)
    a("ds_read_b128 %s, v%d offset:%d" % (vq(T + 4), T + 2, L_M))
    a("ds_read_b128 %s, v%d offset:%d" % (vq(K), T + 2, L_M + 16))
    a("v_add_u32 v%d, 1, v%d" % (vNonce, vNonce))
    a("s_mov_b32 s63, %s" % f32hex(C))
    a("s_waitcnt lgkmcnt(0)")
    a("v_max3_f32 v%d, v%d, v%d, v%d" % (T, T + 4, T + 5, T + 6))
    a("v_max3_f32 v%d, v%d, v%d, v%d" % (T + 1, T + 7, K, K + 1))
    a("v_max3_f32 v%d, v%d, v%d, v%d" % (T, T, K + 2, K + 3))
    a("v_max3_f32 v%d, v%d, v%d, v%d" % (T, T, T + 1, T + 8))
    a("v_and_b32 v%d, 3, v3" % (T + 10))
    a("v_lshlrev_b32 v%d, 3, v%d" % (T + 10, T + 10))
    a("v_lshrrev_b32 v%d, v%d, v%d" % (vTagO, T + 10, vNonce))
    a("v_and_b32 v%d, 0xff, v%d" % (vTagO, vTagO))
    a("v_lshlrev_b32 v%d, 3, v%d" % (T + 10, vHead))
    a("v_lshrrev_b32 v%d, v%d, v%d" % (vTagM, T + 10, vNonce))
    a("v_and_b32 v%d, 0xff, v%d" % (vTagM, vTagM))
    for r in range(16):
        a("v_sub_f32 v%d, v%d, v%d" % (S + r, S + r, T))
    a("v_sub_f32 v%d, v%d, v%d" % (T + 8, T + 8, T))
    for r in range(16):
        a("v_mul_f32 v%d, s63, v%d" % (S + r, S + r))
    a("v_mul_f32 v%d, s63, v%d" % (T + 8, T + 8))
    for r in range(16):
        a("v_exp_f32 v%d, v%d" % (S + r, S + r))
    a("v_exp_f32 v%d, v%d" % (T + 8, T + 8))
    a("v_mul_f32 v%d, s63, v%d" % (T, T))
    a("v_add_f32 v%d, v%d, v%d" % (T + 1, S + 0, S + 1))
    a("v_add_f32 v%d, v%d, v%d" % (T + 4, S + 2, S + 3))
    for r in range(4, 16, 2):
        a("v_add_f32 v%d, v%d, v%d" % (T + 1, T + 1, S + r))
        a("v_add_f32 v%d, v%d, v%d" % (T + 4, T + 4, S + r + 1))
    a("v_add_f32 v%d, v%d, v%d" % (T + 1, T + 1, T + 4))
    for u in range(2):
        for hq in range(2):
            t = 2 * u + hq
            a("v_cvt_pk_bf16_f32 v%d, v%d, v%d" % (P + 4 * u + 2 * hq, S + 4 * t, S + 4 * t + 1))
            a("v_cvt_pk_bf16_f32 v%d, v%d, v%d" % (P + 4 * u + 2 * hq + 1, S + 4 * t + 2, S + 4 * t + 3))
    xlane("v_add_f32", T + 1, T + 4)
    a("v_lshlrev_b32 v%d, 2, v3" % (T + 2))
    a("s_mov_b64 exec, 0xf")
    a("ds_write_b32 v%d, v%d offset:%d" % (T + 3, T + 1, L_L))
    a("s_cmp_eq_u32 s3, 0")
    a("s_cbranch_scc0 L_nomq")
    a("ds_write_b32 v%d, v%d offset:%d" % (T + 2, T, L_MQ))
    a("ds_write_b32 v%d, v%d offset:%d" % (T + 2, T + 8, L_PT))
    a.label("L_nomq")
    a("s_mov_b64 exec, -1")
    a("s_mov_b32 s58, 0x05040100")
    a("s_mov_b32 s59, 0x07060302")
    a("s_mul_i32 s61, s3, %d" % OSTR)
    a("v_lshlrev_b32 v%d, 4, v3" % (T + 5))
    a("v_add_u32 v%d, s61, v%d" % (T + 5, T + 5))
    a("v_lshlrev_b32 v%d, %d, v4" % (T + 6, (2 * OSTR).bit_length() - 1))
    a("v_lshl_add_u32 v%d, v3, 4, v%d" % (T + 6, T + 6))
    a("s_lshl_b32 s61, s3, 8")
    a("v_add_u32 v%d, s61, v%d" % (T + 6, T + 6))
    a("v_lshlrev_b32 v%d, 5, v%d" % (T + 7, vHead))
    a("v_lshlrev_b32 v%d, 2, v%d" % (T + 9, vHead))
    for u in range(2):
        a("s_waitcnt vmcnt(%d)" % (8 * (1 - u)))
        if u == 1: stamp(4)
        for c in range(4):
            tb = VT + 8 + (c & 1) * 8 + u * 16
            for r in range(4):
                la = V + (u * 8 + 2 * r) * 4 + c
                lb = V + (u * 8 + 2 * r + 1) * 4 + c
                a("v_perm_b32 v%d, v%d, v%d, s58" % (tb + r, lb, la))
                a("v_perm_b32 v%d, v%d, v%d, s59" % (tb + 4 + r, lb, la))
            a("s_nop 1")
            for par in range(2):
                j = 2 * c + par
                a("v_mfma_f32_16x16x32_bf16 %s, %s, %s, %s" % (vq(O + 4 * j), vq(P + 4 * u), vq(tb + 4 * par), "0" if u == 0 else vq(O + 4 * j)))
    a("s_mov_b64 exec, 0xffff")
    for j in range(8):
        if j == 7: a("s_nop 4")
        a("ds_write_b128 v%d, %s offset:%d" % (T + 5, vq(O + 4 * j), L_O + j * 256))
    a("s_mov_b64 exec, -1")
    a("s_waitcnt lgkmcnt(0)")
    a("s_barrier")
    stamp(5)
    A = K
    a("ds_read_b128 %s, v%d offset:%d" % (vq(A), T + 6, L_O))
    a("ds_read_b128 %s, v%d offset:%d" % (vq(A + 4), T + 6, L_O + OSTR))
    a("ds_read_b128 %s, v%d offset:%d" % (vq(A + 8), T + 7, L_L))
    a("ds_read_b128 %s, v%d offset:%d" % (vq(A + 12), T + 7, L_L + 16))
    a("ds_read_b32 v%d, v%d offset:%d" % (A + 16, T + 9, L_MQ))
    a("ds_read_b32 v%d, v%d offset:%d" % (A + 17, T + 9, L_PT))
    PO = K + 20
    PM = K + 36
    a("s_cmp_eq_u32 s23, %d" % cons)
    a("s_cbranch_scc0 L_nopoll0")
    def issue_polls():
        a("buffer_load_dwordx2 %s, v%d, s[32:35], 0 offen %s" % (vq(PM, 2), vMLoff, hs))
        for t in range(15):
            a("buffer_load_dword v%d, v%d, s[32:35], s%d offen %s" % (PO + t, vOoff, 36 + t, hs))
    issue_polls()
    a.label("L_nopoll0")
    a("s_waitcnt lgkmcnt(4)")
    for h in range(4):
        a("v_add_f32 v%d, v%d, v%d" % (A + h, A + h, A + 4 + h))
    a("s_waitcnt lgkmcnt(0)")
    a("v_add_f32 v%d, v%d, v%d" % (A + 8, A + 8, A + 9))
    a("v_add_f32 v%d, v%d, v%d" % (A + 10, A + 10, A + 11))
    a("v_permlane32_swap_b32 v%d, v%d" % (A, A + 1))
    a("v_add_f32 v%d, v%d, v%d" % (A + 12, A + 12, A + 13))
    a("v_permlane32_swap_b32 v%d, v%d" % (A + 2, A + 3))
    a("v_add_f32 v%d, v%d, v%d" % (A + 14, A + 14, A + 15))
    a("v_add_f32 v%d, v%d, v%d" % (A, A, A + 1))
    a("v_add_f32 v%d, v%d, v%d" % (A + 2, A + 2, A + 3))
    a("v_add_f32 v%d, v%d, v%d" % (A + 8, A + 8, A + 10))
    a("v_add_f32 v%d, v%d, v%d" % (A + 12, A + 12, A + 14))
    a("v_permlane16_swap_b32 v%d, v%d" % (A, A + 2))
    a("v_add_f32 v%d, v%d, v%d" % (A + 8, A + 8, A + 12))
    a("v_lshlrev_b32 v%d, 16, v%d" % (vVT, vVT))
    a("v_add_f32 v%d, v%d, v%d" % (A, A, A + 2))
    a("v_add_f32 v%d, v%d, v%d" % (A + 8, A + 8, A + 17))
    a("v_fmac_f32 v%d, v%d, v%d" % (A, A + 17, vVT))
    a("s_mov_b32 s58, 0xffffff00")
    a("v_and_or_b32 v%d, v%d, s58, v%d" % (A + 9, A + 8, vTagM))
    a("s_cmp_eq_u32 s23, %d" % cons)
    a("s_cbranch_scc1 L_consumer")
    a("v_and_or_b32 v%d, v%d, s58, v%d" % (A + 1, A, vTagO))
    a("s_lshl_b32 s59, s2, 11")
    a("buffer_store_dword v%d, v%d, s[32:35], s59 offen %s" % (A + 1, vOoff, hs))
    a("s_cmp_eq_u32 s3, 0")
    a("s_cbranch_scc0 L_pubdone")
    a("v_mov_b32 v%d, v%d" % (A + 18, A + 16))
    a("v_mov_b32 v%d, v%d" % (A + 19, A + 9))
    a("s_lshl_b32 s59, s2, 5")
    a("s_add_u32 s59, s59, 0x%x" % WS_ML)
    a("v_lshlrev_b32 v%d, 3, v%d" % (A + 2, vHead))
    a("s_mov_b32 exec_lo, 0x00010001")
    a("s_mov_b32 exec_hi, 0x00010001")
    a("buffer_store_dwordx2 %s, v%d, s[32:35], s59 offen %s" % (vq(A + 18, 2), A + 2, hs))
    a.label("L_pubdone")
    stamp(6)
    stamp_flush(7)
    a("s_branch L_end")
    a.label("L_consumer")
    a("s_mov_b32 s36, s36")
    a("s_mov_b32 s52, 0x80008000")
    a("s_mov_b32 s53, 0x80008000")
    a("s_mov_b32 s54, 0")
    a.label("L_pollwait")
    a("s_waitcnt vmcnt(0)")
    a("v_cndmask_b32 v%d, v%d, v%d, s[52:53]" % (PM, PM, A + 16))
    a("v_cndmask_b32 v%d, v%d, v%d, s[52:53]" % (PM + 1, PM + 1, A + 9))
    a("v_xor_b32 v%d, v%d, v%d" % (A + 3, PM + 1, vTagM))
    a("v_xor_b32 v%d, v%d, v%d" % (A + 4, PO, vTagO))
    for t in range(1, 15):
        a("v_bitop3_b32 v%d, v%d, v%d, v%d bitop3:0xbe" % (A + 3 + (t & 1), PO + t, vTagO, A + 3 + (t & 1)))
    a("v_or_b32 v%d, v%d, v%d" % (A + 3, A + 3, A + 4))
    a("v_and_b32 v%d, 0xff, v%d" % (A + 3, A + 3))
    a("v_cmp_ne_u32 vcc, 0, v%d" % (A + 3))
    a("s_cbranch_vccz L_pollok")
    a("s_add_u32 s54, s54, 1")
    a("s_cmp_lt_u32 s54, 0x40000")
    a("s_cbranch_scc0 L_pollok")
    a("s_sleep %d" % sleep)
    issue_polls()
    a("s_branch L_pollwait")
    a.label("L_pollok")
    stamp(6)
    a("v_and_b32 v%d, s58, v%d" % (PM + 1, PM + 1))
    a("s_nop 0")
    MM = A + 4
    a("v_max_f32_dpp v%d, v%d, v%d row_ror:8 row_mask:0xf bank_mask:0xf" % (MM, PM, PM))
    a("s_nop 1")
    a("v_max_f32_dpp v%d, v%d, v%d row_ror:4 row_mask:0xf bank_mask:0xf" % (MM, MM, MM))
    a("s_nop 1")
    a("v_max_f32_dpp v%d, v%d, v%d row_ror:2 row_mask:0xf bank_mask:0xf" % (MM, MM, MM))
    a("s_nop 1")
    a("v_max_f32_dpp v%d, v%d, v%d row_ror:1 row_mask:0xf bank_mask:0xf" % (MM, MM, MM))
    FF = A + 5
    a("v_sub_f32 v%d, v%d, v%d" % (FF, PM, MM))
    a("v_exp_f32 v%d, v%d" % (FF, FF))
    for t in range(15):
        a("v_and_b32 v%d, s58, v%d" % (PO + t, PO + t))
    LS = A + 6
    a("v_mul_f32 v%d, v%d, v%d" % (LS, FF, PM + 1))
    AC = A + 7
    a("v_mul_f32_dpp v%d, v%d, v%d row_newbcast:15 row_mask:0xf bank_mask:0xf" % (AC, FF, A))
    a("v_mul_f32_dpp v%d, v%d, v%d row_newbcast:0 row_mask:0xf bank_mask:0xf" % (A + 10, FF, PO))
    a("v_add_f32_dpp v%d, v%d, v%d row_ror:8 row_mask:0xf bank_mask:0xf" % (LS, LS, LS))
    for t in range(1, 15):
        acc = AC if (t & 1) else A + 10
        a("v_fmac_f32_dpp v%d, v%d, v%d row_newbcast:%d row_mask:0xf bank_mask:0xf" % (acc, FF, PO + t, t))
        if t == 3: a("v_add_f32_dpp v%d, v%d, v%d row_ror:4 row_mask:0xf bank_mask:0xf" % (LS, LS, LS))
        if t == 6: a("v_add_f32_dpp v%d, v%d, v%d row_ror:2 row_mask:0xf bank_mask:0xf" % (LS, LS, LS))
        if t == 9: a("v_add_f32_dpp v%d, v%d, v%d row_ror:1 row_mask:0xf bank_mask:0xf" % (LS, LS, LS))
    a("v_rcp_f32 v%d, v%d" % (LS, LS))
    a("v_add_f32 v%d, v%d, v%d" % (AC, AC, A + 10))
    a("s_lshl_b32 s59, s22, 10")
    a("s_lshl_b32 s55, s3, 1")
    a("s_add_u32 s59, s59, s55")
    a("v_lshlrev_b32 v%d, 8, v%d" % (A + 11, vHead))
    a("v_lshl_add_u32 v%d, v3, 4, v%d" % (A + 11, A + 11))
    a("v_add_u32 v%d, s59, v%d" % (A + 11, A + 11))
    a("v_mul_f32 v%d, v%d, v%d" % (AC, AC, LS))
    a("v_cvt_pk_bf16_f32 v%d, v%d, v%d" % (AC, AC, AC))
    a("global_store_short v%d, v%d, s[16:17]" % (A + 11, AC))
    a("s_cmp_eq_u32 s3, 0")
    a("s_cbranch_scc0 L_now")
    a("s_mov_b64 exec, 1")
    a("buffer_store_dword v%d, off, s[32:35], s60 %s" % (vNonce, hs))
    a("s_mov_b64 exec, -1")
    a.label("L_now")
    if stamps:
        stamp(7)
        a("s_waitcnt vmcnt(0)")
    stamp(8)
    stamp_flush(9)
    a.label("L_end")
    if spin:
        a("s_waitcnt vmcnt(0) lgkmcnt(0)")
        a.label("L_spin")
        a("s_memrealtime s[92:93]")
        a("s_waitcnt lgkmcnt(0)")
        a("s_sub_u32 s94, s92, s90")
        if spinref is not None:
            a("s_sub_u32 s95, s96, s90")
            a("s_sub_u32 s94, s94, s95")
        a("s_cmp_lt_u32 s94, %d" % spin)
        a("s_cbranch_scc1 L_spin")
    a("s_endpgm")
    out = HEADER + "; @launch grid=(256,1,1) block=(512,1,1) lds=%d\n" % LDS
    out += '.amdgcn_target "amdgcn-amd-amdhsa--gfx950"\n.text\n.globl %s_kernel\n.p2align 8\n.type %s_kernel,@function\n%s_kernel:\n' % (NAME, NAME, NAME)
    out += a.text()
    out += """.section .rodata,"a"
.p2align 6
.amdhsa_kernel %s_kernel
  .amdhsa_next_free_vgpr 256
  .amdhsa_next_free_sgpr 100
  .amdhsa_accum_offset 256
  .amdhsa_group_segment_fixed_size 0
  .amdhsa_kernarg_size 72
  .amdhsa_user_sgpr_count 2
  .amdhsa_user_sgpr_kernarg_segment_ptr 1
  .amdhsa_system_sgpr_workgroup_id_x 1
  .amdhsa_float_denorm_mode_32 3
.end_amdhsa_kernel
""" % NAME
    return out

if __name__ == "__main__":
    import argparse
    p = argparse.ArgumentParser()
    p.add_argument("-o", default="cdna_kernels/%s.s" % NAME)
    p.add_argument("--ld", default="nt")
    p.add_argument("--hs", default="sc1")
    p.add_argument("--stamps", action="store_true")
    p.add_argument("--spin", type=int, default=0)
    p.add_argument("--spinref", type=int, default=None)
    p.add_argument("--noibar", action="store_true")
    p.add_argument("--kmode", default="lds")
    p.add_argument("--nononce", action="store_true")
    p.add_argument("--qlate", action="store_true")
    p.add_argument("--vsplit", type=int, default=8)
    p.add_argument("--cons", type=int, default=15)
    args = p.parse_args()
    open(args.o, "w").write(gen(args.ld, args.hs, args.stamps, args.spin, args.spinref, not args.noibar, args.kmode, args.nononce, args.qlate, args.vsplit, args.cons))
```

```python
import sys, math, struct
NAME = "standalone__tree_speculative_verify_tree_attention_over_candidate_token_tree__decode"
HEADER = """; Kernarg layout for this problem (72 bytes, ptrs only, base s[0:1]):
"""
def f32hex(x):
    return "0x%08x" % struct.unpack("<I", struct.pack("<f", x))[0]
class Asm:
    def __init__(self): self.lines = []
    def __call__(self, s): self.lines.append("    " + s)
    def label(self, s): self.lines.append(s + ":")
    def c(self, s): self.lines.append("    ; " + s)
    def text(self): return "\n".join(self.lines) + "\n"
def vq(base, n=4): return "v[%d:%d]" % (base, base + n - 1)

def gen(ld="nt", hs="sc1", stamps=False, spin=0, spinref=None, ibar=True, vsplit=8, cons=15, local=True, na=8,
        swave=0, qpos=4, half_tail=False):
    a = Asm()
    LOG2E = 1.4426950408889634
    SCALE = 128 ** -0.5
    C = SCALE * LOG2E
    Q, KT, K, V, S, ST, P, O, T = 12, 28, 44, 108, 172, 188, 192, 200, 232
    VT = K
    KD, KR = 100, 104
    vVoff, vQr, vKToff, vVT, vOoff, vMLoff = 6, 7, 8, 9, 10, 11
    vTagO, vTagM, vHead, vNonce = 248, 249, 250, 251
    L_M, L_L, L_ST, L_MQ, L_PT, L_Q, L_K = 0, 128, 256, 272, 288, 512, 1536
    L_O, OSTR = L_K, 16384
    LDS = L_K + 8 * 16384
    WS_ML, WS_W, WS_B = 0x80000, 0x90000, 0x100000
    def stamp(i):
        if spinref == i: a("s_memrealtime s[96:97]")
        if stamps: a("s_memrealtime s[%d:%d]" % (64 + 2 * i, 65 + 2 * i))
    nfl = [0]
    def stamp_flush(n):
        if stamps:
            nfl[0] += 1
            a("s_waitcnt lgkmcnt(0)")
            a("s_cmp_eq_u32 s3, %d" % swave)
            a("s_cbranch_scc0 L_nostamp%d" % nfl[0])
            a("s_lshl_b32 s58, s2, 7")
            a("s_add_u32 s58, s58, 0x1000000")
            a("v_mov_b32 v252, s58")
            a("s_mov_b64 exec, 1")
            for i in range(n):
                a("v_mov_b32 v254, s%d" % (64 + 2 * i))
                a("v_mov_b32 v255, s%d" % (65 + 2 * i))
                a("global_store_dwordx2 v252, v[254:255], s[20:21] offset:%d" % (8 * i))
                a("s_nop 1")
            a("s_mov_b64 exec, -1")
            a.label("L_nostamp%d" % nfl[0])
    stamp(0)
    if spin: a("s_memrealtime s[90:91]")
    a("s_load_dwordx16 s[4:19], s[0:1], 0")
    a("s_load_dwordx2 s[20:21], s[0:1], 64")
    a("s_cmp_ge_u32 s2, 256")
    a("s_cbranch_scc1 L_end")
    a("v_and_b32 v1, 63, v0")
    a("v_lshrrev_b32 v2, 6, v0")
    a("v_and_b32 v3, 15, v0")
    a("v_bfe_u32 v4, v0, 4, 2")
    a("v_readfirstlane_b32 s3, v2")
    if local:
        a("s_and_b32 s22, s2, 15")
        a("s_lshr_b32 s23, s2, 4")
    else:
        a("s_lshr_b32 s22, s2, 4")
        a("s_and_b32 s23, s2, 15")
    a("s_lshl_b32 s51, s22, 4")
    a("s_add_u32 s51, s51, s23")
    a("s_lshl_b32 s54, s51, 17")
    a("v_lshlrev_b32 v%d, 10, v2" % T)
    a("v_lshlrev_b32 v%d, 2, v4" % (T + 2))
    a("v_xor_b32 v%d, v3, v%d" % (T + 2, T + 2))
    a("v_lshl_add_u32 v%d, v4, 8, v%d" % (T + 3, T))
    for r in range(4):
        a("v_xor_b32 v%d, %d, v%d" % (KD + r, r, T + 2))
        a("v_lshl_add_u32 v%d, v%d, 4, v%d" % (KD + r, KD + r, T + 3))
    a("v_lshlrev_b32 v%d, 4, v1" % vQr)
    a("v_add_u32 v%d, v%d, v%d" % (vVoff, vQr, T))
    a("s_mov_b32 s26, 0x20000")
    a("s_mov_b32 s27, 0x00020000")
    a("s_mov_b32 s30, 0x20000")
    a("s_mov_b32 s31, 0x00020000")
    a("s_mov_b32 s34, 0x200000")
    a("s_mov_b32 s35, 0x00020000")
    a("s_mov_b32 s86, 0x400")
    a("s_mov_b32 s87, 0x00020000")
    a("s_lshl_b32 s52, s22, 10")
    a("s_lshl_b32 s53, s22, 8")
    a("s_lshl_b32 s55, s3, 14")
    a("s_add_u32 s55, s55, %d" % L_K)
    a("s_waitcnt lgkmcnt(0)")
    stamp(1)
    a("s_add_u32 s24, s6, s54")
    a("s_addc_u32 s25, s7, 0")
    a("s_and_b32 s25, s25, 0xffff")
    a("s_add_u32 s84, s4, s52")
    a("s_addc_u32 s85, s5, 0")
    a("s_and_b32 s85, s85, 0xffff")
    a("s_or_b32 s56, s3, s23")
    a("s_cmp_eq_u32 s56, 0")
    a("s_cbranch_scc0 L_nokt")
    a("v_lshlrev_b32 v%d, 4, v4" % vKToff)
    a("v_add_u32 v%d, s53, v%d" % (vKToff, vKToff))
    for j in range(4):
        a("global_load_dwordx4 %s, v%d, s[10:11] offset:%d" % (vq(KT + 4 * j), vKToff, j * 64))
    a.label("L_nokt")
    def qdma():
        a("s_mov_b32 m0, %d" % L_Q)
        a("s_nop 0")
        a("buffer_load_dwordx4 v%d, s[84:87], 0 offen lds" % vQr)
    a("s_mov_b32 s58, 0")
    for i in range(16):
        if i == qpos: qdma()
        if i == 0 or i == qpos:
            a("s_add_u32 m0, s55, %d" % (i * 1024))
            a("s_nop 0")
        a("buffer_load_dwordx4 v%d, s[24:27], s58 offen %s lds" % (KD + (i & 3), ld))
        if i < 15:
            if i + 1 != qpos: a("s_add_u32 m0, m0, 1024")
            a("s_add_u32 s58, s58, 0x2000")
    a("s_add_u32 s28, s8, s54")
    a("s_addc_u32 s29, s9, 0")
    a("s_and_b32 s29, s29, 0xffff")
    a("s_mov_b32 s32, s20")
    a("s_and_b32 s33, s21, 0xffff")
    a("s_load_dword s62, s[14:15], 0")
    if ibar: a("s_barrier")
    def vloads(i0, i1):
        a("s_mov_b32 s58, 0x%x" % (i0 * 0x2000))
        for i in range(i0, i1):
            a("buffer_load_dwordx4 %s, v%d, s[28:31], s58 offen %s" % (vq(V + i * 4), vVoff, ld))
            if i < i1 - 1: a("s_add_u32 s58, s58, 0x2000")
    vloads(0, vsplit)
    a("s_lshl_b32 s59, s22, 15")
    for t in range(15):
        a("s_add_u32 s%d, s23, %d" % (36 + t, t + 1))
        a("s_and_b32 s%d, s%d, 15" % (36 + t, 36 + t))
        a("s_lshl_b32 s%d, s%d, 11" % (36 + t, 36 + t))
        a("s_add_u32 s%d, s%d, s59" % (36 + t, 36 + t))
    a("v_lshlrev_b32 v%d, 8, v2" % vOoff)
    a("v_lshl_add_u32 v%d, v1, 2, v%d" % (vOoff, vOoff))
    a("v_and_b32 v%d, 1, v4" % (T + 8))
    a("v_lshlrev_b32 v%d, 1, v%d" % (T + 8, T + 8))
    a("v_lshrrev_b32 v%d, 1, v4" % (T + 9))
    a("v_or_b32 v%d, v%d, v%d" % (vHead, T + 8, T + 9))
    a("v_add_u32 v%d, s23, v3" % (T + 8))
    a("v_add_u32 v%d, 1, v%d" % (T + 8, T + 8))
    a("v_and_b32 v%d, 15, v%d" % (T + 8, T + 8))
    a("v_lshlrev_b32 v%d, 5, v%d" % (T + 8, T + 8))
    a("v_lshl_add_u32 v%d, v%d, 3, v%d" % (T + 8, vHead, T + 8))
    a("s_lshl_b32 s59, s22, 9")
    a("s_add_u32 s59, s59, 0x%x" % WS_ML)
    a("v_add_u32 v%d, s59, v%d" % (vMLoff, T + 8))
    a("v_lshlrev_b32 v%d, 4, v3" % vVT)
    a("v_lshl_add_u32 v%d, v2, 1, v%d" % (vVT, vVT))
    a("v_add_u32 v%d, s53, v%d" % (vVT, vVT))
    a("v_and_b32 v%d, 3, v3" % (T + 1))
    a("v_lshlrev_b32 v%d, 14, v2" % (T + 3))
    a("v_lshl_add_u32 v%d, v%d, 10, v%d" % (T + 3, T + 1, T + 3))
    a("v_lshrrev_b32 v%d, 2, v3" % (T + 2))
    a("v_lshl_add_u32 v%d, v%d, 8, v%d" % (T + 3, T + 2, T + 3))
    a("v_xor_b32 v%d, v4, v3" % (T + 2))
    for j in range(4):
        a("v_xor_b32 v%d, %d, v%d" % (KR + j, 4 * j, T + 2))
        a("v_lshl_add_u32 v%d, v%d, 4, v%d" % (KR + j, KR + j, T + 3))
    a("v_lshlrev_b32 v%d, 8, v%d" % (vQr, T + 1))
    a("v_lshl_add_u32 v%d, v4, 4, v%d" % (vQr, vQr))
    def kwait(t):
        last = 4 * t + 3
        younger = 15 - last
        if qpos > last:
            younger = 15 - (qpos - 1) if False else 15 - max(last, qpos - 1)
            younger = (15 - (qpos - 1))
        return younger + vsplit
    for t in range(4):
        a("s_waitcnt vmcnt(%d)" % kwait(t))
        kb = K + (t & 1) * 16
        if t == 0:
            for j in range(4):
                a("ds_read_b128 %s, v%d offset:%d" % (vq(Q + 4 * j), vQr, L_Q + j * 64))
        for j in range(4):
            a("ds_read_b128 %s, v%d offset:%d" % (vq(kb + 4 * j), KR + j, L_K + t * 4096))
        for j in range(4):
            a("s_waitcnt lgkmcnt(%d)" % (3 - j))
            a("v_mfma_f32_16x16x32_bf16 %s, %s, %s, %s" % (vq(S + 4 * t), vq(kb + 4 * j), vq(Q + 4 * j), "0" if j == 0 else vq(S + 4 * t)))
    stamp(2)
    a("s_cmp_eq_u32 s3, 0")
    a("s_cbranch_scc0 L_notree")
    a("v_mov_b32 v%d, %s" % (T + 8, f32hex(-3.0e38)))
    a("s_cmp_eq_u32 s23, 0")
    a("s_cbranch_scc0 L_tree1")
    for j in range(4):
        a("v_mfma_f32_16x16x32_bf16 %s, %s, %s, %s" % (vq(ST), vq(KT + 4 * j), vq(Q + 4 * j), "0" if j == 0 else vq(ST)))
    a("s_waitcnt lgkmcnt(0)")
    a("s_lshr_b32 s58, s22, 3")
    a("s_lshl_b32 s58, s58, 4")
    a("s_lshr_b32 s58, s62, s58")
    a("s_lshl_b32 s58, s58, 16")
    a("v_mov_b32 v%d, s58" % (T + 8))
    a("v_sub_f32 v%d, 1.0, v%d" % (T + 8, T + 8))
    a("s_mov_b32 s58, %s" % f32hex(-1e9 / SCALE))
    a("s_nop 3")
    a("v_fma_f32 v%d, v%d, s58, v%d" % (T + 8, T + 8, ST))
    a.label("L_tree1")
    a("v_lshlrev_b32 v%d, 2, v3" % (T + 9))
    a("s_mov_b64 exec, 0xf")
    a("ds_write_b32 v%d, v%d offset:%d" % (T + 9, T + 8, L_ST))
    a("s_mov_b64 exec, -1")
    a.label("L_notree")
    a("v_max3_f32 v%d, v%d, v%d, v%d" % (T, S + 0, S + 1, S + 2))
    a("v_max3_f32 v%d, v%d, v%d, v%d" % (T + 1, S + 3, S + 4, S + 5))
    a("v_max3_f32 v%d, v%d, v%d, v%d" % (T + 2, S + 6, S + 7, S + 8))
    a("v_max3_f32 v%d, v%d, v%d, v%d" % (T + 3, S + 9, S + 10, S + 11))
    a("s_nop 4")
    a("v_max3_f32 v%d, v%d, v%d, v%d" % (T, T, S + 12, S + 13))
    a("v_max3_f32 v%d, v%d, v%d, v%d" % (T + 1, T + 1, S + 14, S + 15))
    a("v_max3_f32 v%d, v%d, v%d, v%d" % (T, T, T + 1, T + 2))
    a("v_max_f32 v%d, v%d, v%d" % (T, T, T + 3))
    def xlane(op, r, t):
        a("v_mov_b32 v%d, v%d" % (t, r))
        a("s_nop 1")
        a("v_permlane32_swap_b32 v%d, v%d" % (r, t))
        a("%s v%d, v%d, v%d" % (op, r, r, t))
        a("v_mov_b32 v%d, v%d" % (t, r))
        a("s_nop 1")
        a("v_permlane16_swap_b32 v%d, v%d" % (r, t))
        a("%s v%d, v%d, v%d" % (op, r, r, t))
    xlane("v_max_f32", T, T + 1)
    a("v_and_b32 v%d, 3, v3" % (T + 10))
    a("v_lshlrev_b32 v%d, 5, v%d" % (T + 2, T + 10))
    a("s_lshl_b32 s58, s3, 2")
    a("v_add_u32 v%d, s58, v%d" % (T + 3, T + 2))
    a("v_lshlrev_b32 v%d, 2, v%d" % (T + 10, T + 10))
    a("s_mov_b64 exec, 0xf")
    a("ds_write_b32 v%d, v%d offset:%d" % (T + 3, T, L_M))
    a("s_mov_b64 exec, -1")
    a("s_waitcnt lgkmcnt(0)")
    a("s_barrier")
    stamp(3)
    a("s_lshl_b32 s58, s22, 7")
    a("s_add_u32 s60, s58, 0x%x" % WS_W)
    a("buffer_load_dword v%d, off, s[32:35], s60 %s" % (vNonce, hs))
    a("global_load_ushort v%d, v%d, s[12:13]" % (vVT, vVT))
    a("s_lshl_b32 s57, s51, 11")
    a("buffer_load_dword v%d, v%d, s[32:35], s57 offen %s" % (T + 15, vOoff, hs))
    a("s_lshl_b32 s61, s51, 5")
    a("s_add_u32 s61, s61, 0x%x" % WS_ML)
    a("buffer_load_dword v%d, off, s[32:35], s61 %s" % (T + 15, hs))
    if vsplit < 16: vloads(vsplit, 16)
    a("ds_read_b128 %s, v%d offset:%d" % (vq(T + 4), T + 2, L_M))
    a("ds_read_b128 %s, v%d offset:%d" % (vq(K), T + 2, L_M + 16))
    a("ds_read_b32 v%d, v%d offset:%d" % (T + 8, T + 10, L_ST))
    a("s_mov_b32 s63, %s" % f32hex(C))
    a("s_waitcnt lgkmcnt(0)")
    a("v_max3_f32 v%d, v%d, v%d, v%d" % (T, T + 4, T + 5, T + 6))
    a("v_max3_f32 v%d, v%d, v%d, v%d" % (T + 1, T + 7, K, K + 1))
    a("v_max3_f32 v%d, v%d, v%d, v%d" % (T, T, K + 2, K + 3))
    a("v_max3_f32 v%d, v%d, v%d, v%d" % (T, T, T + 1, T + 8))
    for r in range(16):
        a("v_sub_f32 v%d, v%d, v%d" % (S + r, S + r, T))
    a("v_sub_f32 v%d, v%d, v%d" % (T + 8, T + 8, T))
    for r in range(16):
        a("v_mul_f32 v%d, s63, v%d" % (S + r, S + r))
    a("v_mul_f32 v%d, s63, v%d" % (T + 8, T + 8))
    for r in range(16):
        a("v_exp_f32 v%d, v%d" % (S + r, S + r))
    a("v_exp_f32 v%d, v%d" % (T + 8, T + 8))
    a("v_mul_f32 v%d, s63, v%d" % (T, T))
    a("v_add_f32 v%d, v%d, v%d" % (T + 1, S + 0, S + 1))
    a("v_add_f32 v%d, v%d, v%d" % (T + 4, S + 2, S + 3))
    for r in range(4, 16, 2):
        a("v_add_f32 v%d, v%d, v%d" % (T + 1, T + 1, S + r))
        a("v_add_f32 v%d, v%d, v%d" % (T + 4, T + 4, S + r + 1))
    a("v_add_f32 v%d, v%d, v%d" % (T + 1, T + 1, T + 4))
    for u in range(2):
        for hq in range(2):
            t = 2 * u + hq
            a("v_cvt_pk_bf16_f32 v%d, v%d, v%d" % (P + 4 * u + 2 * hq, S + 4 * t, S + 4 * t + 1))
            a("v_cvt_pk_bf16_f32 v%d, v%d, v%d" % (P + 4 * u + 2 * hq + 1, S + 4 * t + 2, S + 4 * t + 3))
    xlane("v_add_f32", T + 1, T + 4)
    a("s_mov_b64 exec, 0xf")
    a("ds_write_b32 v%d, v%d offset:%d" % (T + 3, T + 1, L_L))
    a("s_cmp_eq_u32 s3, 0")
    a("s_cbranch_scc0 L_nomq")
    a("ds_write_b32 v%d, v%d offset:%d" % (T + 10, T, L_MQ))
    a("ds_write_b32 v%d, v%d offset:%d" % (T + 10, T + 8, L_PT))
    a.label("L_nomq")
    a("s_mov_b64 exec, -1")
    a("s_mov_b32 s58, 0x05040100")
    a("s_mov_b32 s59, 0x07060302")
    a("s_mul_i32 s61, s3, %d" % OSTR)
    a("v_lshlrev_b32 v%d, 4, v3" % (T + 5))
    a("v_add_u32 v%d, s61, v%d" % (T + 5, T + 5))
    a("v_lshlrev_b32 v%d, %d, v4" % (T + 6, (2 * OSTR).bit_length() - 1))
    a("v_lshl_add_u32 v%d, v3, 4, v%d" % (T + 6, T + 6))
    a("s_lshl_b32 s61, s3, 8")
    a("v_add_u32 v%d, s61, v%d" % (T + 6, T + 6))
    a("v_lshlrev_b32 v%d, 5, v%d" % (T + 7, vHead))
    a("v_lshlrev_b32 v%d, 2, v%d" % (T + 9, vHead))
    for u in range(2):
        a("s_waitcnt vmcnt(%d)" % (8 * (1 - u)))
        if u == 0:
            a("v_add_u32 v%d, 1, v%d" % (vNonce, vNonce))
            a("v_and_b32 v%d, 3, v3" % (T + 10))
            a("v_lshlrev_b32 v%d, 3, v%d" % (T + 10, T + 10))
            a("v_lshrrev_b32 v%d, v%d, v%d" % (vTagO, T + 10, vNonce))
            a("v_and_b32 v%d, 0xff, v%d" % (vTagO, vTagO))
            a("v_lshlrev_b32 v%d, 3, v%d" % (T + 10, vHead))
            a("v_lshrrev_b32 v%d, v%d, v%d" % (vTagM, T + 10, vNonce))
            a("v_and_b32 v%d, 0xff, v%d" % (vTagM, vTagM))
            a("v_lshlrev_b32 v%d, 16, v%d" % (vVT, vVT))
        if u == 1: stamp(4)
        for c in range(4):
            tb = VT + 8 + (c & 1) * 8 + u * 16
            for r in range(4):
                la = V + (u * 8 + 2 * r) * 4 + c
                lb = V + (u * 8 + 2 * r + 1) * 4 + c
                a("v_perm_b32 v%d, v%d, v%d, s58" % (tb + r, lb, la))
                a("v_perm_b32 v%d, v%d, v%d, s59" % (tb + 4 + r, lb, la))
            a("s_nop 1")
            for par in range(2):
                j = 2 * c + par
                a("v_mfma_f32_16x16x32_bf16 %s, %s, %s, %s" % (vq(O + 4 * j), vq(P + 4 * u), vq(tb + 4 * par), "0" if u == 0 else vq(O + 4 * j)))
    a("s_mov_b64 exec, 0xffff")
    for j in range(8):
        if j == 6: a("s_nop 3")
        a("ds_write_b128 v%d, %s offset:%d" % (T + 5, vq(O + 4 * j), L_O + j * 256))
    a("s_mov_b64 exec, -1")
    a("s_waitcnt lgkmcnt(0)")
    a("s_barrier")
    stamp(5)
    A = K
    PO = K + 20
    PM = K + 36
    def issue_polls():
        a("buffer_load_dwordx2 %s, v%d, s[32:35], 0 offen %s" % (vq(PM, 2), vMLoff, hs))
        for t in range(15):
            a("buffer_load_dword v%d, v%d, s[32:35], s%d offen %s" % (PO + t, vOoff, 36 + t, hs))
    a("ds_read_b128 %s, v%d offset:%d" % (vq(A), T + 6, L_O))
    a("ds_read_b128 %s, v%d offset:%d" % (vq(A + 4), T + 6, L_O + OSTR))
    a("ds_read_b128 %s, v%d offset:%d" % (vq(A + 8), T + 7, L_L))
    a("ds_read_b128 %s, v%d offset:%d" % (vq(A + 12), T + 7, L_L + 16))
    a("ds_read_b32 v%d, v%d offset:%d" % (A + 16, T + 9, L_MQ))
    a("ds_read_b32 v%d, v%d offset:%d" % (A + 17, T + 9, L_PT))
    a("s_cmp_eq_u32 s23, %d" % cons)
    a("s_cbranch_scc0 L_nopoll0")
    issue_polls()
    a.label("L_nopoll0")
    a("s_waitcnt lgkmcnt(4)")
    for h in range(4):
        a("v_add_f32 v%d, v%d, v%d" % (A + h, A + h, A + 4 + h))
    a("s_waitcnt lgkmcnt(0)")
    a("v_add_f32 v%d, v%d, v%d" % (A + 8, A + 8, A + 9))
    a("v_add_f32 v%d, v%d, v%d" % (A + 10, A + 10, A + 11))
    a("v_permlane32_swap_b32 v%d, v%d" % (A, A + 1))
    a("v_add_f32 v%d, v%d, v%d" % (A + 12, A + 12, A + 13))
    a("v_permlane32_swap_b32 v%d, v%d" % (A + 2, A + 3))
    a("v_add_f32 v%d, v%d, v%d" % (A + 14, A + 14, A + 15))
    a("v_add_f32 v%d, v%d, v%d" % (A, A, A + 1))
    a("v_add_f32 v%d, v%d, v%d" % (A + 2, A + 2, A + 3))
    a("v_add_f32 v%d, v%d, v%d" % (A + 8, A + 8, A + 10))
    a("v_add_f32 v%d, v%d, v%d" % (A + 12, A + 12, A + 14))
    a("v_permlane16_swap_b32 v%d, v%d" % (A, A + 2))
    a("v_add_f32 v%d, v%d, v%d" % (A + 8, A + 8, A + 12))
    a("s_mov_b32 s58, 0xffffff00")
    a("v_add_f32 v%d, v%d, v%d" % (A, A, A + 2))
    a("v_add_f32 v%d, v%d, v%d" % (A + 8, A + 8, A + 17))
    a("v_fmac_f32 v%d, v%d, v%d" % (A, A + 17, vVT))
    a("v_and_or_b32 v%d, v%d, s58, v%d" % (A + 9, A + 8, vTagM))
    a("s_cmp_eq_u32 s23, %d" % cons)
    a("s_cbranch_scc1 L_consumer")
    a("v_and_or_b32 v%d, v%d, s58, v%d" % (A + 1, A, vTagO))
    a("s_add_u32 s59, s57, 0x%x" % WS_B)
    a("buffer_store_dword v%d, v%d, s[32:35], s57 offen" % (A + 1, vOoff))
    a("buffer_store_dword v%d, v%d, s[32:35], s59 offen %s" % (A + 1, vOoff, hs))
    a("s_cmp_eq_u32 s3, 0")
    a("s_cbranch_scc0 L_pubdone")
    a("v_mov_b32 v%d, v%d" % (A + 18, A + 16))
    a("v_mov_b32 v%d, v%d" % (A + 19, A + 9))
    a("s_lshl_b32 s59, s51, 5")
    a("s_add_u32 s59, s59, 0x%x" % WS_ML)
    a("s_add_u32 s56, s59, 0x%x" % WS_B)
    a("v_lshlrev_b32 v%d, 3, v%d" % (A + 2, vHead))
    a("s_mov_b32 exec_lo, 0x00010001")
    a("s_mov_b32 exec_hi, 0x00010001")
    a("buffer_store_dwordx2 %s, v%d, s[32:35], s59 offen" % (vq(A + 18, 2), A + 2))
    a("buffer_store_dwordx2 %s, v%d, s[32:35], s56 offen %s" % (vq(A + 18, 2), A + 2, hs))
    a.label("L_pubdone")
    stamp(6)
    stamp_flush(7)
    a("s_branch L_end")
    a.label("L_consumer")
    a("s_mov_b32 s52, 0x80008000")
    a("s_mov_b32 s53, 0x80008000")
    a("s_mov_b32 s54, 0")
    a.label("L_pollwait")
    a("s_waitcnt vmcnt(0)")
    a("v_cndmask_b32 v%d, v%d, v%d, s[52:53]" % (PM, PM, A + 16))
    a("v_cndmask_b32 v%d, v%d, v%d, s[52:53]" % (PM + 1, PM + 1, A + 9))
    a("v_xor_b32 v%d, v%d, v%d" % (A + 4, PO, vTagO))
    a("v_xor_b32 v%d, v%d, v%d" % (A + 3, PM + 1, vTagM))
    for t in range(1, 15):
        a("v_bitop3_b32 v%d, v%d, v%d, v%d bitop3:0xbe" % (A + 3 + (t & 1), PO + t, vTagO, A + 3 + (t & 1)))
    a("v_or_b32 v%d, v%d, v%d" % (A + 3, A + 3, A + 4))
    a("v_and_b32 v%d, 0xff, v%d" % (A + 3, A + 3))
    a("v_cmp_ne_u32 vcc, 0, v%d" % (A + 3))
    a("s_cbranch_vccz L_pollok")
    a("s_add_u32 s54, s54, 1")
    a("s_cmp_lt_u32 s54, 0x40000")
    a("s_cbranch_scc0 L_pollok")
    a("s_cmp_lt_u32 s54, %d" % na)
    a("s_cbranch_scc1 L_notoggle")
    a("v_xor_b32 v%d, 0x%x, v%d" % (vOoff, WS_B, vOoff))
    a("v_xor_b32 v%d, 0x%x, v%d" % (vMLoff, WS_B, vMLoff))
    a.label("L_notoggle")
    issue_polls()
    a("s_branch L_pollwait")
    a.label("L_pollok")
    stamp(6)
    a("s_cmp_eq_u32 s3, 0")
    a("s_cbranch_scc0 L_now")
    a("s_mov_b64 exec, 1")
    a("buffer_store_dword v%d, off, s[32:35], s60" % vNonce)
    a("s_mov_b64 exec, -1")
    a.label("L_now")
    MM, FF, LS, AC = A + 4, A + 5, A + 6, A + 7
    a("v_max_f32_dpp v%d, v%d, v%d row_ror:8 row_mask:0xf bank_mask:0xf" % (MM, PM, PM))
    a("v_and_b32 v%d, s58, v%d" % (PM + 1, PM + 1))
    a("v_and_b32 v%d, s58, v%d" % (PO, PO))
    a("v_max_f32_dpp v%d, v%d, v%d row_ror:4 row_mask:0xf bank_mask:0xf" % (MM, MM, MM))
    a("v_and_b32 v%d, s58, v%d" % (PO + 1, PO + 1))
    a("v_and_b32 v%d, s58, v%d" % (PO + 2, PO + 2))
    a("v_max_f32_dpp v%d, v%d, v%d row_ror:2 row_mask:0xf bank_mask:0xf" % (MM, MM, MM))
    a("v_and_b32 v%d, s58, v%d" % (PO + 3, PO + 3))
    a("v_and_b32 v%d, s58, v%d" % (PO + 4, PO + 4))
    a("v_max_f32_dpp v%d, v%d, v%d row_ror:1 row_mask:0xf bank_mask:0xf" % (MM, MM, MM))
    a("v_sub_f32 v%d, v%d, v%d" % (FF, PM, MM))
    a("v_exp_f32 v%d, v%d" % (FF, FF))
    for t in range(5, 15):
        a("v_and_b32 v%d, s58, v%d" % (PO + t, PO + t))
    a("v_mul_f32 v%d, v%d, v%d" % (LS, FF, PM + 1))
    a("v_mul_f32_dpp v%d, v%d, v%d row_newbcast:15 row_mask:0xf bank_mask:0xf" % (AC, FF, A))
    a("v_mul_f32_dpp v%d, v%d, v%d row_newbcast:0 row_mask:0xf bank_mask:0xf" % (A + 10, FF, PO))
    a("v_add_f32_dpp v%d, v%d, v%d row_ror:8 row_mask:0xf bank_mask:0xf" % (LS, LS, LS))
    for t in range(1, 15):
        acc = AC if (t & 1) else A + 10
        a("v_fmac_f32_dpp v%d, v%d, v%d row_newbcast:%d row_mask:0xf bank_mask:0xf" % (acc, FF, PO + t, t))
        if t == 2: a("v_add_f32_dpp v%d, v%d, v%d row_ror:4 row_mask:0xf bank_mask:0xf" % (LS, LS, LS))
        if t == 4: a("v_add_f32_dpp v%d, v%d, v%d row_ror:2 row_mask:0xf bank_mask:0xf" % (LS, LS, LS))
        if t == 6: a("v_add_f32_dpp v%d, v%d, v%d row_ror:1 row_mask:0xf bank_mask:0xf" % (LS, LS, LS))
        if t == 8: a("v_rcp_f32 v%d, v%d" % (LS, LS))
    a("s_lshl_b32 s59, s22, 10")
    a("s_lshl_b32 s55, s3, 1")
    a("s_add_u32 s59, s59, s55")
    a("v_add_f32 v%d, v%d, v%d" % (AC, AC, A + 10))
    a("v_lshlrev_b32 v%d, 8, v%d" % (A + 11, vHead))
    a("v_lshl_add_u32 v%d, v3, 4, v%d" % (A + 11, A + 11))
    a("v_mul_f32 v%d, v%d, v%d" % (AC, AC, LS))
    a("v_add_u32 v%d, s59, v%d" % (A + 11, A + 11))
    a("v_cvt_pk_bf16_f32 v%d, v%d, v%d" % (AC, AC, AC))
    a("global_store_short v%d, v%d, s[16:17]" % (A + 11, AC))
    if stamps:
        stamp(7)
        a("s_waitcnt vmcnt(0)")
    stamp(8)
    if stamps:
        a("s_mov_b32 s82, s54")
        a("s_mov_b32 s83, 0")
    stamp(10)
    stamp_flush(11)
    a.label("L_end")
    if spin:
        a("s_waitcnt vmcnt(0) lgkmcnt(0)")
        a.label("L_spin")
        a("s_memrealtime s[92:93]")
        a("s_waitcnt lgkmcnt(0)")
        a("s_sub_u32 s94, s92, s90")
        if spinref is not None:
            a("s_sub_u32 s95, s96, s90")
            a("s_sub_u32 s94, s94, s95")
        a("s_cmp_lt_u32 s94, %d" % spin)
        a("s_cbranch_scc1 L_spin")
    a("s_endpgm")
    out = HEADER + "; @launch grid=(256,1,1) block=(512,1,1) lds=%d\n" % LDS
    out += '.amdgcn_target "amdgcn-amd-amdhsa--gfx950"\n.text\n.globl %s_kernel\n.p2align 8\n.type %s_kernel,@function\n%s_kernel:\n' % (NAME, NAME, NAME)
    out += a.text()
    out += """.section .rodata,"a"
.p2align 6
.amdhsa_kernel %s_kernel
  .amdhsa_next_free_vgpr 256
  .amdhsa_next_free_sgpr 100
  .amdhsa_accum_offset 256
  .amdhsa_group_segment_fixed_size 0
  .amdhsa_kernarg_size 72
  .amdhsa_user_sgpr_count 2
  .amdhsa_user_sgpr_kernarg_segment_ptr 1
  .amdhsa_system_sgpr_workgroup_id_x 1
  .amdhsa_float_denorm_mode_32 3
.end_amdhsa_kernel
""" % NAME
    return out

if __name__ == "__main__":
    import argparse
    p = argparse.ArgumentParser()
    p.add_argument("-o", default="cdna_kernels/%s.s" % NAME)
    p.add_argument("--ld", default="nt")
    p.add_argument("--hs", default="sc1")
    p.add_argument("--stamps", action="store_true")
    p.add_argument("--spin", type=int, default=0)
    p.add_argument("--spinref", type=int, default=None)
    p.add_argument("--noibar", action="store_true")
    p.add_argument("--vsplit", type=int, default=8)
    p.add_argument("--cons", type=int, default=15)
    p.add_argument("--nonlocal", dest="nonlocal_", action="store_true")
    p.add_argument("--na", type=int, default=8)
    p.add_argument("--swave", type=int, default=0)
    p.add_argument("--qpos", type=int, default=4)
    x = p.parse_args()
    open(x.o, "w").write(gen(x.ld, x.hs, x.stamps, x.spin, x.spinref, not x.noibar, x.vsplit, x.cons, not x.nonlocal_, x.na, x.swave, x.qpos))
```

```python
import sys, math, struct
NAME = "standalone__tree_speculative_verify_tree_attention_over_candidate_token_tree__decode"
HEADER = """; Kernarg layout for this problem (72 bytes, ptrs only, base s[0:1]):
"""
def f32hex(x):
    return "0x%08x" % struct.unpack("<I", struct.pack("<f", x))[0]
class Asm:
    def __init__(self): self.lines = []
    def __call__(self, s): self.lines.append("    " + s)
    def label(self, s): self.lines.append(s + ":")
    def c(self, s): self.lines.append("    ; " + s)
    def text(self): return "\n".join(self.lines) + "\n"
def vq(base, n=4): return "v[%d:%d]" % (base, base + n - 1)

def gen(ld="nt", hs="sc1", stamps=False, spin=0, spinref=None, ibar=True, vsplit=8, cons=15, local=True, na=8,
        skew=0, swave=0, qpos=4, fw=1):
    a = Asm()
    LOG2E = 1.4426950408889634
    SCALE = 128 ** -0.5
    C = SCALE * LOG2E
    Q, KT, K, V, S, ST, P, O, T = 12, 28, 44, 108, 172, 188, 192, 224, 232
    PM_ = 192
    PR = 28
    VT = K
    KD, KR = 100, 104
    vVoff, vQr, vKToff, vVT, vOoff, vMLoff = 6, 7, 8, 9, 10, 11
    vTagO, vTagM, vHead, vNonce = 248, 249, 250, 251
    vFO, vFM, vFH, vFA = 11, 5, 246, 245
    vPT = 244
    L_M, L_L, L_ST, L_MQ, L_PT, L_Q, L_K = 0, 128, 256, 272, 288, 512, 1536
    L_O, OSTR = L_K, 16384
    LDS = L_K + 8 * 16384
    WS_ML, WS_W, WS_B = 0x80000, 0x90000, 0x100000
    def stamp(i):
        if spinref == i: a("s_memrealtime s[96:97]")
        if stamps: a("s_memrealtime s[%d:%d]" % (64 + 2 * i, 65 + 2 * i))
    nfl = [0]
    def stamp_flush(n):
        if stamps:
            nfl[0] += 1
            a("s_waitcnt lgkmcnt(0)")
            a("s_cmp_eq_u32 s3, %d" % swave)
            a("s_cbranch_scc0 L_nostamp%d" % nfl[0])
            a("s_lshl_b32 s58, s2, 7")
            a("s_add_u32 s58, s58, 0x1000000")
            a("v_mov_b32 v252, s58")
            a("s_mov_b64 exec, 1")
            for i in range(n):
                a("v_mov_b32 v254, s%d" % (64 + 2 * i))
                a("v_mov_b32 v255, s%d" % (65 + 2 * i))
                a("global_store_dwordx2 v252, v[254:255], s[20:21] offset:%d" % (8 * i))
                a("s_nop 1")
            a("s_mov_b64 exec, -1")
            a.label("L_nostamp%d" % nfl[0])
    stamp(0)
    if spin: a("s_memrealtime s[90:91]")
    a("s_load_dwordx16 s[4:19], s[0:1], 0")
    a("s_load_dwordx2 s[20:21], s[0:1], 64")
    a("s_cmp_ge_u32 s2, 256")
    a("s_cbranch_scc1 L_end")
    if skew:
        a("s_mul_i32 s58, s2, 0x9E3779B1")
        a("s_lshr_b32 s58, s58, 29")
        a("s_mul_i32 s58, s58, %d" % skew)
        a("s_memrealtime s[90:91]")
        a("s_waitcnt lgkmcnt(0)")
        a.label("L_skew")
        a("s_memrealtime s[92:93]")
        a("s_waitcnt lgkmcnt(0)")
        a("s_sub_u32 s94, s92, s90")
        a("s_cmp_lt_u32 s94, s58")
        a("s_cbranch_scc1 L_skew")
    a("v_and_b32 v1, 63, v0")
    a("v_lshrrev_b32 v2, 6, v0")
    a("v_and_b32 v3, 15, v0")
    a("v_bfe_u32 v4, v0, 4, 2")
    a("v_readfirstlane_b32 s3, v2")
    if local:
        a("s_and_b32 s22, s2, 15")
        a("s_lshr_b32 s23, s2, 4")
    else:
        a("s_lshr_b32 s22, s2, 4")
        a("s_and_b32 s23, s2, 15")
    a("s_lshl_b32 s51, s22, 4")
    a("s_add_u32 s51, s51, s23")
    a("s_lshl_b32 s54, s51, 17")
    a("v_lshlrev_b32 v%d, 10, v2" % T)
    a("v_lshlrev_b32 v%d, 2, v4" % (T + 2))
    a("v_xor_b32 v%d, v3, v%d" % (T + 2, T + 2))
    a("v_lshl_add_u32 v%d, v4, 8, v%d" % (T + 3, T))
    for r in range(4):
        a("v_xor_b32 v%d, %d, v%d" % (KD + r, r, T + 2))
        a("v_lshl_add_u32 v%d, v%d, 4, v%d" % (KD + r, KD + r, T + 3))
    a("v_lshlrev_b32 v%d, 4, v1" % vQr)
    a("v_add_u32 v%d, v%d, v%d" % (vVoff, vQr, T))
    a("s_mov_b32 s26, 0x20000")
    a("s_mov_b32 s27, 0x00020000")
    a("s_mov_b32 s30, 0x20000")
    a("s_mov_b32 s31, 0x00020000")
    a("s_mov_b32 s34, 0x200000")
    a("s_mov_b32 s35, 0x00020000")
    a("s_mov_b32 s86, 0x400")
    a("s_mov_b32 s87, 0x00020000")
    a("s_lshl_b32 s52, s22, 10")
    a("s_lshl_b32 s53, s22, 8")
    a("s_lshl_b32 s55, s3, 14")
    a("s_add_u32 s55, s55, %d" % L_K)
    a("s_waitcnt lgkmcnt(0)")
    stamp(1)
    a("s_add_u32 s24, s6, s54")
    a("s_addc_u32 s25, s7, 0")
    a("s_and_b32 s25, s25, 0xffff")
    a("s_add_u32 s84, s4, s52")
    a("s_addc_u32 s85, s5, 0")
    a("s_and_b32 s85, s85, 0xffff")
    a("s_or_b32 s56, s3, s23")
    a("s_cmp_eq_u32 s56, 0")
    a("s_cbranch_scc0 L_nokt")
    a("v_lshlrev_b32 v%d, 4, v4" % vKToff)
    a("v_add_u32 v%d, s53, v%d" % (vKToff, vKToff))
    for j in range(4):
        a("global_load_dwordx4 %s, v%d, s[10:11] offset:%d" % (vq(KT + 4 * j), vKToff, j * 64))
    a.label("L_nokt")
    def qdma():
        a("s_mov_b32 m0, %d" % L_Q)
        a("s_nop 0")
        a("buffer_load_dwordx4 v%d, s[84:87], 0 offen lds" % vQr)
    a("s_mov_b32 s58, 0")
    for i in range(16):
        if i == qpos: qdma()
        if i == 0 or i == qpos:
            a("s_add_u32 m0, s55, %d" % (i * 1024))
            a("s_nop 0")
        a("buffer_load_dwordx4 v%d, s[24:27], s58 offen %s lds" % (KD + (i & 3), ld))
        if i < 15:
            if i + 1 != qpos: a("s_add_u32 m0, m0, 1024")
            a("s_add_u32 s58, s58, 0x2000")
    a("s_add_u32 s28, s8, s54")
    a("s_addc_u32 s29, s9, 0")
    a("s_and_b32 s29, s29, 0xffff")
    a("s_mov_b32 s32, s20")
    a("s_and_b32 s33, s21, 0xffff")
    a("s_load_dword s62, s[14:15], 0")
    a("s_lshl_b32 s58, s22, 7")
    a("s_add_u32 s60, s58, 0x%x" % WS_W)
    a("buffer_load_dword v%d, off, s[32:35], s60 %s" % (vNonce, hs))
    if ibar: a("s_barrier")
    def vloads(i0, i1):
        a("s_mov_b32 s58, 0x%x" % (i0 * 0x2000))
        for i in range(i0, i1):
            a("buffer_load_dwordx4 %s, v%d, s[28:31], s58 offen %s" % (vq(V + i * 4), vVoff, ld))
            if i < i1 - 1: a("s_add_u32 s58, s58, 0x2000")
    vloads(0, vsplit)
    a("v_lshlrev_b32 v%d, 8, v2" % vOoff)
    a("v_lshl_add_u32 v%d, v1, 2, v%d" % (vOoff, vOoff))
    a("v_and_b32 v%d, 1, v4" % (T + 8))
    a("v_lshlrev_b32 v%d, 1, v%d" % (T + 8, T + 8))
    a("v_lshrrev_b32 v%d, 1, v4" % (T + 9))
    a("v_or_b32 v%d, v%d, v%d" % (vHead, T + 8, T + 9))
    a("v_lshlrev_b32 v%d, 4, v3" % vVT)
    a("v_lshl_add_u32 v%d, v2, 1, v%d" % (vVT, vVT))
    a("v_add_u32 v%d, s53, v%d" % (vVT, vVT))
    a("v_lshrrev_b32 v%d, 3, v1" % (T + 8))
    a("v_and_b32 v%d, 7, v1" % (T + 9))
    a("s_lshl_b32 s36, s22, 15")
    a("s_lshl_b32 s37, s23, 7")
    a("s_add_u32 s36, s36, s37")
    a("v_lshlrev_b32 v%d, 11, v%d" % (vFO, T + 8))
    a("v_lshl_add_u32 v%d, v%d, 4, v%d" % (vFO, T + 9, vFO))
    a("v_add_u32 v%d, s36, v%d" % (vFO, vFO))
    a("v_lshrrev_b32 v%d, 2, v%d" % (vFH, T + 9))
    a("v_lshlrev_b32 v%d, 1, v%d" % (vFH, vFH))
    a("s_and_b32 s37, s23, 1")
    a("v_or_b32 v%d, s37, v%d" % (vFH, vFH))
    a("v_lshlrev_b32 v%d, 6, v%d" % (vFM, T + 8))
    a("v_lshl_add_u32 v%d, v%d, 4, v%d" % (vFM, vFH, vFM))
    a("s_lshl_b32 s37, s22, 10")
    a("s_add_u32 s37, s37, 0x%x" % WS_ML)
    a("v_add_u32 v%d, s37, v%d" % (vFM, vFM))
    a("v_and_b32 v%d, 3, v%d" % (T + 9, T + 9))
    a("v_lshl_add_u32 v%d, v%d, 2, v%d" % (T + 9, T + 9, vHead))
    a("v_lshlrev_b32 v%d, 4, v%d" % (T + 9, T + 9))
    a("v_lshl_add_u32 v%d, v%d, 8, v%d" % (vFA, vFH, T + 9))
    a("s_lshr_b32 s37, s23, 1")
    a("s_lshl_b32 s37, s37, 1")
    a("s_add_u32 s37, s37, s52")
    a("v_add_u32 v%d, s37, v%d" % (vFA, vFA))
    a("s_mov_b32 s38, 0x4000")
    a("v_and_b32 v%d, 3, v3" % (T + 1))
    a("v_lshlrev_b32 v%d, 14, v2" % (T + 3))
    a("v_lshl_add_u32 v%d, v%d, 10, v%d" % (T + 3, T + 1, T + 3))
    a("v_lshrrev_b32 v%d, 2, v3" % (T + 2))
    a("v_lshl_add_u32 v%d, v%d, 8, v%d" % (T + 3, T + 2, T + 3))
    a("v_xor_b32 v%d, v4, v3" % (T + 2))
    for j in range(4):
        a("v_xor_b32 v%d, %d, v%d" % (KR + j, 4 * j, T + 2))
        a("v_lshl_add_u32 v%d, v%d, 4, v%d" % (KR + j, KR + j, T + 3))
    a("v_lshlrev_b32 v%d, 8, v%d" % (vQr, T + 1))
    a("v_lshl_add_u32 v%d, v4, 4, v%d" % (vQr, vQr))
    def kwait(t):
        last = 4 * t + 3
        younger = 15 - last
        if qpos > last:
            younger = 15 - (qpos - 1) if False else 15 - max(last, qpos - 1)
            younger = (15 - (qpos - 1))
        return younger + 1 + vsplit
    for t in range(4):
        a("s_waitcnt vmcnt(%d)" % kwait(t))
        kb = K + (t & 1) * 16
        if t == 0:
            for j in range(4):
                a("ds_read_b128 %s, v%d offset:%d" % (vq(Q + 4 * j), vQr, L_Q + j * 64))
        for j in range(4):
            a("ds_read_b128 %s, v%d offset:%d" % (vq(kb + 4 * j), KR + j, L_K + t * 4096))
        for j in range(4):
            a("s_waitcnt lgkmcnt(%d)" % (3 - j))
            a("v_mfma_f32_16x16x32_bf16 %s, %s, %s, %s" % (vq(S + 4 * t), vq(kb + 4 * j), vq(Q + 4 * j), "0" if j == 0 else vq(S + 4 * t)))
    stamp(2)
    a("s_cmp_eq_u32 s3, 0")
    a("s_cbranch_scc0 L_notree")
    a("v_mov_b32 v%d, %s" % (T + 8, f32hex(-3.0e38)))
    a("s_cmp_eq_u32 s23, 0")
    a("s_cbranch_scc0 L_tree1")
    for j in range(4):
        a("v_mfma_f32_16x16x32_bf16 %s, %s, %s, %s" % (vq(ST), vq(KT + 4 * j), vq(Q + 4 * j), "0" if j == 0 else vq(ST)))
    a("s_waitcnt lgkmcnt(0)")
    a("s_lshr_b32 s58, s22, 3")
    a("s_lshl_b32 s58, s58, 4")
    a("s_lshr_b32 s58, s62, s58")
    a("s_lshl_b32 s58, s58, 16")
    a("v_mov_b32 v%d, s58" % (T + 8))
    a("v_sub_f32 v%d, 1.0, v%d" % (T + 8, T + 8))
    a("s_mov_b32 s58, %s" % f32hex(-1e9 / SCALE))
    a("s_nop 3")
    a("v_fma_f32 v%d, v%d, s58, v%d" % (T + 8, T + 8, ST))
    a.label("L_tree1")
    a("v_lshlrev_b32 v%d, 2, v3" % (T + 9))
    a("s_mov_b64 exec, 0xf")
    a("ds_write_b32 v%d, v%d offset:%d" % (T + 9, T + 8, L_ST))
    a("s_mov_b64 exec, -1")
    a.label("L_notree")
    a("v_max3_f32 v%d, v%d, v%d, v%d" % (T, S + 0, S + 1, S + 2))
    a("v_max3_f32 v%d, v%d, v%d, v%d" % (T + 1, S + 3, S + 4, S + 5))
    a("v_max3_f32 v%d, v%d, v%d, v%d" % (T + 2, S + 6, S + 7, S + 8))
    a("v_max3_f32 v%d, v%d, v%d, v%d" % (T + 3, S + 9, S + 10, S + 11))
    a("s_nop 4")
    a("v_max3_f32 v%d, v%d, v%d, v%d" % (T, T, S + 12, S + 13))
    a("v_max3_f32 v%d, v%d, v%d, v%d" % (T + 1, T + 1, S + 14, S + 15))
    a("v_max3_f32 v%d, v%d, v%d, v%d" % (T, T, T + 1, T + 2))
    a("v_max_f32 v%d, v%d, v%d" % (T, T, T + 3))
    def xlane(op, r, t):
        a("v_mov_b32 v%d, v%d" % (t, r))
        a("s_nop 1")
        a("v_permlane32_swap_b32 v%d, v%d" % (r, t))
        a("%s v%d, v%d, v%d" % (op, r, r, t))
        a("v_mov_b32 v%d, v%d" % (t, r))
        a("s_nop 1")
        a("v_permlane16_swap_b32 v%d, v%d" % (r, t))
        a("%s v%d, v%d, v%d" % (op, r, r, t))
    xlane("v_max_f32", T, T + 1)
    a("v_and_b32 v%d, 3, v3" % (T + 10))
    a("v_lshlrev_b32 v%d, 5, v%d" % (T + 2, T + 10))
    a("s_lshl_b32 s58, s3, 2")
    a("v_add_u32 v%d, s58, v%d" % (T + 3, T + 2))
    a("v_lshlrev_b32 v%d, 2, v%d" % (T + 10, T + 10))
    a("s_mov_b64 exec, 0xf")
    a("ds_write_b32 v%d, v%d offset:%d" % (T + 3, T, L_M))
    a("s_mov_b64 exec, -1")
    a("s_waitcnt lgkmcnt(0)")
    a("s_barrier")
    stamp(3)
    a("global_load_ushort v%d, v%d, s[12:13]" % (vVT, vVT))
    a("s_lshl_b32 s57, s51, 11")
    a("buffer_load_dword v%d, v%d, s[32:35], s57 offen %s" % (T + 15, vOoff, hs))
    if vsplit < 16: vloads(vsplit, 16)
    a("ds_read_b128 %s, v%d offset:%d" % (vq(T + 4), T + 2, L_M))
    a("ds_read_b128 %s, v%d offset:%d" % (vq(K), T + 2, L_M + 16))
    a("ds_read_b32 v%d, v%d offset:%d" % (T + 8, T + 10, L_ST))
    a("s_mov_b32 s63, %s" % f32hex(C))
    a("s_waitcnt vmcnt(18)")
    a("v_add_u32 v%d, 1, v%d" % (vNonce, vNonce))
    a("v_and_b32 v%d, 3, v3" % (T + 11))
    a("v_lshlrev_b32 v%d, 3, v%d" % (T + 11, T + 11))
    a("v_lshrrev_b32 v%d, v%d, v%d" % (vTagO, T + 11, vNonce))
    a("v_and_b32 v%d, 0xff, v%d" % (vTagO, vTagO))
    a("v_readfirstlane_b32 s39, v%d" % vNonce)
    a("s_waitcnt lgkmcnt(0)")
    a("v_max3_f32 v%d, v%d, v%d, v%d" % (T, T + 4, T + 5, T + 6))
    a("v_max3_f32 v%d, v%d, v%d, v%d" % (T + 1, T + 7, K, K + 1))
    a("v_max3_f32 v%d, v%d, v%d, v%d" % (T, T, K + 2, K + 3))
    a("v_max3_f32 v%d, v%d, v%d, v%d" % (T, T, T + 1, T + 8))
    for r in range(16):
        a("v_sub_f32 v%d, v%d, v%d" % (S + r, S + r, T))
    a("v_sub_f32 v%d, v%d, v%d" % (T + 8, T + 8, T))
    for r in range(16):
        a("v_mul_f32 v%d, s63, v%d" % (S + r, S + r))
    a("v_mul_f32 v%d, s63, v%d" % (T + 8, T + 8))
    for r in range(16):
        a("v_exp_f32 v%d, v%d" % (S + r, S + r))
    a("v_exp_f32 v%d, v%d" % (T + 8, T + 8))
    a("v_mul_f32 v%d, s63, v%d" % (T, T))
    a("v_add_f32 v%d, v%d, v%d" % (T + 1, S + 0, S + 1))
    a("v_add_f32 v%d, v%d, v%d" % (T + 4, S + 2, S + 3))
    for r in range(4, 16, 2):
        a("v_add_f32 v%d, v%d, v%d" % (T + 1, T + 1, S + r))
        a("v_add_f32 v%d, v%d, v%d" % (T + 4, T + 4, S + r + 1))
    a("v_add_f32 v%d, v%d, v%d" % (T + 1, T + 1, T + 4))
    for u in range(2):
        for hq in range(2):
            t = 2 * u + hq
            a("v_cvt_pk_bf16_f32 v%d, v%d, v%d" % (PR + 4 * u + 2 * hq, S + 4 * t, S + 4 * t + 1))
            a("v_cvt_pk_bf16_f32 v%d, v%d, v%d" % (PR + 4 * u + 2 * hq + 1, S + 4 * t + 2, S + 4 * t + 3))
    xlane("v_add_f32", T + 1, T + 4)
    a("s_mov_b64 exec, 0xf")
    a("ds_write_b32 v%d, v%d offset:%d" % (T + 3, T + 1, L_L))
    a("s_cmp_eq_u32 s3, 0")
    a("s_cbranch_scc0 L_nomq")
    a("ds_write_b32 v%d, v%d offset:%d" % (T + 10, T + 8, L_PT))
    a.label("L_nomq")
    a("s_mov_b64 exec, -1")
    for rho in range(4):
        a("s_mov_b32 s40, 0x%08x" % ((0xf << (4 * rho)) * 0x00010001))
        a("s_mov_b32 s41, s40")
        for u in range(2):
            for r in range(4):
                a("v_cndmask_b32 v%d, 0, v%d, s[40:41]" % (PM_ + (u * 4 + rho) * 4 + r, PR + 4 * u + r))
    a("s_waitcnt lgkmcnt(0)")
    a("s_barrier")
    a("v_lshlrev_b32 v%d, 2, v%d" % (T + 9, vHead))
    a("ds_read_b32 v%d, v%d offset:%d" % (vPT, T + 9, L_PT))
    a("s_cmp_eq_u32 s3, 0")
    a("s_cbranch_scc0 L_noml")
    a("ds_read_b128 %s, v%d offset:%d" % (vq(K), T + 2, L_L))
    a("ds_read_b128 %s, v%d offset:%d" % (vq(K + 4), T + 2, L_L + 16))
    a("s_lshl_b32 s61, s51, 6")
    a("s_add_u32 s61, s61, 0x%x" % WS_ML)
    a("s_add_u32 s56, s61, 0x%x" % WS_B)
    a("v_lshlrev_b32 v%d, 4, v3" % (K + 12))
    a("s_waitcnt lgkmcnt(0)")
    a("v_add_f32 v%d, v%d, v%d" % (K, K, K + 1))
    a("v_add_f32 v%d, v%d, v%d" % (K + 2, K + 2, K + 3))
    a("v_add_f32 v%d, v%d, v%d" % (K + 4, K + 4, K + 5))
    a("v_add_f32 v%d, v%d, v%d" % (K + 6, K + 6, K + 7))
    a("v_add_f32 v%d, v%d, v%d" % (K, K, K + 2))
    a("v_add_f32 v%d, v%d, v%d" % (K + 4, K + 4, K + 6))
    a("v_add_f32 v%d, v%d, v%d" % (K, K, K + 4))
    a("v_mov_b32 v%d, v%d" % (K + 8, T))
    a("v_add_f32 v%d, v%d, v%d" % (K + 9, K, T + 8))
    a("v_mov_b32 v%d, v%d" % (K + 10, vNonce))
    a("v_mov_b32 v%d, v%d" % (K + 11, vNonce))
    a("s_mov_b64 exec, 0xf")
    a("buffer_store_dwordx4 %s, v%d, s[32:35], s61 offen" % (vq(K + 8), K + 12))
    a("buffer_store_dwordx4 %s, v%d, s[32:35], s56 offen %s" % (vq(K + 8), K + 12, hs))
    a("s_mov_b64 exec, -1")
    a.label("L_noml")
    a("s_mov_b32 s58, 0x05040100")
    a("s_mov_b32 s59, 0x07060302")
    a("s_mul_i32 s61, s3, %d" % OSTR)
    a("v_lshlrev_b32 v%d, 4, v1" % (T + 5))
    a("v_add_u32 v%d, s61, v%d" % (T + 5, T + 5))
    a("v_lshlrev_b32 v%d, %d, v4" % (T + 6, (2 * OSTR).bit_length() - 1))
    a("v_lshl_add_u32 v%d, v3, 4, v%d" % (T + 6, T + 6))
    a("s_and_b32 s61, s3, 1")
    a("s_lshl_b32 s61, s61, 10")
    a("s_lshr_b32 s56, s3, 1")
    a("s_lshl_b32 s56, s56, 8")
    a("s_add_u32 s61, s61, s56")
    a("v_add_u32 v%d, s61, v%d" % (T + 6, T + 6))
    for u in range(2):
        a("s_waitcnt vmcnt(%d)" % (8 * (1 - u)))
        if u == 0:
            a("s_waitcnt lgkmcnt(0)")
            a("v_lshlrev_b32 v%d, 16, v%d" % (vVT, vVT))
            a("v_mul_f32 v%d, v%d, v%d" % (vPT, vPT, vVT))
        if u == 1: stamp(4)
        for c in range(4):
            tb = VT + 12 + (c & 1) * 8 + u * 16
            for r in range(4):
                la = V + (u * 8 + 2 * r) * 4 + c
                lb = V + (u * 8 + 2 * r + 1) * 4 + c
                a("v_perm_b32 v%d, v%d, v%d, s58" % (tb + r, lb, la))
                a("v_perm_b32 v%d, v%d, v%d, s59" % (tb + 4 + r, lb, la))
            a("s_nop 1")
            for par in range(2):
                a("v_mfma_f32_16x16x32_bf16 %s, %s, %s, %s" % (vq(O + 4 * par), vq(PM_ + (u * 4 + c) * 4), vq(tb + 4 * par), "0" if (u == 0 and c == 0) else vq(O + 4 * par)))
    a("s_add_u32 s59, s57, 0x%x" % WS_B)
    a("s_mov_b32 s58, 0xffffff00")
    a("s_nop 5")
    a("ds_write_b128 v%d, %s offset:%d" % (T + 5, vq(O), L_O))
    a("ds_write_b128 v%d, %s offset:%d" % (T + 5, vq(O + 4), L_O + 1024))
    a("s_waitcnt lgkmcnt(0)")
    a("s_barrier")
    stamp(5)
    A = K
    a("ds_read_b128 %s, v%d offset:%d" % (vq(A), T + 6, L_O))
    a("ds_read_b128 %s, v%d offset:%d" % (vq(A + 4), T + 6, L_O + OSTR))
    a("s_waitcnt lgkmcnt(0)")
    for h in range(4):
        a("v_add_f32 v%d, v%d, v%d" % (A + h, A + h, A + 4 + h))
    a("s_nop 0")
    a("v_permlane32_swap_b32 v%d, v%d" % (A, A + 1))
    a("v_permlane32_swap_b32 v%d, v%d" % (A + 2, A + 3))
    a("v_add_f32 v%d, v%d, v%d" % (A, A, A + 1))
    a("v_add_f32 v%d, v%d, v%d" % (A + 2, A + 2, A + 3))
    a("s_nop 1")
    a("v_permlane16_swap_b32 v%d, v%d" % (A, A + 2))
    a("v_add_f32 v%d, v%d, v%d" % (A, A, A + 2))
    a("v_add_f32 v%d, v%d, v%d" % (A, A, vPT))
    a("v_and_or_b32 v%d, v%d, s58, v%d" % (A + 1, A, vTagO))
    a("buffer_store_dword v%d, v%d, s[32:35], s57 offen" % (A + 1, vOoff))
    a("buffer_store_dword v%d, v%d, s[32:35], s59 offen %s" % (A + 1, vOoff, hs))
    a("s_cmp_eq_u32 s3, %d" % fw)
    a("s_cbranch_scc1 L_final")
    stamp(6)
    stamp_flush(7)
    a("s_branch L_end")
    a.label("L_final")
    X0, X1, M0, M1 = K + 8, K + 12, K + 16, K + 32
    B1, B2, F0, F1, LS = K + 20, K + 21, K + 22, K + 23, K + 24
    AC = K + 26
    TT = K + 30
    a("s_and_b32 s40, s39, 0xff")
    a("s_bfe_u32 s41, s39, 0x80008")
    a("s_bfe_u32 s42, s39, 0x80010")
    a("s_lshr_b32 s43, s39, 24")
    a("s_mov_b32 s54, 0")
    def o_loads():
        a("buffer_load_dwordx4 %s, v%d, s[32:35], 0 offen %s" % (vq(X0), vFO, hs))
        a("buffer_load_dwordx4 %s, v%d, s[32:35], s38 offen %s" % (vq(X1), vFO, hs))
    a.label("L_mlpoll")
    a("buffer_load_dwordx4 %s, v%d, s[32:35], 0 offen %s" % (vq(M0), vFM, hs))
    a("buffer_load_dwordx4 %s, v%d, s[32:35], 0 offen offset:512 %s" % (vq(M1), vFM, hs))
    o_loads()
    a("s_waitcnt vmcnt(2)")
    a("v_xor_b32 v%d, s39, v%d" % (B1, M0 + 2))
    a("v_bitop3_b32 v%d, v%d, s39, v%d bitop3:0xbe" % (B1, M1 + 2, B1))
    a("v_bitop3_b32 v%d, v%d, s39, v%d bitop3:0xbe" % (B1, M0 + 3, B1))
    a("v_bitop3_b32 v%d, v%d, s39, v%d bitop3:0xbe" % (B1, M1 + 3, B1))
    a("v_cmp_ne_u32 vcc, 0, v%d" % B1)
    a("s_cbranch_vccz L_mlok")
    a("s_add_u32 s54, s54, 1")
    a("s_cmp_lt_u32 s54, 0x40000")
    a("s_cbranch_scc0 L_mlok")
    a("s_waitcnt vmcnt(0)")
    a("s_cmp_lt_u32 s54, %d" % na)
    a("s_cbranch_scc1 L_mlpoll")
    a("v_xor_b32 v%d, 0x%x, v%d" % (vFO, WS_B, vFO))
    a("v_xor_b32 v%d, 0x%x, v%d" % (vFM, WS_B, vFM))
    a("s_branch L_mlpoll")
    a.label("L_mlok")
    a("v_max_f32 v%d, v%d, v%d" % (F0, M0, M1))
    a("s_nop 1")
    a("v_max_f32_dpp v%d, v%d, v%d row_ror:8 row_mask:0xf bank_mask:0xf" % (F0, F0, F0))
    xlane("v_max_f32", F0, F1)
    a("v_sub_f32 v%d, v%d, v%d" % (F1, M1, F0))
    a("v_sub_f32 v%d, v%d, v%d" % (F0, M0, F0))
    a("v_exp_f32 v%d, v%d" % (F1, F1))
    a("v_exp_f32 v%d, v%d" % (F0, F0))
    a("s_nop 0")
    a("v_mul_f32 v%d, v%d, v%d" % (LS, F1, M1 + 1))
    a("v_fmac_f32 v%d, v%d, v%d" % (LS, F0, M0 + 1))
    a("s_nop 1")
    a("v_add_f32_dpp v%d, v%d, v%d row_ror:8 row_mask:0xf bank_mask:0xf" % (LS, LS, LS))
    xlane("v_add_f32", LS, TT)
    a("v_rcp_f32 v%d, v%d" % (LS, LS))
    a.label("L_owait")
    a("s_waitcnt vmcnt(0)")
    a("v_xor_b32 v%d, s40, v%d" % (B1, X0))
    a("v_xor_b32 v%d, s41, v%d" % (B2, X0 + 1))
    a("v_bitop3_b32 v%d, v%d, s42, v%d bitop3:0xbe" % (B1, X0 + 2, B1))
    a("v_bitop3_b32 v%d, v%d, s43, v%d bitop3:0xbe" % (B2, X0 + 3, B2))
    a("v_bitop3_b32 v%d, v%d, s40, v%d bitop3:0xbe" % (B1, X1, B1))
    a("v_bitop3_b32 v%d, v%d, s41, v%d bitop3:0xbe" % (B2, X1 + 1, B2))
    a("v_bitop3_b32 v%d, v%d, s42, v%d bitop3:0xbe" % (B1, X1 + 2, B1))
    a("v_bitop3_b32 v%d, v%d, s43, v%d bitop3:0xbe" % (B2, X1 + 3, B2))
    a("v_or_b32 v%d, v%d, v%d" % (B1, B1, B2))
    a("v_and_b32 v%d, 0xff, v%d" % (B1, B1))
    a("v_cmp_ne_u32 vcc, 0, v%d" % B1)
    a("s_cbranch_vccz L_ook")
    a("s_add_u32 s54, s54, 1")
    a("s_cmp_lt_u32 s54, 0x40000")
    a("s_cbranch_scc0 L_ook")
    a("s_cmp_lt_u32 s54, %d" % na)
    a("s_cbranch_scc1 L_otog")
    a("v_xor_b32 v%d, 0x%x, v%d" % (vFO, WS_B, vFO))
    a.label("L_otog")
    o_loads()
    a("s_branch L_owait")
    a.label("L_ook")
    stamp(6)
    for c in range(4):
        a("v_and_b32 v%d, s58, v%d" % (X0 + c, X0 + c))
    for c in range(4):
        a("v_and_b32 v%d, s58, v%d" % (X1 + c, X1 + c))
    for c in range(4):
        a("v_mul_f32 v%d, v%d, v%d" % (AC + c, F0, X0 + c))
    for c in range(4):
        a("v_fmac_f32 v%d, v%d, v%d" % (AC + c, F1, X1 + c))
    for c in range(4):
        a("v_add_f32_dpp v%d, v%d, v%d row_ror:8 row_mask:0xf bank_mask:0xf" % (AC + c, AC + c, AC + c))
    a("s_nop 0")
    a("v_permlane32_swap_b32 v%d, v%d" % (AC, AC + 1))
    a("v_permlane32_swap_b32 v%d, v%d" % (AC + 2, AC + 3))
    a("v_add_f32 v%d, v%d, v%d" % (AC, AC, AC + 1))
    a("v_add_f32 v%d, v%d, v%d" % (AC + 2, AC + 2, AC + 3))
    a("s_nop 1")
    a("v_permlane16_swap_b32 v%d, v%d" % (AC, AC + 2))
    a("v_add_f32 v%d, v%d, v%d" % (AC, AC, AC + 2))
    a("v_mul_f32 v%d, v%d, v%d" % (AC, AC, LS))
    a("v_cvt_pk_bf16_f32 v%d, v%d, v%d" % (AC, AC, AC))
    a("s_mov_b32 exec_lo, 0x00ff00ff")
    a("s_mov_b32 exec_hi, 0x00ff00ff")
    a("global_store_short v%d, v%d, s[16:17]" % (vFA, AC))
    a("s_cmp_eq_u32 s23, 15")
    a("s_cbranch_scc0 L_now")
    a("s_mov_b64 exec, 1")
    a("buffer_store_dword v%d, off, s[32:35], s60" % vNonce)
    a.label("L_now")
    a("s_mov_b64 exec, -1")
    if stamps:
        stamp(7)
        a("s_waitcnt vmcnt(0)")
    stamp(8)
    if stamps:
        a("s_mov_b32 s82, s54")
        a("s_mov_b32 s83, 0")
    stamp(10)
    stamp_flush(11)
    a.label("L_end")
    if spin:
        a("s_waitcnt vmcnt(0) lgkmcnt(0)")
        a.label("L_spin")
        a("s_memrealtime s[92:93]")
        a("s_waitcnt lgkmcnt(0)")
        a("s_sub_u32 s94, s92, s90")
        if spinref is not None:
            a("s_sub_u32 s95, s96, s90")
            a("s_sub_u32 s94, s94, s95")
        a("s_cmp_lt_u32 s94, %d" % spin)
        a("s_cbranch_scc1 L_spin")
    a("s_endpgm")
    out = HEADER + "; @launch grid=(256,1,1) block=(512,1,1) lds=%d\n" % LDS
    out += '.amdgcn_target "amdgcn-amd-amdhsa--gfx950"\n.text\n.globl %s_kernel\n.p2align 8\n.type %s_kernel,@function\n%s_kernel:\n' % (NAME, NAME, NAME)
    out += a.text()
    out += """.section .rodata,"a"
.p2align 6
.amdhsa_kernel %s_kernel
  .amdhsa_next_free_vgpr 256
  .amdhsa_next_free_sgpr 100
  .amdhsa_accum_offset 256
  .amdhsa_group_segment_fixed_size 0
  .amdhsa_kernarg_size 72
  .amdhsa_user_sgpr_count 2
  .amdhsa_user_sgpr_kernarg_segment_ptr 1
  .amdhsa_system_sgpr_workgroup_id_x 1
  .amdhsa_float_denorm_mode_32 3
.end_amdhsa_kernel
""" % NAME
    return out

if __name__ == "__main__":
    import argparse
    p = argparse.ArgumentParser()
    p.add_argument("-o", default="cdna_kernels/%s.s" % NAME)
    p.add_argument("--ld", default="nt")
    p.add_argument("--hs", default="sc1")
    p.add_argument("--stamps", action="store_true")
    p.add_argument("--spin", type=int, default=0)
    p.add_argument("--spinref", type=int, default=None)
    p.add_argument("--noibar", action="store_true")
    p.add_argument("--vsplit", type=int, default=8)
    p.add_argument("--cons", type=int, default=15)
    p.add_argument("--nonlocal", dest="nonlocal_", action="store_true")
    p.add_argument("--na", type=int, default=8)
    p.add_argument("--swave", type=int, default=0)
    p.add_argument("--skew", type=int, default=0)
    p.add_argument("--qpos", type=int, default=4)
    p.add_argument("--fw", type=int, default=1)
    x = p.parse_args()
    open(x.o, "w").write(gen(x.ld, x.hs, x.stamps, x.spin, x.spinref, not x.noibar, x.vsplit, x.cons, not x.nonlocal_, x.na, x.skew, x.swave, x.qpos, x.fw))
```

```python
import sys, math, struct
NAME = "standalone__tree_speculative_verify_tree_attention_over_candidate_token_tree__decode"
HEADER = """; Kernarg layout for this problem (72 bytes, ptrs only, base s[0:1]):
"""
def f32hex(x):
    return "0x%08x" % struct.unpack("<I", struct.pack("<f", x))[0]
class Asm:
    def __init__(self): self.lines = []
    def __call__(self, s): self.lines.append("    " + s)
    def label(self, s): self.lines.append(s + ":")
    def c(self, s): self.lines.append("    ; " + s)
    def text(self): return "\n".join(self.lines) + "\n"
def vq(base, n=4): return "v[%d:%d]" % (base, base + n - 1)

def gen(ld="nt", hs="sc1", stamps=False, spin=0, spinref=None, ibar=True, vsplit=8, cons=15, local=True, na=8,
        skew=0, swave=0, qpos=4, fw=1, dpoll=0, xpos=1, mlwarm=True, hl="sc1", v2late=True, sstr=2176):
    a = Asm()
    LOG2E = 1.4426950408889634
    SCALE = 128 ** -0.5
    C = SCALE * LOG2E
    Q, KT, K, V, S, ST, P, O, T = 12, 28, 44, 108, 172, 188, 192, 224, 232
    PM_ = 192
    PR = 28
    VT = K
    KD, KR = 100, 104
    vVoff, vQr, vKToff, vVT, vOoff, vMLoff = 6, 7, 8, 9, 10, 11
    vTagO, vTagM, vHead, vNonce = 248, 249, 250, 251
    vFO, vFM, vFH, vFA = 11, 5, 246, 245
    vPT = 244
    L_M, L_L, L_ST, L_MQ, L_PT, L_Q, L_K = 0, 128, 256, 272, 288, 512, 1536
    L_X = L_Q
    L_O, OSTR = L_K, 16384
    LDS = L_K + 8 * 16384
    WS_ML, WS_W, WS_B = 0xa0000, 0xb0000, 0x100000
    SSTR = sstr
    def stamp(i):
        if spinref == i: a("s_memrealtime s[96:97]")
        if stamps: a("s_memrealtime s[%d:%d]" % (64 + 2 * i, 65 + 2 * i))
    nfl = [0]
    def stamp_flush(n):
        if stamps:
            nfl[0] += 1
            a("s_waitcnt lgkmcnt(0)")
            a("s_cmp_eq_u32 s3, %d" % swave)
            a("s_cbranch_scc0 L_nostamp%d" % nfl[0])
            a("s_lshl_b32 s58, s2, 7")
            a("s_add_u32 s58, s58, 0x1000000")
            a("v_mov_b32 v252, s58")
            a("s_mov_b64 exec, 1")
            for i in range(n):
                a("v_mov_b32 v254, s%d" % (64 + 2 * i))
                a("v_mov_b32 v255, s%d" % (65 + 2 * i))
                a("global_store_dwordx2 v252, v[254:255], s[20:21] offset:%d" % (8 * i))
                a("s_nop 1")
            a("s_mov_b64 exec, -1")
            a.label("L_nostamp%d" % nfl[0])
    stamp(0)
    if spin: a("s_memrealtime s[90:91]")
    a("s_load_dwordx16 s[4:19], s[0:1], 0")
    a("s_load_dwordx2 s[20:21], s[0:1], 64")
    a("s_cmp_ge_u32 s2, 256")
    a("s_cbranch_scc1 L_end")
    if skew:
        a("s_mul_i32 s58, s2, 0x9E3779B1")
        a("s_lshr_b32 s58, s58, 29")
        a("s_mul_i32 s58, s58, %d" % skew)
        a("s_memrealtime s[90:91]")
        a("s_waitcnt lgkmcnt(0)")
        a.label("L_skew")
        a("s_memrealtime s[92:93]")
        a("s_waitcnt lgkmcnt(0)")
        a("s_sub_u32 s94, s92, s90")
        a("s_cmp_lt_u32 s94, s58")
        a("s_cbranch_scc1 L_skew")
    a("v_and_b32 v1, 63, v0")
    a("v_lshrrev_b32 v2, 6, v0")
    a("v_and_b32 v3, 15, v0")
    a("v_bfe_u32 v4, v0, 4, 2")
    a("v_readfirstlane_b32 s3, v2")
    if local:
        a("s_and_b32 s22, s2, 15")
        a("s_lshr_b32 s23, s2, 4")
    else:
        a("s_lshr_b32 s22, s2, 4")
        a("s_and_b32 s23, s2, 15")
    a("s_lshl_b32 s51, s22, 4")
    a("s_add_u32 s51, s51, s23")
    a("s_lshl_b32 s54, s51, 17")
    a("v_lshlrev_b32 v%d, 10, v2" % T)
    a("v_lshlrev_b32 v%d, 2, v4" % (T + 2))
    a("v_xor_b32 v%d, v3, v%d" % (T + 2, T + 2))
    a("v_lshl_add_u32 v%d, v4, 8, v%d" % (T + 3, T))
    for r in range(4):
        a("v_xor_b32 v%d, %d, v%d" % (KD + r, r, T + 2))
        a("v_lshl_add_u32 v%d, v%d, 4, v%d" % (KD + r, KD + r, T + 3))
    a("v_lshlrev_b32 v%d, 4, v1" % vQr)
    a("v_add_u32 v%d, v%d, v%d" % (vVoff, vQr, T))
    a("s_mov_b32 s26, 0x20000")
    a("s_mov_b32 s27, 0x00020000")
    a("s_mov_b32 s30, 0x20000")
    a("s_mov_b32 s31, 0x00020000")
    a("s_mov_b32 s34, 0x200000")
    a("s_mov_b32 s35, 0x00020000")
    a("s_mov_b32 s86, 0x400")
    a("s_mov_b32 s87, 0x00020000")
    a("s_lshl_b32 s52, s22, 10")
    a("s_lshl_b32 s53, s22, 8")
    a("s_lshl_b32 s55, s3, 14")
    a("s_add_u32 s55, s55, %d" % L_K)
    a("s_waitcnt lgkmcnt(0)")
    stamp(1)
    a("s_add_u32 s24, s6, s54")
    a("s_addc_u32 s25, s7, 0")
    a("s_and_b32 s25, s25, 0xffff")
    a("s_add_u32 s84, s4, s52")
    a("s_addc_u32 s85, s5, 0")
    a("s_and_b32 s85, s85, 0xffff")
    a("s_or_b32 s56, s3, s23")
    a("s_cmp_eq_u32 s56, 0")
    a("s_cbranch_scc0 L_nokt")
    a("v_lshlrev_b32 v%d, 4, v4" % vKToff)
    a("v_add_u32 v%d, s53, v%d" % (vKToff, vKToff))
    for j in range(4):
        a("global_load_dwordx4 %s, v%d, s[10:11] offset:%d" % (vq(KT + 4 * j), vKToff, j * 64))
    a.label("L_nokt")
    def qdma():
        a("s_mov_b32 m0, %d" % L_Q)
        a("s_nop 0")
        a("buffer_load_dwordx4 v%d, s[84:87], 0 offen lds" % vQr)
    a("s_mov_b32 s58, 0")
    for i in range(16):
        if i == qpos: qdma()
        if i == 0 or i == qpos:
            a("s_add_u32 m0, s55, %d" % (i * 1024))
            a("s_nop 0")
        a("buffer_load_dwordx4 v%d, s[24:27], s58 offen %s lds" % (KD + (i & 3), ld))
        if i < 15:
            if i + 1 != qpos: a("s_add_u32 m0, m0, 1024")
            a("s_add_u32 s58, s58, 0x2000")
    a("s_add_u32 s28, s8, s54")
    a("s_addc_u32 s29, s9, 0")
    a("s_and_b32 s29, s29, 0xffff")
    a("s_mov_b32 s32, s20")
    a("s_and_b32 s33, s21, 0xffff")
    a("s_load_dword s62, s[14:15], 0")
    a("s_lshl_b32 s58, s22, 7")
    a("s_add_u32 s60, s58, 0x%x" % WS_W)
    a("buffer_load_dword v%d, off, s[32:35], s60 %s" % (vNonce, hs))
    if mlwarm:
        a("s_lshl_b32 s58, s51, 6")
        a("s_add_u32 s58, s58, 0x%x" % WS_ML)
        a("buffer_load_dword v%d, off, s[32:35], s58 %s" % (T + 15, hs))
    if ibar: a("s_barrier")
    def vloads(i0, i1):
        a("s_mov_b32 s58, 0x%x" % (i0 * 0x2000))
        for i in range(i0, i1):
            a("buffer_load_dwordx4 %s, v%d, s[28:31], s58 offen %s" % (vq(V + i * 4), vVoff, ld))
            if i < i1 - 1: a("s_add_u32 s58, s58, 0x2000")
    vloads(0, vsplit)
    a("v_lshlrev_b32 v%d, 8, v2" % vOoff)
    a("v_lshl_add_u32 v%d, v1, 2, v%d" % (vOoff, vOoff))
    a("v_and_b32 v%d, 1, v4" % (T + 8))
    a("v_lshlrev_b32 v%d, 1, v%d" % (T + 8, T + 8))
    a("v_lshrrev_b32 v%d, 1, v4" % (T + 9))
    a("v_or_b32 v%d, v%d, v%d" % (vHead, T + 8, T + 9))
    a("v_lshlrev_b32 v%d, 4, v3" % vVT)
    a("v_lshl_add_u32 v%d, v2, 1, v%d" % (vVT, vVT))
    a("v_add_u32 v%d, s53, v%d" % (vVT, vVT))
    a("v_lshrrev_b32 v%d, 3, v1" % (T + 8))
    a("v_and_b32 v%d, 7, v1" % (T + 9))
    a("s_mul_i32 s36, s22, %d" % (16 * SSTR))
    a("s_lshl_b32 s37, s23, 7")
    a("s_add_u32 s36, s36, s37")
    a("v_mul_u32_u24 v%d, %d, v%d" % (vFO, SSTR, T + 8))
    a("v_lshl_add_u32 v%d, v%d, 4, v%d" % (vFO, T + 9, vFO))
    a("v_add_u32 v%d, s36, v%d" % (vFO, vFO))
    a("v_lshrrev_b32 v%d, 2, v%d" % (vFH, T + 9))
    a("v_lshlrev_b32 v%d, 1, v%d" % (vFH, vFH))
    a("s_and_b32 s37, s23, 1")
    a("v_or_b32 v%d, s37, v%d" % (vFH, vFH))
    a("v_lshlrev_b32 v%d, 6, v%d" % (vFM, T + 8))
    a("v_lshl_add_u32 v%d, v%d, 4, v%d" % (vFM, vFH, vFM))
    a("s_lshl_b32 s37, s22, 10")
    a("s_add_u32 s37, s37, 0x%x" % WS_ML)
    a("v_add_u32 v%d, s37, v%d" % (vFM, vFM))
    a("v_and_b32 v%d, 3, v%d" % (T + 9, T + 9))
    a("v_lshl_add_u32 v%d, v%d, 2, v%d" % (T + 9, T + 9, vHead))
    a("v_lshlrev_b32 v%d, 4, v%d" % (T + 9, T + 9))
    a("v_lshl_add_u32 v%d, v%d, 8, v%d" % (vFA, vFH, T + 9))
    a("s_lshr_b32 s37, s23, 1")
    a("s_lshl_b32 s37, s37, 1")
    a("s_add_u32 s37, s37, s52")
    a("v_add_u32 v%d, s37, v%d" % (vFA, vFA))
    a("s_mov_b32 s38, %d" % (8 * SSTR))
    a("v_and_b32 v%d, 3, v3" % (T + 1))
    a("v_lshlrev_b32 v%d, 14, v2" % (T + 3))
    a("v_lshl_add_u32 v%d, v%d, 10, v%d" % (T + 3, T + 1, T + 3))
    a("v_lshrrev_b32 v%d, 2, v3" % (T + 2))
    a("v_lshl_add_u32 v%d, v%d, 8, v%d" % (T + 3, T + 2, T + 3))
    a("v_xor_b32 v%d, v4, v3" % (T + 2))
    for j in range(4):
        a("v_xor_b32 v%d, %d, v%d" % (KR + j, 4 * j, T + 2))
        a("v_lshl_add_u32 v%d, v%d, 4, v%d" % (KR + j, KR + j, T + 3))
    a("v_lshlrev_b32 v%d, 8, v%d" % (vQr, T + 1))
    a("v_lshl_add_u32 v%d, v4, 4, v%d" % (vQr, vQr))
    def kwait(t):
        last = 4 * t + 3
        younger = 15 - last
        if qpos > last:
            younger = 15 - (qpos - 1) if False else 15 - max(last, qpos - 1)
            younger = (15 - (qpos - 1))
        return younger + 1 + (1 if mlwarm else 0) + vsplit
    for t in range(4):
        a("s_waitcnt vmcnt(%d)" % kwait(t))
        kb = K + (t & 1) * 16
        if t == 0:
            for j in range(4):
                a("ds_read_b128 %s, v%d offset:%d" % (vq(Q + 4 * j), vQr, L_Q + j * 64))
        for j in range(4):
            a("ds_read_b128 %s, v%d offset:%d" % (vq(kb + 4 * j), KR + j, L_K + t * 4096))
        for j in range(4):
            a("s_waitcnt lgkmcnt(%d)" % (3 - j))
            a("v_mfma_f32_16x16x32_bf16 %s, %s, %s, %s" % (vq(S + 4 * t), vq(kb + 4 * j), vq(Q + 4 * j), "0" if j == 0 else vq(S + 4 * t)))
    stamp(2)
    a("s_cmp_eq_u32 s3, 0")
    a("s_cbranch_scc0 L_notree")
    a("v_mov_b32 v%d, %s" % (T + 8, f32hex(-3.0e38)))
    a("s_cmp_eq_u32 s23, 0")
    a("s_cbranch_scc0 L_tree1")
    for j in range(4):
        a("v_mfma_f32_16x16x32_bf16 %s, %s, %s, %s" % (vq(ST), vq(KT + 4 * j), vq(Q + 4 * j), "0" if j == 0 else vq(ST)))
    a("s_waitcnt lgkmcnt(0)")
    a("s_lshr_b32 s58, s22, 3")
    a("s_lshl_b32 s58, s58, 4")
    a("s_lshr_b32 s58, s62, s58")
    a("s_lshl_b32 s58, s58, 16")
    a("v_mov_b32 v%d, s58" % (T + 8))
    a("v_sub_f32 v%d, 1.0, v%d" % (T + 8, T + 8))
    a("s_mov_b32 s58, %s" % f32hex(-1e9 / SCALE))
    a("s_nop 3")
    a("v_fma_f32 v%d, v%d, s58, v%d" % (T + 8, T + 8, ST))
    a.label("L_tree1")
    a("v_lshlrev_b32 v%d, 2, v3" % (T + 9))
    a("s_mov_b64 exec, 0xf")
    a("ds_write_b32 v%d, v%d offset:%d" % (T + 9, T + 8, L_ST))
    a("s_mov_b64 exec, -1")
    a.label("L_notree")
    a("v_max3_f32 v%d, v%d, v%d, v%d" % (T, S + 0, S + 1, S + 2))
    a("v_max3_f32 v%d, v%d, v%d, v%d" % (T + 1, S + 3, S + 4, S + 5))
    a("v_max3_f32 v%d, v%d, v%d, v%d" % (T + 2, S + 6, S + 7, S + 8))
    a("v_max3_f32 v%d, v%d, v%d, v%d" % (T + 3, S + 9, S + 10, S + 11))
    a("s_nop 4")
    a("v_max3_f32 v%d, v%d, v%d, v%d" % (T, T, S + 12, S + 13))
    a("v_max3_f32 v%d, v%d, v%d, v%d" % (T + 1, T + 1, S + 14, S + 15))
    a("v_max3_f32 v%d, v%d, v%d, v%d" % (T, T, T + 1, T + 2))
    a("v_max_f32 v%d, v%d, v%d" % (T, T, T + 3))
    def xlane(op, r, t):
        a("v_mov_b32 v%d, v%d" % (t, r))
        a("s_nop 1")
        a("v_permlane32_swap_b32 v%d, v%d" % (r, t))
        a("%s v%d, v%d, v%d" % (op, r, r, t))
        a("v_mov_b32 v%d, v%d" % (t, r))
        a("s_nop 1")
        a("v_permlane16_swap_b32 v%d, v%d" % (r, t))
        a("%s v%d, v%d, v%d" % (op, r, r, t))
    xlane("v_max_f32", T, T + 1)
    a("v_and_b32 v%d, 3, v3" % (T + 10))
    a("v_lshlrev_b32 v%d, 5, v%d" % (T + 2, T + 10))
    a("s_lshl_b32 s58, s3, 2")
    a("v_add_u32 v%d, s58, v%d" % (T + 3, T + 2))
    a("v_lshlrev_b32 v%d, 2, v%d" % (T + 10, T + 10))
    a("s_mov_b64 exec, 0xf")
    a("ds_write_b32 v%d, v%d offset:%d" % (T + 3, T, L_M))
    a("s_mov_b64 exec, -1")
    a("s_waitcnt lgkmcnt(0)")
    a("s_barrier")
    stamp(3)
    a("global_load_ushort v%d, v%d, s[12:13]" % (vVT, vVT))
    a("s_mul_i32 s57, s51, %d" % SSTR)
    a("buffer_load_dword v%d, v%d, s[32:35], s57 offen %s" % (T + 15, vOoff, hs))
    if vsplit < 16 and not v2late: vloads(vsplit, 16)
    a("ds_read_b128 %s, v%d offset:%d" % (vq(T + 4), T + 2, L_M))
    a("ds_read_b128 %s, v%d offset:%d" % (vq(K), T + 2, L_M + 16))
    a("ds_read_b32 v%d, v%d offset:%d" % (T + 8, T + 10, L_ST))
    a("s_mov_b32 s63, %s" % f32hex(C))
    a("s_waitcnt vmcnt(%d)" % (10 if v2late else 18))
    a("v_add_u32 v%d, 1, v%d" % (vNonce, vNonce))
    a("v_and_b32 v%d, 3, v3" % (T + 11))
    a("v_lshlrev_b32 v%d, 3, v%d" % (T + 11, T + 11))
    a("v_lshrrev_b32 v%d, v%d, v%d" % (vTagO, T + 11, vNonce))
    a("v_and_b32 v%d, 0xff, v%d" % (vTagO, vTagO))
    a("v_readfirstlane_b32 s39, v%d" % vNonce)
    a("v_xor_b32 v%d, 0xff, v%d" % (T + 11, vTagO))
    a("v_lshlrev_b32 v%d, 2, v1" % (T + 9))
    a("ds_write_b32 v%d, v%d offset:%d" % (T + 9, T + 11, L_X))
    a("s_waitcnt lgkmcnt(0)")
    a("v_max3_f32 v%d, v%d, v%d, v%d" % (T, T + 4, T + 5, T + 6))
    a("v_max3_f32 v%d, v%d, v%d, v%d" % (T + 1, T + 7, K, K + 1))
    a("v_max3_f32 v%d, v%d, v%d, v%d" % (T, T, K + 2, K + 3))
    a("v_max3_f32 v%d, v%d, v%d, v%d" % (T, T, T + 1, T + 8))
    for r in range(16):
        a("v_sub_f32 v%d, v%d, v%d" % (S + r, S + r, T))
    a("v_sub_f32 v%d, v%d, v%d" % (T + 8, T + 8, T))
    for r in range(16):
        a("v_mul_f32 v%d, s63, v%d" % (S + r, S + r))
    a("v_mul_f32 v%d, s63, v%d" % (T + 8, T + 8))
    for r in range(16):
        a("v_exp_f32 v%d, v%d" % (S + r, S + r))
    a("v_exp_f32 v%d, v%d" % (T + 8, T + 8))
    a("v_mul_f32 v%d, s63, v%d" % (T, T))
    a("v_add_f32 v%d, v%d, v%d" % (T + 1, S + 0, S + 1))
    a("v_add_f32 v%d, v%d, v%d" % (T + 4, S + 2, S + 3))
    for r in range(4, 16, 2):
        a("v_add_f32 v%d, v%d, v%d" % (T + 1, T + 1, S + r))
        a("v_add_f32 v%d, v%d, v%d" % (T + 4, T + 4, S + r + 1))
    a("v_add_f32 v%d, v%d, v%d" % (T + 1, T + 1, T + 4))
    for u in range(2):
        for hq in range(2):
            t = 2 * u + hq
            a("v_cvt_pk_bf16_f32 v%d, v%d, v%d" % (PR + 4 * u + 2 * hq, S + 4 * t, S + 4 * t + 1))
            a("v_cvt_pk_bf16_f32 v%d, v%d, v%d" % (PR + 4 * u + 2 * hq + 1, S + 4 * t + 2, S + 4 * t + 3))
    xlane("v_add_f32", T + 1, T + 4)
    a("s_mov_b64 exec, 0xf")
    a("ds_write_b32 v%d, v%d offset:%d" % (T + 3, T + 1, L_L))
    a("s_cmp_eq_u32 s3, 0")
    a("s_cbranch_scc0 L_nomq")
    a("ds_write_b32 v%d, v%d offset:%d" % (T + 10, T + 8, L_PT))
    a.label("L_nomq")
    a("s_mov_b64 exec, -1")
    for rho in range(4):
        a("s_mov_b32 s40, 0x%08x" % ((0xf << (4 * rho)) * 0x00010001))
        a("s_mov_b32 s41, s40")
        for u in range(2):
            for r in range(4):
                a("v_cndmask_b32 v%d, 0, v%d, s[40:41]" % (PM_ + (u * 4 + rho) * 4 + r, PR + 4 * u + r))
    a("s_waitcnt lgkmcnt(0)")
    a("s_barrier")
    a("v_lshlrev_b32 v%d, 2, v%d" % (T + 9, vHead))
    a("ds_read_b32 v%d, v%d offset:%d" % (vPT, T + 9, L_PT))
    a("s_cmp_eq_u32 s3, 0")
    a("s_cbranch_scc0 L_noml")
    a("ds_read_b128 %s, v%d offset:%d" % (vq(K), T + 2, L_L))
    a("ds_read_b128 %s, v%d offset:%d" % (vq(K + 4), T + 2, L_L + 16))
    a("s_lshl_b32 s61, s51, 6")
    a("s_add_u32 s61, s61, 0x%x" % WS_ML)
    a("s_add_u32 s56, s61, 0x%x" % WS_B)
    a("v_lshlrev_b32 v%d, 4, v3" % (K + 12))
    a("s_waitcnt lgkmcnt(0)")
    a("v_add_f32 v%d, v%d, v%d" % (K, K, K + 1))
    a("v_add_f32 v%d, v%d, v%d" % (K + 2, K + 2, K + 3))
    a("v_add_f32 v%d, v%d, v%d" % (K + 4, K + 4, K + 5))
    a("v_add_f32 v%d, v%d, v%d" % (K + 6, K + 6, K + 7))
    a("v_add_f32 v%d, v%d, v%d" % (K, K, K + 2))
    a("v_add_f32 v%d, v%d, v%d" % (K + 4, K + 4, K + 6))
    a("v_add_f32 v%d, v%d, v%d" % (K, K, K + 4))
    a("v_mov_b32 v%d, v%d" % (K + 8, T))
    a("v_add_f32 v%d, v%d, v%d" % (K + 9, K, T + 8))
    a("v_mov_b32 v%d, v%d" % (K + 10, vNonce))
    a("v_mov_b32 v%d, v%d" % (K + 11, vNonce))
    a("s_mov_b64 exec, 0xf")
    a("buffer_store_dwordx4 %s, v%d, s[32:35], s61 offen" % (vq(K + 8), K + 12))
    a("buffer_store_dwordx4 %s, v%d, s[32:35], s56 offen %s" % (vq(K + 8), K + 12, hs))
    a("s_mov_b64 exec, -1")
    a.label("L_noml")
    if v2late:
        a("s_mov_b32 s56, s58")
        vloads(vsplit, 16)
    a("s_mov_b32 s58, 0x05040100")
    a("s_mov_b32 s59, 0x07060302")
    a("s_mul_i32 s61, s3, %d" % OSTR)
    a("v_lshlrev_b32 v%d, 4, v1" % (T + 5))
    a("v_add_u32 v%d, s61, v%d" % (T + 5, T + 5))
    a("v_lshlrev_b32 v%d, %d, v4" % (T + 6, (2 * OSTR).bit_length() - 1))
    a("v_lshl_add_u32 v%d, v3, 4, v%d" % (T + 6, T + 6))
    a("s_and_b32 s61, s3, 1")
    a("s_lshl_b32 s61, s61, 10")
    a("s_lshr_b32 s56, s3, 1")
    a("s_lshl_b32 s56, s56, 8")
    a("s_add_u32 s61, s61, s56")
    a("v_add_u32 v%d, s61, v%d" % (T + 6, T + 6))
    BT = VT + 12
    def perms(u, r):
        for c in range(4):
            la = V + (u * 8 + 2 * r) * 4 + c
            lb = V + (u * 8 + 2 * r + 1) * 4 + c
            a("v_perm_b32 v%d, v%d, v%d, s58" % (BT + c * 8 + r, lb, la))
            a("v_perm_b32 v%d, v%d, v%d, s59" % (BT + c * 8 + 4 + r, lb, la))
    def mfmas(u):
        for c in range(4):
            for par in range(2):
                a("v_mfma_f32_16x16x32_bf16 %s, %s, %s, %s" % (vq(O + 4 * par), vq(PM_ + (u * 4 + c) * 4), vq(BT + c * 8 + 4 * par), "0" if (u == 0 and c == 0) else vq(O + 4 * par)))
    a("s_waitcnt vmcnt(8)")
    a("s_waitcnt lgkmcnt(0)")
    a("v_lshlrev_b32 v%d, 16, v%d" % (vVT, vVT))
    a("v_mul_f32 v%d, v%d, v%d" % (vPT, vPT, vVT))
    for r in range(4): perms(0, r)
    a("s_nop 1")
    mfmas(0)
    for r in range(4):
        a("s_waitcnt vmcnt(%d)" % (6 - 2 * r))
        if r == 3: stamp(4)
        perms(1, r)
    a("s_nop 1")
    mfmas(1)
    a("s_add_u32 s59, s57, 0x%x" % WS_B)
    a("s_mov_b32 s58, 0xffffff00")
    a("s_nop 5")
    a("ds_write_b128 v%d, %s offset:%d" % (T + 5, vq(O), L_O))
    a("ds_write_b128 v%d, %s offset:%d" % (T + 5, vq(O + 4), L_O + 1024))
    X0, X1, M0, M1 = 84, 88, 92, 96
    B1, B2, F0, F1, LS = 64, 65, 66, 67, 68
    AC = 70
    TT = 74
    def o_loads():
        a("buffer_load_dwordx4 %s, v%d, s[32:35], 0 offen %s" % (vq(X0), vFO, hl))
        a("buffer_load_dwordx4 %s, v%d, s[32:35], s38 offen %s" % (vq(X1), vFO, hl))
    if True:
        a("s_cmp_eq_u32 s3, %d" % fw)
        a("s_cbranch_scc0 L_nomlphase")
        a("buffer_load_dwordx4 %s, v%d, s[32:35], 0 offen %s" % (vq(M0), vFM, hl))
        a("buffer_load_dwordx4 %s, v%d, s[32:35], 0 offen offset:512 %s" % (vq(M1), vFM, hl))
    a.label("L_nomlphase")
    a("s_waitcnt lgkmcnt(0)")
    a("s_barrier")
    stamp(5)
    A = K
    a("ds_read_b128 %s, v%d offset:%d" % (vq(A), T + 6, L_O))
    a("ds_read_b128 %s, v%d offset:%d" % (vq(A + 4), T + 6, L_O + OSTR))
    a("s_waitcnt lgkmcnt(0)")
    for h in range(4):
        a("v_add_f32 v%d, v%d, v%d" % (A + h, A + h, A + 4 + h))
    a("s_nop 0")
    a("v_permlane32_swap_b32 v%d, v%d" % (A, A + 1))
    a("v_permlane32_swap_b32 v%d, v%d" % (A + 2, A + 3))
    a("v_add_f32 v%d, v%d, v%d" % (A, A, A + 1))
    a("v_add_f32 v%d, v%d, v%d" % (A + 2, A + 2, A + 3))
    a("s_nop 1")
    a("v_permlane16_swap_b32 v%d, v%d" % (A, A + 2))
    a("v_add_f32 v%d, v%d, v%d" % (A, A, A + 2))
    a("v_add_f32 v%d, v%d, v%d" % (A, A, vPT))
    a("v_and_or_b32 v%d, v%d, s58, v%d" % (A + 1, A, vTagO))
    a("buffer_store_dword v%d, v%d, s[32:35], s57 offen" % (A + 1, vOoff))
    a("v_lshlrev_b32 v%d, 2, v1" % (A + 2))
    a("s_cmp_eq_u32 s3, %d" % fw)
    a("s_cbranch_scc1 L_final")
    a("buffer_store_dword v%d, v%d, s[32:35], s59 offen %s" % (A + 1, vOoff, hs))
    a("s_cmp_eq_u32 s3, 0")
    a("s_cbranch_scc0 L_pubdone")
    a("s_mov_b32 s54, 0")
    a.label("L_bpoll")
    a("ds_read_b32 v%d, v%d offset:%d" % (A + 3, A + 2, L_X))
    a("s_waitcnt lgkmcnt(0)")
    a("v_xor_b32 v%d, v%d, v%d" % (A + 4, A + 3, vTagO))
    a("v_and_b32 v%d, 0xff, v%d" % (A + 4, A + 4))
    a("v_cmp_ne_u32 vcc, 0, v%d" % (A + 4))
    a("s_cbranch_vccz L_bgo")
    a("s_add_u32 s54, s54, 1")
    a("s_cmp_lt_u32 s54, 0x400000")
    a("s_cbranch_scc1 L_bpoll")
    a.label("L_bgo")
    a("v_add_u32 v%d, %d, v%d" % (A + 5, fw * 256, vOoff))
    a("buffer_store_dword v%d, v%d, s[32:35], s59 offen %s" % (A + 3, A + 5, hs))
    a.label("L_pubdone")
    stamp(6)
    stamp_flush(7)
    a("s_branch L_end")
    a.label("L_final")
    stamp(6)
    a("ds_write_b32 v%d, v%d offset:%d" % (A + 2, A + 1, L_X))
    a("s_and_b32 s40, s39, 0xff")
    a("s_bfe_u32 s41, s39, 0x80008")
    a("s_bfe_u32 s42, s39, 0x80010")
    a("s_lshr_b32 s43, s39, 24")
    a("s_mov_b32 s54, 0")
    a("s_waitcnt vmcnt(1)")
    a("s_branch L_mlchk")
    a.label("L_mlpoll")
    a("buffer_load_dwordx4 %s, v%d, s[32:35], 0 offen %s" % (vq(M0), vFM, hl))
    a("buffer_load_dwordx4 %s, v%d, s[32:35], 0 offen offset:512 %s" % (vq(M1), vFM, hl))
    a("s_waitcnt vmcnt(0)")
    a.label("L_mlchk")
    a("v_xor_b32 v%d, s39, v%d" % (B1, M0 + 2))
    a("v_bitop3_b32 v%d, v%d, s39, v%d bitop3:0xbe" % (B1, M1 + 2, B1))
    a("v_bitop3_b32 v%d, v%d, s39, v%d bitop3:0xbe" % (B1, M0 + 3, B1))
    a("v_bitop3_b32 v%d, v%d, s39, v%d bitop3:0xbe" % (B1, M1 + 3, B1))
    a("v_cmp_ne_u32 vcc, 0, v%d" % B1)
    a("s_cbranch_vccz L_mlok")
    a("s_add_u32 s54, s54, 1")
    a("s_cmp_lt_u32 s54, 0x40000")
    a("s_cbranch_scc0 L_mlok")
    a("s_cmp_lt_u32 s54, %d" % na)
    a("s_cbranch_scc1 L_mlpoll")
    a("v_xor_b32 v%d, 0x%x, v%d" % (vFM, WS_B, vFM))
    a("s_branch L_mlpoll")
    a.label("L_mlok")
    stamp(7)
    Y0, Y1 = 100, 104
    def o_loads2(x0, x1):
        a("buffer_load_dwordx4 %s, v%d, s[32:35], 0 offen %s" % (vq(x0), vFO, hl))
        a("buffer_load_dwordx4 %s, v%d, s[32:35], s38 offen %s" % (vq(x1), vFO, hl))
    def o_check(x0, x1):
        a("v_xor_b32 v%d, s40, v%d" % (B1, x0))
        a("v_xor_b32 v%d, s41, v%d" % (B2, x0 + 1))
        a("v_bitop3_b32 v%d, v%d, s42, v%d bitop3:0xbe" % (B1, x0 + 2, B1))
        a("v_bitop3_b32 v%d, v%d, s43, v%d bitop3:0xbe" % (B2, x0 + 3, B2))
        a("v_bitop3_b32 v%d, v%d, s40, v%d bitop3:0xbe" % (B1, x1, B1))
        a("v_bitop3_b32 v%d, v%d, s41, v%d bitop3:0xbe" % (B2, x1 + 1, B2))
        a("v_bitop3_b32 v%d, v%d, s42, v%d bitop3:0xbe" % (B1, x1 + 2, B1))
        a("v_bitop3_b32 v%d, v%d, s43, v%d bitop3:0xbe" % (B2, x1 + 3, B2))
        a("v_or_b32 v%d, v%d, v%d" % (B1, B1, B2))
        a("v_and_b32 v%d, 0xff, v%d" % (B1, B1))
        a("v_cmp_ne_u32 vcc, 0, v%d" % B1)
    a("v_max_f32 v%d, v%d, v%d" % (F0, M0, M1))
    a("s_mov_b32 s54, 0")
    a("s_nop 0")
    a("v_max_f32_dpp v%d, v%d, v%d row_ror:8 row_mask:0xf bank_mask:0xf" % (F0, F0, F0))
    xlane("v_max_f32", F0, F1)
    a("v_sub_f32 v%d, v%d, v%d" % (F1, M1, F0))
    a("v_sub_f32 v%d, v%d, v%d" % (F0, M0, F0))
    a("v_exp_f32 v%d, v%d" % (F1, F1))
    a("v_exp_f32 v%d, v%d" % (F0, F0))
    if xpos == 0: o_loads2(X0, X1)
    a("s_nop 0")
    a("v_mul_f32 v%d, v%d, v%d" % (LS, F1, M1 + 1))
    a("v_fmac_f32 v%d, v%d, v%d" % (LS, F0, M0 + 1))
    a("s_nop 1")
    a("v_add_f32_dpp v%d, v%d, v%d row_ror:8 row_mask:0xf bank_mask:0xf" % (LS, LS, LS))
    xlane("v_add_f32", LS, TT)
    a("v_rcp_f32 v%d, v%d" % (LS, LS))
    if xpos == 1: o_loads2(X0, X1)
    def final_math(x0, x1):
        for c in range(4):
            a("v_and_b32 v%d, s58, v%d" % (x0 + c, x0 + c))
        for c in range(4):
            a("v_and_b32 v%d, s58, v%d" % (x1 + c, x1 + c))
        for c in range(4):
            a("v_mul_f32 v%d, v%d, v%d" % (AC + c, F0, x0 + c))
        for c in range(4):
            a("v_fmac_f32 v%d, v%d, v%d" % (AC + c, F1, x1 + c))
    if dpoll:
        a("s_sleep %d" % dpoll)
        o_loads2(Y0, Y1)
        a.label("L_owait")
        a("s_waitcnt vmcnt(2)")
        o_check(X0, X1)
        a("s_cbranch_vccz L_xok")
        a("s_add_u32 s54, s54, 1")
        a("s_cmp_lt_u32 s54, 0x40000")
        a("s_cbranch_scc0 L_xok")
        a("s_cmp_lt_u32 s54, %d" % na)
        a("s_cbranch_scc1 L_otog")
        a("v_xor_b32 v%d, 0x%x, v%d" % (vFO, WS_B, vFO))
        a.label("L_otog")
        o_loads2(X0, X1)
        a("s_waitcnt vmcnt(2)")
        o_check(Y0, Y1)
        a("s_cbranch_vccz L_yok")
        o_loads2(Y0, Y1)
        a("s_branch L_owait")
        a.label("L_yok")
        stamp(10)
        final_math(Y0, Y1)
        a("s_branch L_ook")
        a.label("L_xok")
        stamp(10)
        final_math(X0, X1)
    else:
        a.label("L_owait")
        a("s_waitcnt vmcnt(0)")
        o_check(X0, X1)
        a("s_cbranch_vccz L_xok")
        a("s_add_u32 s54, s54, 1")
        a("s_cmp_lt_u32 s54, 0x40000")
        a("s_cbranch_scc0 L_xok")
        a("s_cmp_lt_u32 s54, %d" % na)
        a("s_cbranch_scc1 L_otog")
        a("v_xor_b32 v%d, 0x%x, v%d" % (vFO, WS_B, vFO))
        a.label("L_otog")
        o_loads2(X0, X1)
        a("s_branch L_owait")
        a.label("L_xok")
        stamp(10)
        final_math(X0, X1)
    a.label("L_ook")
    for c in range(4):
        a("v_add_f32_dpp v%d, v%d, v%d row_ror:8 row_mask:0xf bank_mask:0xf" % (AC + c, AC + c, AC + c))
    a("s_nop 0")
    a("v_permlane32_swap_b32 v%d, v%d" % (AC, AC + 1))
    a("v_permlane32_swap_b32 v%d, v%d" % (AC + 2, AC + 3))
    a("v_add_f32 v%d, v%d, v%d" % (AC, AC, AC + 1))
    a("v_add_f32 v%d, v%d, v%d" % (AC + 2, AC + 2, AC + 3))
    a("s_nop 1")
    a("v_permlane16_swap_b32 v%d, v%d" % (AC, AC + 2))
    a("v_add_f32 v%d, v%d, v%d" % (AC, AC, AC + 2))
    a("v_mul_f32 v%d, v%d, v%d" % (AC, AC, LS))
    a("v_cvt_pk_bf16_f32 v%d, v%d, v%d" % (AC, AC, AC))
    a("s_mov_b32 exec_lo, 0x00ff00ff")
    a("s_mov_b32 exec_hi, 0x00ff00ff")
    a("global_store_short v%d, v%d, s[16:17]" % (vFA, AC))
    a("s_cmp_eq_u32 s23, 15")
    a("s_cbranch_scc0 L_now")
    a("s_mov_b64 exec, 1")
    a("buffer_store_dword v%d, off, s[32:35], s60" % vNonce)
    a.label("L_now")
    a("s_mov_b64 exec, -1")
    if stamps:
        stamp(11)
        a("s_waitcnt vmcnt(0)")
    stamp(12)
    if stamps:
        a("s_mov_b32 s82, s54")
        a("s_mov_b32 s83, 0")
    stamp_flush(13)
    a.label("L_end")
    if spin:
        a("s_waitcnt vmcnt(0) lgkmcnt(0)")
        a.label("L_spin")
        a("s_memrealtime s[92:93]")
        a("s_waitcnt lgkmcnt(0)")
        a("s_sub_u32 s94, s92, s90")
        if spinref is not None:
            a("s_sub_u32 s95, s96, s90")
            a("s_sub_u32 s94, s94, s95")
        a("s_cmp_lt_u32 s94, %d" % spin)
        a("s_cbranch_scc1 L_spin")
    a("s_endpgm")
    out = HEADER + "; @launch grid=(256,1,1) block=(512,1,1) lds=%d\n" % LDS
    out += '.amdgcn_target "amdgcn-amd-amdhsa--gfx950"\n.text\n.globl %s_kernel\n.p2align 8\n.type %s_kernel,@function\n%s_kernel:\n' % (NAME, NAME, NAME)
    out += a.text()
    out += """.section .rodata,"a"
.p2align 6
.amdhsa_kernel %s_kernel
  .amdhsa_next_free_vgpr 256
  .amdhsa_next_free_sgpr 100
  .amdhsa_accum_offset 256
  .amdhsa_group_segment_fixed_size 0
  .amdhsa_kernarg_size 72
  .amdhsa_user_sgpr_count 2
  .amdhsa_user_sgpr_kernarg_segment_ptr 1
  .amdhsa_system_sgpr_workgroup_id_x 1
  .amdhsa_float_denorm_mode_32 3
.end_amdhsa_kernel
""" % NAME
    return out

if __name__ == "__main__":
    import argparse
    p = argparse.ArgumentParser()
    p.add_argument("-o", default="cdna_kernels/%s.s" % NAME)
    p.add_argument("--ld", default="nt")
    p.add_argument("--hs", default="sc1")
    p.add_argument("--stamps", action="store_true")
    p.add_argument("--spin", type=int, default=0)
    p.add_argument("--spinref", type=int, default=None)
    p.add_argument("--noibar", action="store_true")
    p.add_argument("--vsplit", type=int, default=8)
    p.add_argument("--cons", type=int, default=15)
    p.add_argument("--nonlocal", dest="nonlocal_", action="store_true")
    p.add_argument("--na", type=int, default=8)
    p.add_argument("--swave", type=int, default=0)
    p.add_argument("--skew", type=int, default=0)
    p.add_argument("--qpos", type=int, default=4)
    p.add_argument("--fw", type=int, default=1)
    p.add_argument("--dpoll", type=int, default=0)
    p.add_argument("--xpos", type=int, default=1)
    p.add_argument("--nomlwarm", action="store_true")
    p.add_argument("--hl", default="sc1")
    p.add_argument("--sstr", type=int, default=2176)
    p.add_argument("--v2early", action="store_true")
    x = p.parse_args()
    open(x.o, "w").write(gen(x.ld, x.hs, x.stamps, x.spin, x.spinref, not x.noibar, x.vsplit, x.cons, not x.nonlocal_, x.na, x.skew, x.swave, x.qpos, x.fw, x.dpoll, x.xpos, not x.nomlwarm, x.hl, not x.v2early, x.sstr))
```

```python
import sys, math, struct
NAME = "standalone__tree_speculative_verify_tree_attention_over_candidate_token_tree__decode"
HEADER = """; Kernarg layout for this problem (72 bytes, ptrs only, base s[0:1]):
"""
def f32hex(x):
    return "0x%08x" % struct.unpack("<I", struct.pack("<f", x))[0]
class Asm:
    def __init__(self): self.lines = []
    def __call__(self, s): self.lines.append("    " + s)
    def label(self, s): self.lines.append(s + ":")
    def c(self, s): self.lines.append("    ; " + s)
    def text(self): return "\n".join(self.lines) + "\n"
def vq(base, n=4): return "v[%d:%d]" % (base, base + n - 1)

def gen(ld="nt", hs="sc1", stamps=False, spin=0, spinref=None, ibar=True, vsplit=8, cons=15, local=True, na=8,
        skew=0, swave=0, qpos=4, fw=1, dpoll=0, xpos=1, mlwarm=True, hl="sc1", v2a=4, sstr=2048):
    a = Asm()
    LOG2E = 1.4426950408889634
    SCALE = 128 ** -0.5
    C = SCALE * LOG2E
    Q, KT, K, V, S, ST, P, O, T = 12, 28, 44, 108, 172, 188, 192, 224, 232
    PM_ = 192
    PR = 28
    VT = K
    KD, KR = 100, 104
    vVoff, vQr, vKToff, vVT, vOoff, vMLoff = 6, 7, 8, 9, 10, 11
    vTagO, vTagM, vHead, vNonce = 248, 249, 250, 251
    vFO, vFM, vFH, vFA = 11, 5, 246, 245
    vPT = 244
    L_M, L_L, L_ST, L_MQ, L_PT, L_Q, L_K = 0, 128, 256, 272, 288, 512, 1536
    L_X = L_Q
    L_O, OSTR = L_K, 16384
    LDS = L_K + 8 * 16384
    WS_ML, WS_W, WS_B = 0xa0000, 0xb0000, 0x100000
    SSTR = sstr
    def stamp(i):
        if spinref == i: a("s_memrealtime s[96:97]")
        if stamps: a("s_memrealtime s[%d:%d]" % (64 + 2 * i, 65 + 2 * i))
    nfl = [0]
    def stamp_flush(n):
        if stamps:
            nfl[0] += 1
            a("s_waitcnt lgkmcnt(0)")
            a("s_cmp_eq_u32 s3, %d" % swave)
            a("s_cbranch_scc0 L_nostamp%d" % nfl[0])
            a("s_lshl_b32 s58, s2, 7")
            a("s_add_u32 s58, s58, 0x1000000")
            a("v_mov_b32 v252, s58")
            a("s_mov_b64 exec, 1")
            for i in range(n):
                a("v_mov_b32 v254, s%d" % (64 + 2 * i))
                a("v_mov_b32 v255, s%d" % (65 + 2 * i))
                a("global_store_dwordx2 v252, v[254:255], s[20:21] offset:%d" % (8 * i))
                a("s_nop 1")
            a("s_mov_b64 exec, -1")
            a.label("L_nostamp%d" % nfl[0])
    stamp(0)
    if spin: a("s_memrealtime s[90:91]")
    a("s_load_dwordx16 s[4:19], s[0:1], 0")
    a("s_load_dwordx2 s[20:21], s[0:1], 64")
    a("s_cmp_ge_u32 s2, 256")
    a("s_cbranch_scc1 L_end")
    if skew:
        a("s_mul_i32 s58, s2, 0x9E3779B1")
        a("s_lshr_b32 s58, s58, 29")
        a("s_mul_i32 s58, s58, %d" % skew)
        a("s_memrealtime s[90:91]")
        a("s_waitcnt lgkmcnt(0)")
        a.label("L_skew")
        a("s_memrealtime s[92:93]")
        a("s_waitcnt lgkmcnt(0)")
        a("s_sub_u32 s94, s92, s90")
        a("s_cmp_lt_u32 s94, s58")
        a("s_cbranch_scc1 L_skew")
    a("v_and_b32 v1, 63, v0")
    a("v_lshrrev_b32 v2, 6, v0")
    a("v_and_b32 v3, 15, v0")
    a("v_bfe_u32 v4, v0, 4, 2")
    a("v_readfirstlane_b32 s3, v2")
    if local:
        a("s_and_b32 s22, s2, 15")
        a("s_lshr_b32 s23, s2, 4")
    else:
        a("s_lshr_b32 s22, s2, 4")
        a("s_and_b32 s23, s2, 15")
    a("s_lshl_b32 s51, s22, 4")
    a("s_add_u32 s51, s51, s23")
    a("s_lshl_b32 s54, s51, 17")
    a("v_lshlrev_b32 v%d, 10, v2" % T)
    a("v_lshlrev_b32 v%d, 2, v4" % (T + 2))
    a("v_xor_b32 v%d, v3, v%d" % (T + 2, T + 2))
    a("v_lshl_add_u32 v%d, v4, 8, v%d" % (T + 3, T))
    for r in range(4):
        a("v_xor_b32 v%d, %d, v%d" % (KD + r, r, T + 2))
        a("v_lshl_add_u32 v%d, v%d, 4, v%d" % (KD + r, KD + r, T + 3))
    a("v_lshlrev_b32 v%d, 4, v1" % vQr)
    a("v_add_u32 v%d, v%d, v%d" % (vVoff, vQr, T))
    a("s_mov_b32 s26, 0x20000")
    a("s_mov_b32 s27, 0x00020000")
    a("s_mov_b32 s30, 0x20000")
    a("s_mov_b32 s31, 0x00020000")
    a("s_mov_b32 s34, 0x200000")
    a("s_mov_b32 s35, 0x00020000")
    a("s_mov_b32 s86, 0x400")
    a("s_mov_b32 s87, 0x00020000")
    a("s_lshl_b32 s52, s22, 10")
    a("s_lshl_b32 s53, s22, 8")
    a("s_lshl_b32 s55, s3, 14")
    a("s_add_u32 s55, s55, %d" % L_K)
    a("s_waitcnt lgkmcnt(0)")
    stamp(1)
    a("s_add_u32 s24, s6, s54")
    a("s_addc_u32 s25, s7, 0")
    a("s_and_b32 s25, s25, 0xffff")
    a("s_add_u32 s84, s4, s52")
    a("s_addc_u32 s85, s5, 0")
    a("s_and_b32 s85, s85, 0xffff")
    a("s_or_b32 s56, s3, s23")
    a("s_cmp_eq_u32 s56, 0")
    a("s_cbranch_scc0 L_nokt")
    a("v_lshlrev_b32 v%d, 4, v4" % vKToff)
    a("v_add_u32 v%d, s53, v%d" % (vKToff, vKToff))
    for j in range(4):
        a("global_load_dwordx4 %s, v%d, s[10:11] offset:%d" % (vq(KT + 4 * j), vKToff, j * 64))
    a.label("L_nokt")
    def qdma():
        a("s_mov_b32 m0, %d" % L_Q)
        a("s_nop 0")
        a("buffer_load_dwordx4 v%d, s[84:87], 0 offen lds" % vQr)
    a("s_mov_b32 s58, 0")
    for i in range(16):
        if i == qpos: qdma()
        if i == 0 or i == qpos:
            a("s_add_u32 m0, s55, %d" % (i * 1024))
            a("s_nop 0")
        a("buffer_load_dwordx4 v%d, s[24:27], s58 offen %s lds" % (KD + (i & 3), ld))
        if i < 15:
            if i + 1 != qpos: a("s_add_u32 m0, m0, 1024")
            a("s_add_u32 s58, s58, 0x2000")
    a("s_add_u32 s28, s8, s54")
    a("s_addc_u32 s29, s9, 0")
    a("s_and_b32 s29, s29, 0xffff")
    a("s_mov_b32 s32, s20")
    a("s_and_b32 s33, s21, 0xffff")
    a("s_load_dword s62, s[14:15], 0")
    a("s_lshl_b32 s58, s22, 7")
    a("s_add_u32 s60, s58, 0x%x" % WS_W)
    a("buffer_load_dword v%d, off, s[32:35], s60 %s" % (vNonce, hs))
    if mlwarm:
        a("s_lshl_b32 s58, s51, 6")
        a("s_add_u32 s58, s58, 0x%x" % WS_ML)
        a("buffer_load_dword v%d, off, s[32:35], s58 %s" % (T + 15, hs))
    if ibar: a("s_barrier")
    def vloads(i0, i1):
        a("s_mov_b32 s58, 0x%x" % (i0 * 0x2000))
        for i in range(i0, i1):
            a("buffer_load_dwordx4 %s, v%d, s[28:31], s58 offen %s" % (vq(V + i * 4), vVoff, ld))
            if i < i1 - 1: a("s_add_u32 s58, s58, 0x2000")
    vloads(0, vsplit)
    a("v_lshlrev_b32 v%d, 8, v2" % vOoff)
    a("v_lshl_add_u32 v%d, v1, 2, v%d" % (vOoff, vOoff))
    a("v_and_b32 v%d, 1, v4" % (T + 8))
    a("v_lshlrev_b32 v%d, 1, v%d" % (T + 8, T + 8))
    a("v_lshrrev_b32 v%d, 1, v4" % (T + 9))
    a("v_or_b32 v%d, v%d, v%d" % (vHead, T + 8, T + 9))
    a("v_lshlrev_b32 v%d, 4, v3" % vVT)
    a("v_lshl_add_u32 v%d, v2, 1, v%d" % (vVT, vVT))
    a("v_add_u32 v%d, s53, v%d" % (vVT, vVT))
    a("v_lshrrev_b32 v%d, 3, v1" % (T + 8))
    a("v_and_b32 v%d, 7, v1" % (T + 9))
    a("s_mul_i32 s36, s22, %d" % (16 * SSTR))
    a("s_lshl_b32 s37, s23, 7")
    a("s_add_u32 s36, s36, s37")
    a("v_mul_u32_u24 v%d, %d, v%d" % (vFO, SSTR, T + 8))
    a("v_lshl_add_u32 v%d, v%d, 4, v%d" % (vFO, T + 9, vFO))
    a("v_add_u32 v%d, s36, v%d" % (vFO, vFO))
    a("v_lshrrev_b32 v%d, 2, v%d" % (vFH, T + 9))
    a("v_lshlrev_b32 v%d, 1, v%d" % (vFH, vFH))
    a("s_and_b32 s37, s23, 1")
    a("v_or_b32 v%d, s37, v%d" % (vFH, vFH))
    a("v_lshlrev_b32 v%d, 6, v%d" % (vFM, T + 8))
    a("v_lshl_add_u32 v%d, v%d, 4, v%d" % (vFM, vFH, vFM))
    a("s_lshl_b32 s37, s22, 10")
    a("s_add_u32 s37, s37, 0x%x" % WS_ML)
    a("v_add_u32 v%d, s37, v%d" % (vFM, vFM))
    a("v_and_b32 v%d, 3, v%d" % (T + 9, T + 9))
    a("v_lshl_add_u32 v%d, v%d, 2, v%d" % (T + 9, T + 9, vHead))
    a("v_lshlrev_b32 v%d, 4, v%d" % (T + 9, T + 9))
    a("v_lshl_add_u32 v%d, v%d, 8, v%d" % (vFA, vFH, T + 9))
    a("s_lshr_b32 s37, s23, 1")
    a("s_lshl_b32 s37, s37, 1")
    a("s_add_u32 s37, s37, s52")
    a("v_add_u32 v%d, s37, v%d" % (vFA, vFA))
    a("s_mov_b32 s38, %d" % (8 * SSTR))
    a("v_and_b32 v%d, 3, v3" % (T + 1))
    a("v_lshlrev_b32 v%d, 14, v2" % (T + 3))
    a("v_lshl_add_u32 v%d, v%d, 10, v%d" % (T + 3, T + 1, T + 3))
    a("v_lshrrev_b32 v%d, 2, v3" % (T + 2))
    a("v_lshl_add_u32 v%d, v%d, 8, v%d" % (T + 3, T + 2, T + 3))
    a("v_xor_b32 v%d, v4, v3" % (T + 2))
    for j in range(4):
        a("v_xor_b32 v%d, %d, v%d" % (KR + j, 4 * j, T + 2))
        a("v_lshl_add_u32 v%d, v%d, 4, v%d" % (KR + j, KR + j, T + 3))
    a("v_lshlrev_b32 v%d, 8, v%d" % (vQr, T + 1))
    a("v_lshl_add_u32 v%d, v4, 4, v%d" % (vQr, vQr))
    def kwait(t):
        last = 4 * t + 3
        younger = 15 - last
        if qpos > last:
            younger = 15 - (qpos - 1) if False else 15 - max(last, qpos - 1)
            younger = (15 - (qpos - 1))
        return younger + 1 + (1 if mlwarm else 0) + vsplit
    for t in range(4):
        a("s_waitcnt vmcnt(%d)" % kwait(t))
        kb = K + (t & 1) * 16
        if t == 0:
            for j in range(4):
                a("ds_read_b128 %s, v%d offset:%d" % (vq(Q + 4 * j), vQr, L_Q + j * 64))
        for j in range(4):
            a("ds_read_b128 %s, v%d offset:%d" % (vq(kb + 4 * j), KR + j, L_K + t * 4096))
        for j in range(4):
            a("s_waitcnt lgkmcnt(%d)" % (3 - j))
            a("v_mfma_f32_16x16x32_bf16 %s, %s, %s, %s" % (vq(S + 4 * t), vq(kb + 4 * j), vq(Q + 4 * j), "0" if j == 0 else vq(S + 4 * t)))
    stamp(2)
    a("s_cmp_eq_u32 s3, 0")
    a("s_cbranch_scc0 L_notree")
    a("v_mov_b32 v%d, %s" % (T + 8, f32hex(-3.0e38)))
    a("s_cmp_eq_u32 s23, 0")
    a("s_cbranch_scc0 L_tree1")
    for j in range(4):
        a("v_mfma_f32_16x16x32_bf16 %s, %s, %s, %s" % (vq(ST), vq(KT + 4 * j), vq(Q + 4 * j), "0" if j == 0 else vq(ST)))
    a("s_waitcnt lgkmcnt(0)")
    a("s_lshr_b32 s58, s22, 3")
    a("s_lshl_b32 s58, s58, 4")
    a("s_lshr_b32 s58, s62, s58")
    a("s_lshl_b32 s58, s58, 16")
    a("v_mov_b32 v%d, s58" % (T + 8))
    a("v_sub_f32 v%d, 1.0, v%d" % (T + 8, T + 8))
    a("s_mov_b32 s58, %s" % f32hex(-1e9 / SCALE))
    a("s_nop 3")
    a("v_fma_f32 v%d, v%d, s58, v%d" % (T + 8, T + 8, ST))
    a.label("L_tree1")
    a("v_lshlrev_b32 v%d, 2, v3" % (T + 9))
    a("s_mov_b64 exec, 0xf")
    a("ds_write_b32 v%d, v%d offset:%d" % (T + 9, T + 8, L_ST))
    a("s_mov_b64 exec, -1")
    a.label("L_notree")
    a("v_max3_f32 v%d, v%d, v%d, v%d" % (T, S + 0, S + 1, S + 2))
    a("v_max3_f32 v%d, v%d, v%d, v%d" % (T + 1, S + 3, S + 4, S + 5))
    a("v_max3_f32 v%d, v%d, v%d, v%d" % (T + 2, S + 6, S + 7, S + 8))
    a("v_max3_f32 v%d, v%d, v%d, v%d" % (T + 3, S + 9, S + 10, S + 11))
    a("s_nop 4")
    a("v_max3_f32 v%d, v%d, v%d, v%d" % (T, T, S + 12, S + 13))
    a("v_max3_f32 v%d, v%d, v%d, v%d" % (T + 1, T + 1, S + 14, S + 15))
    a("v_max3_f32 v%d, v%d, v%d, v%d" % (T, T, T + 1, T + 2))
    a("v_max_f32 v%d, v%d, v%d" % (T, T, T + 3))
    def xlane(op, r, t):
        a("v_mov_b32 v%d, v%d" % (t, r))
        a("s_nop 1")
        a("v_permlane32_swap_b32 v%d, v%d" % (r, t))
        a("%s v%d, v%d, v%d" % (op, r, r, t))
        a("v_mov_b32 v%d, v%d" % (t, r))
        a("s_nop 1")
        a("v_permlane16_swap_b32 v%d, v%d" % (r, t))
        a("%s v%d, v%d, v%d" % (op, r, r, t))
    xlane("v_max_f32", T, T + 1)
    a("v_and_b32 v%d, 3, v3" % (T + 10))
    a("v_lshlrev_b32 v%d, 5, v%d" % (T + 2, T + 10))
    a("s_lshl_b32 s58, s3, 2")
    a("v_add_u32 v%d, s58, v%d" % (T + 3, T + 2))
    a("v_lshlrev_b32 v%d, 2, v%d" % (T + 10, T + 10))
    a("s_mov_b64 exec, 0xf")
    a("ds_write_b32 v%d, v%d offset:%d" % (T + 3, T, L_M))
    a("s_mov_b64 exec, -1")
    a("s_waitcnt lgkmcnt(0)")
    a("s_barrier")
    stamp(3)
    a("global_load_ushort v%d, v%d, s[12:13]" % (vVT, vVT))
    a("s_mul_i32 s57, s51, %d" % SSTR)
    a("buffer_load_dword v%d, v%d, s[32:35], s57 offen %s" % (T + 15, vOoff, hs))
    if vsplit < 16 and v2a > 0: vloads(vsplit, vsplit + v2a)
    a("ds_read_b128 %s, v%d offset:%d" % (vq(T + 4), T + 2, L_M))
    a("ds_read_b128 %s, v%d offset:%d" % (vq(K), T + 2, L_M + 16))
    a("ds_read_b32 v%d, v%d offset:%d" % (T + 8, T + 10, L_ST))
    a("s_mov_b32 s63, %s" % f32hex(C))
    a("s_waitcnt vmcnt(%d)" % (vsplit + 2 + v2a))
    a("v_add_u32 v%d, 1, v%d" % (vNonce, vNonce))
    a("v_and_b32 v%d, 3, v3" % (T + 11))
    a("v_lshlrev_b32 v%d, 3, v%d" % (T + 11, T + 11))
    a("v_lshrrev_b32 v%d, v%d, v%d" % (vTagO, T + 11, vNonce))
    a("v_and_b32 v%d, 0xff, v%d" % (vTagO, vTagO))
    a("v_readfirstlane_b32 s39, v%d" % vNonce)
    a("v_xor_b32 v%d, 0xff, v%d" % (T + 11, vTagO))
    a("v_lshlrev_b32 v%d, 2, v1" % (T + 9))
    a("ds_write_b32 v%d, v%d offset:%d" % (T + 9, T + 11, L_X))
    a("s_waitcnt lgkmcnt(0)")
    a("v_max3_f32 v%d, v%d, v%d, v%d" % (T, T + 4, T + 5, T + 6))
    a("v_max3_f32 v%d, v%d, v%d, v%d" % (T + 1, T + 7, K, K + 1))
    a("v_max3_f32 v%d, v%d, v%d, v%d" % (T, T, K + 2, K + 3))
    a("v_max3_f32 v%d, v%d, v%d, v%d" % (T, T, T + 1, T + 8))
    for r in range(16):
        a("v_sub_f32 v%d, v%d, v%d" % (S + r, S + r, T))
    a("v_sub_f32 v%d, v%d, v%d" % (T + 8, T + 8, T))
    for r in range(16):
        a("v_mul_f32 v%d, s63, v%d" % (S + r, S + r))
    a("v_mul_f32 v%d, s63, v%d" % (T + 8, T + 8))
    for r in range(16):
        a("v_exp_f32 v%d, v%d" % (S + r, S + r))
    a("v_exp_f32 v%d, v%d" % (T + 8, T + 8))
    a("v_mul_f32 v%d, s63, v%d" % (T, T))
    a("v_add_f32 v%d, v%d, v%d" % (T + 1, S + 0, S + 1))
    a("v_add_f32 v%d, v%d, v%d" % (T + 4, S + 2, S + 3))
    for r in range(4, 16, 2):
        a("v_add_f32 v%d, v%d, v%d" % (T + 1, T + 1, S + r))
        a("v_add_f32 v%d, v%d, v%d" % (T + 4, T + 4, S + r + 1))
    a("v_add_f32 v%d, v%d, v%d" % (T + 1, T + 1, T + 4))
    for u in range(2):
        for hq in range(2):
            t = 2 * u + hq
            a("v_cvt_pk_bf16_f32 v%d, v%d, v%d" % (PR + 4 * u + 2 * hq, S + 4 * t, S + 4 * t + 1))
            a("v_cvt_pk_bf16_f32 v%d, v%d, v%d" % (PR + 4 * u + 2 * hq + 1, S + 4 * t + 2, S + 4 * t + 3))
    xlane("v_add_f32", T + 1, T + 4)
    a("s_mov_b64 exec, 0xf")
    a("ds_write_b32 v%d, v%d offset:%d" % (T + 3, T + 1, L_L))
    a("s_cmp_eq_u32 s3, 0")
    a("s_cbranch_scc0 L_nomq")
    a("ds_write_b32 v%d, v%d offset:%d" % (T + 10, T + 8, L_PT))
    a.label("L_nomq")
    a("s_mov_b64 exec, -1")
    for rho in range(4):
        a("s_mov_b32 s40, 0x%08x" % ((0xf << (4 * rho)) * 0x00010001))
        a("s_mov_b32 s41, s40")
        for u in range(2):
            for r in range(4):
                a("v_cndmask_b32 v%d, 0, v%d, s[40:41]" % (PM_ + (u * 4 + rho) * 4 + r, PR + 4 * u + r))
    a("s_waitcnt lgkmcnt(0)")
    a("s_barrier")
    a("v_lshlrev_b32 v%d, 2, v%d" % (T + 9, vHead))
    a("ds_read_b32 v%d, v%d offset:%d" % (vPT, T + 9, L_PT))
    a("s_cmp_eq_u32 s3, 0")
    a("s_cbranch_scc0 L_noml")
    a("ds_read_b128 %s, v%d offset:%d" % (vq(K), T + 2, L_L))
    a("ds_read_b128 %s, v%d offset:%d" % (vq(K + 4), T + 2, L_L + 16))
    a("s_lshl_b32 s61, s51, 6")
    a("s_add_u32 s61, s61, 0x%x" % WS_ML)
    a("s_add_u32 s56, s61, 0x%x" % WS_B)
    a("v_lshlrev_b32 v%d, 4, v3" % (K + 12))
    a("s_waitcnt lgkmcnt(0)")
    a("v_add_f32 v%d, v%d, v%d" % (K, K, K + 1))
    a("v_add_f32 v%d, v%d, v%d" % (K + 2, K + 2, K + 3))
    a("v_add_f32 v%d, v%d, v%d" % (K + 4, K + 4, K + 5))
    a("v_add_f32 v%d, v%d, v%d" % (K + 6, K + 6, K + 7))
    a("v_add_f32 v%d, v%d, v%d" % (K, K, K + 2))
    a("v_add_f32 v%d, v%d, v%d" % (K + 4, K + 4, K + 6))
    a("v_add_f32 v%d, v%d, v%d" % (K, K, K + 4))
    a("v_mov_b32 v%d, v%d" % (K + 8, T))
    a("v_add_f32 v%d, v%d, v%d" % (K + 9, K, T + 8))
    a("v_mov_b32 v%d, v%d" % (K + 10, vNonce))
    a("v_mov_b32 v%d, v%d" % (K + 11, vNonce))
    a("s_mov_b64 exec, 0xf")
    a("buffer_store_dwordx4 %s, v%d, s[32:35], s61 offen" % (vq(K + 8), K + 12))
    a("buffer_store_dwordx4 %s, v%d, s[32:35], s56 offen %s" % (vq(K + 8), K + 12, hs))
    a("s_mov_b64 exec, -1")
    a.label("L_noml")
    if vsplit + v2a < 16:
        vloads(vsplit + v2a, 16)
    a("s_mov_b32 s58, 0x05040100")
    a("s_mov_b32 s59, 0x07060302")
    a("s_mul_i32 s61, s3, %d" % OSTR)
    a("v_lshlrev_b32 v%d, 4, v1" % (T + 5))
    a("v_add_u32 v%d, s61, v%d" % (T + 5, T + 5))
    a("v_lshlrev_b32 v%d, %d, v4" % (T + 6, (2 * OSTR).bit_length() - 1))
    a("v_lshl_add_u32 v%d, v3, 4, v%d" % (T + 6, T + 6))
    a("s_and_b32 s61, s3, 1")
    a("s_lshl_b32 s61, s61, 10")
    a("s_lshr_b32 s56, s3, 1")
    a("s_lshl_b32 s56, s56, 8")
    a("s_add_u32 s61, s61, s56")
    a("v_add_u32 v%d, s61, v%d" % (T + 6, T + 6))
    BT = VT + 12
    def perms(u, r):
        for c in range(4):
            la = V + (u * 8 + 2 * r) * 4 + c
            lb = V + (u * 8 + 2 * r + 1) * 4 + c
            a("v_perm_b32 v%d, v%d, v%d, s58" % (BT + c * 8 + r, lb, la))
            a("v_perm_b32 v%d, v%d, v%d, s59" % (BT + c * 8 + 4 + r, lb, la))
    def mfmas(u):
        for c in range(4):
            for par in range(2):
                a("v_mfma_f32_16x16x32_bf16 %s, %s, %s, %s" % (vq(O + 4 * par), vq(PM_ + (u * 4 + c) * 4), vq(BT + c * 8 + 4 * par), "0" if (u == 0 and c == 0) else vq(O + 4 * par)))
    a("s_waitcnt vmcnt(8)")
    a("s_waitcnt lgkmcnt(0)")
    a("v_lshlrev_b32 v%d, 16, v%d" % (vVT, vVT))
    a("v_mul_f32 v%d, v%d, v%d" % (vPT, vPT, vVT))
    for r in range(4): perms(0, r)
    a("s_nop 1")
    mfmas(0)
    for r in range(4):
        a("s_waitcnt vmcnt(%d)" % (6 - 2 * r))
        if r == 3: stamp(4)
        perms(1, r)
    a("s_nop 1")
    mfmas(1)
    a("s_add_u32 s59, s57, 0x%x" % WS_B)
    a("s_mov_b32 s58, 0xffffff00")
    a("s_nop 5")
    a("ds_write_b128 v%d, %s offset:%d" % (T + 5, vq(O), L_O))
    a("ds_write_b128 v%d, %s offset:%d" % (T + 5, vq(O + 4), L_O + 1024))
    X0, X1, M0, M1 = 84, 88, 92, 96
    B1, B2, F0, F1, LS = 64, 65, 66, 67, 68
    AC = 70
    TT = 74
    def o_loads():
        a("buffer_load_dwordx4 %s, v%d, s[32:35], 0 offen %s" % (vq(X0), vFO, hl))
        a("buffer_load_dwordx4 %s, v%d, s[32:35], s38 offen %s" % (vq(X1), vFO, hl))
    if True:
        a("s_cmp_eq_u32 s3, %d" % fw)
        a("s_cbranch_scc0 L_nomlphase")
        a("buffer_load_dwordx4 %s, v%d, s[32:35], 0 offen %s" % (vq(M0), vFM, hl))
        a("buffer_load_dwordx4 %s, v%d, s[32:35], 0 offen offset:512 %s" % (vq(M1), vFM, hl))
    a.label("L_nomlphase")
    a("s_waitcnt lgkmcnt(0)")
    a("s_barrier")
    stamp(5)
    A = K
    a("ds_read_b128 %s, v%d offset:%d" % (vq(A), T + 6, L_O))
    a("ds_read_b128 %s, v%d offset:%d" % (vq(A + 4), T + 6, L_O + OSTR))
    a("s_waitcnt lgkmcnt(0)")
    for h in range(4):
        a("v_add_f32 v%d, v%d, v%d" % (A + h, A + h, A + 4 + h))
    a("s_nop 0")
    a("v_permlane32_swap_b32 v%d, v%d" % (A, A + 1))
    a("v_permlane32_swap_b32 v%d, v%d" % (A + 2, A + 3))
    a("v_add_f32 v%d, v%d, v%d" % (A, A, A + 1))
    a("v_add_f32 v%d, v%d, v%d" % (A + 2, A + 2, A + 3))
    a("s_nop 1")
    a("v_permlane16_swap_b32 v%d, v%d" % (A, A + 2))
    a("v_add_f32 v%d, v%d, v%d" % (A, A, A + 2))
    a("v_add_f32 v%d, v%d, v%d" % (A, A, vPT))
    a("v_and_or_b32 v%d, v%d, s58, v%d" % (A + 1, A, vTagO))
    a("buffer_store_dword v%d, v%d, s[32:35], s57 offen" % (A + 1, vOoff))
    a("v_lshlrev_b32 v%d, 2, v1" % (A + 2))
    a("s_cmp_eq_u32 s3, %d" % fw)
    a("s_cbranch_scc1 L_final")
    a("buffer_store_dword v%d, v%d, s[32:35], s59 offen %s" % (A + 1, vOoff, hs))
    a("s_cmp_eq_u32 s3, 0")
    a("s_cbranch_scc0 L_pubdone")
    a("s_mov_b32 s54, 0")
    a.label("L_bpoll")
    a("ds_read_b32 v%d, v%d offset:%d" % (A + 3, A + 2, L_X))
    a("s_waitcnt lgkmcnt(0)")
    a("v_xor_b32 v%d, v%d, v%d" % (A + 4, A + 3, vTagO))
    a("v_and_b32 v%d, 0xff, v%d" % (A + 4, A + 4))
    a("v_cmp_ne_u32 vcc, 0, v%d" % (A + 4))
    a("s_cbranch_vccz L_bgo")
    a("s_add_u32 s54, s54, 1")
    a("s_cmp_lt_u32 s54, 0x400000")
    a("s_cbranch_scc1 L_bpoll")
    a.label("L_bgo")
    a("v_add_u32 v%d, %d, v%d" % (A + 5, fw * 256, vOoff))
    a("buffer_store_dword v%d, v%d, s[32:35], s59 offen %s" % (A + 3, A + 5, hs))
    a.label("L_pubdone")
    stamp(6)
    stamp_flush(7)
    a("s_branch L_end")
    a.label("L_final")
    stamp(6)
    a("ds_write_b32 v%d, v%d offset:%d" % (A + 2, A + 1, L_X))
    a("s_and_b32 s40, s39, 0xff")
    a("s_bfe_u32 s41, s39, 0x80008")
    a("s_bfe_u32 s42, s39, 0x80010")
    a("s_lshr_b32 s43, s39, 24")
    a("s_mov_b32 s54, 0")
    a("s_waitcnt vmcnt(1)")
    a("s_branch L_mlchk")
    a.label("L_mlpoll")
    a("buffer_load_dwordx4 %s, v%d, s[32:35], 0 offen %s" % (vq(M0), vFM, hl))
    a("buffer_load_dwordx4 %s, v%d, s[32:35], 0 offen offset:512 %s" % (vq(M1), vFM, hl))
    a("s_waitcnt vmcnt(0)")
    a.label("L_mlchk")
    a("v_xor_b32 v%d, s39, v%d" % (B1, M0 + 2))
    a("v_bitop3_b32 v%d, v%d, s39, v%d bitop3:0xbe" % (B1, M1 + 2, B1))
    a("v_bitop3_b32 v%d, v%d, s39, v%d bitop3:0xbe" % (B1, M0 + 3, B1))
    a("v_bitop3_b32 v%d, v%d, s39, v%d bitop3:0xbe" % (B1, M1 + 3, B1))
    a("v_cmp_ne_u32 vcc, 0, v%d" % B1)
    a("s_cbranch_vccz L_mlok")
    a("s_add_u32 s54, s54, 1")
    a("s_cmp_lt_u32 s54, 0x40000")
    a("s_cbranch_scc0 L_mlok")
    a("s_cmp_lt_u32 s54, %d" % na)
    a("s_cbranch_scc1 L_mlpoll")
    a("v_xor_b32 v%d, 0x%x, v%d" % (vFM, WS_B, vFM))
    a("s_branch L_mlpoll")
    a.label("L_mlok")
    stamp(7)
    Y0, Y1 = 100, 104
    def o_loads2(x0, x1):
        a("buffer_load_dwordx4 %s, v%d, s[32:35], 0 offen %s" % (vq(x0), vFO, hl))
        a("buffer_load_dwordx4 %s, v%d, s[32:35], s38 offen %s" % (vq(x1), vFO, hl))
    def o_check(x0, x1):
        a("v_xor_b32 v%d, s40, v%d" % (B1, x0))
        a("v_xor_b32 v%d, s41, v%d" % (B2, x0 + 1))
        a("v_bitop3_b32 v%d, v%d, s42, v%d bitop3:0xbe" % (B1, x0 + 2, B1))
        a("v_bitop3_b32 v%d, v%d, s43, v%d bitop3:0xbe" % (B2, x0 + 3, B2))
        a("v_bitop3_b32 v%d, v%d, s40, v%d bitop3:0xbe" % (B1, x1, B1))
        a("v_bitop3_b32 v%d, v%d, s41, v%d bitop3:0xbe" % (B2, x1 + 1, B2))
        a("v_bitop3_b32 v%d, v%d, s42, v%d bitop3:0xbe" % (B1, x1 + 2, B1))
        a("v_bitop3_b32 v%d, v%d, s43, v%d bitop3:0xbe" % (B2, x1 + 3, B2))
        a("v_or_b32 v%d, v%d, v%d" % (B1, B1, B2))
        a("v_and_b32 v%d, 0xff, v%d" % (B1, B1))
        a("v_cmp_ne_u32 vcc, 0, v%d" % B1)
    a("v_max_f32 v%d, v%d, v%d" % (F0, M0, M1))
    a("s_mov_b32 s54, 0")
    a("s_nop 0")
    a("v_max_f32_dpp v%d, v%d, v%d row_ror:8 row_mask:0xf bank_mask:0xf" % (F0, F0, F0))
    xlane("v_max_f32", F0, F1)
    a("v_sub_f32 v%d, v%d, v%d" % (F1, M1, F0))
    a("v_sub_f32 v%d, v%d, v%d" % (F0, M0, F0))
    a("v_exp_f32 v%d, v%d" % (F1, F1))
    a("v_exp_f32 v%d, v%d" % (F0, F0))
    if xpos == 0: o_loads2(X0, X1)
    a("s_nop 0")
    a("v_mul_f32 v%d, v%d, v%d" % (LS, F1, M1 + 1))
    a("v_fmac_f32 v%d, v%d, v%d" % (LS, F0, M0 + 1))
    a("s_nop 1")
    a("v_add_f32_dpp v%d, v%d, v%d row_ror:8 row_mask:0xf bank_mask:0xf" % (LS, LS, LS))
    xlane("v_add_f32", LS, TT)
    a("v_rcp_f32 v%d, v%d" % (LS, LS))
    if xpos == 1: o_loads2(X0, X1)
    def final_math(x0, x1):
        for c in range(4):
            a("v_and_b32 v%d, s58, v%d" % (x0 + c, x0 + c))
        for c in range(4):
            a("v_and_b32 v%d, s58, v%d" % (x1 + c, x1 + c))
        for c in range(4):
            a("v_mul_f32 v%d, v%d, v%d" % (AC + c, F0, x0 + c))
        for c in range(4):
            a("v_fmac_f32 v%d, v%d, v%d" % (AC + c, F1, x1 + c))
    if dpoll:
        a("s_sleep %d" % dpoll)
        o_loads2(Y0, Y1)
        a.label("L_owait")
        a("s_waitcnt vmcnt(2)")
        o_check(X0, X1)
        a("s_cbranch_vccz L_xok")
        a("s_add_u32 s54, s54, 1")
        a("s_cmp_lt_u32 s54, 0x40000")
        a("s_cbranch_scc0 L_xok")
        a("s_cmp_lt_u32 s54, %d" % na)
        a("s_cbranch_scc1 L_otog")
        a("v_xor_b32 v%d, 0x%x, v%d" % (vFO, WS_B, vFO))
        a.label("L_otog")
        o_loads2(X0, X1)
        a("s_waitcnt vmcnt(2)")
        o_check(Y0, Y1)
        a("s_cbranch_vccz L_yok")
        o_loads2(Y0, Y1)
        a("s_branch L_owait")
        a.label("L_yok")
        stamp(10)
        final_math(Y0, Y1)
        a("s_branch L_ook")
        a.label("L_xok")
        stamp(10)
        final_math(X0, X1)
    else:
        a.label("L_owait")
        a("s_waitcnt vmcnt(0)")
        o_check(X0, X1)
        a("s_cbranch_vccz L_xok")
        a("s_add_u32 s54, s54, 1")
        a("s_cmp_lt_u32 s54, 0x40000")
        a("s_cbranch_scc0 L_xok")
        a("s_cmp_lt_u32 s54, %d" % na)
        a("s_cbranch_scc1 L_otog")
        a("v_xor_b32 v%d, 0x%x, v%d" % (vFO, WS_B, vFO))
        a.label("L_otog")
        o_loads2(X0, X1)
        a("s_branch L_owait")
        a.label("L_xok")
        stamp(10)
        final_math(X0, X1)
    a.label("L_ook")
    for c in range(4):
        a("v_add_f32_dpp v%d, v%d, v%d row_ror:8 row_mask:0xf bank_mask:0xf" % (AC + c, AC + c, AC + c))
    a("s_nop 0")
    a("v_permlane32_swap_b32 v%d, v%d" % (AC, AC + 1))
    a("v_permlane32_swap_b32 v%d, v%d" % (AC + 2, AC + 3))
    a("v_add_f32 v%d, v%d, v%d" % (AC, AC, AC + 1))
    a("v_add_f32 v%d, v%d, v%d" % (AC + 2, AC + 2, AC + 3))
    a("s_nop 1")
    a("v_permlane16_swap_b32 v%d, v%d" % (AC, AC + 2))
    a("v_add_f32 v%d, v%d, v%d" % (AC, AC, AC + 2))
    a("v_mul_f32 v%d, v%d, v%d" % (AC, AC, LS))
    a("v_cvt_pk_bf16_f32 v%d, v%d, v%d" % (AC, AC, AC))
    a("s_mov_b32 exec_lo, 0x00ff00ff")
    a("s_mov_b32 exec_hi, 0x00ff00ff")
    a("global_store_short v%d, v%d, s[16:17]" % (vFA, AC))
    a("s_cmp_eq_u32 s23, 15")
    a("s_cbranch_scc0 L_now")
    a("s_mov_b64 exec, 1")
    a("buffer_store_dword v%d, off, s[32:35], s60" % vNonce)
    a.label("L_now")
    a("s_mov_b64 exec, -1")
    if stamps:
        stamp(11)
        a("s_waitcnt vmcnt(0)")
    stamp(12)
    if stamps:
        a("s_mov_b32 s82, s54")
        a("s_mov_b32 s83, 0")
    stamp_flush(13)
    a.label("L_end")
    if spin:
        a("s_waitcnt vmcnt(0) lgkmcnt(0)")
        a.label("L_spin")
        a("s_memrealtime s[92:93]")
        a("s_waitcnt lgkmcnt(0)")
        a("s_sub_u32 s94, s92, s90")
        if spinref is not None:
            a("s_sub_u32 s95, s96, s90")
            a("s_sub_u32 s94, s94, s95")
        a("s_cmp_lt_u32 s94, %d" % spin)
        a("s_cbranch_scc1 L_spin")
    a("s_endpgm")
    out = HEADER + "; @launch grid=(256,1,1) block=(512,1,1) lds=%d\n" % LDS
    out += '.amdgcn_target "amdgcn-amd-amdhsa--gfx950"\n.text\n.globl %s_kernel\n.p2align 8\n.type %s_kernel,@function\n%s_kernel:\n' % (NAME, NAME, NAME)
    out += a.text()
    out += """.section .rodata,"a"
.p2align 6
.amdhsa_kernel %s_kernel
  .amdhsa_next_free_vgpr 256
  .amdhsa_next_free_sgpr 100
  .amdhsa_accum_offset 256
  .amdhsa_group_segment_fixed_size 0
  .amdhsa_kernarg_size 72
  .amdhsa_user_sgpr_count 2
  .amdhsa_user_sgpr_kernarg_segment_ptr 1
  .amdhsa_system_sgpr_workgroup_id_x 1
  .amdhsa_float_denorm_mode_32 3
.end_amdhsa_kernel
""" % NAME
    return out

if __name__ == "__main__":
    import argparse
    p = argparse.ArgumentParser()
    p.add_argument("-o", default="cdna_kernels/%s.s" % NAME)
    p.add_argument("--ld", default="nt")
    p.add_argument("--hs", default="sc1")
    p.add_argument("--stamps", action="store_true")
    p.add_argument("--spin", type=int, default=0)
    p.add_argument("--spinref", type=int, default=None)
    p.add_argument("--noibar", action="store_true")
    p.add_argument("--vsplit", type=int, default=8)
    p.add_argument("--cons", type=int, default=15)
    p.add_argument("--nonlocal", dest="nonlocal_", action="store_true")
    p.add_argument("--na", type=int, default=8)
    p.add_argument("--swave", type=int, default=0)
    p.add_argument("--skew", type=int, default=0)
    p.add_argument("--qpos", type=int, default=4)
    p.add_argument("--fw", type=int, default=1)
    p.add_argument("--dpoll", type=int, default=0)
    p.add_argument("--xpos", type=int, default=1)
    p.add_argument("--nomlwarm", action="store_true")
    p.add_argument("--hl", default="sc1")
    p.add_argument("--sstr", type=int, default=2048)
    p.add_argument("--v2a", type=int, default=4)
    x = p.parse_args()
    open(x.o, "w").write(gen(x.ld, x.hs, x.stamps, x.spin, x.spinref, not x.noibar, x.vsplit, x.cons, not x.nonlocal_, x.na, x.skew, x.swave, x.qpos, x.fw, x.dpoll, x.xpos, not x.nomlwarm, x.hl, x.v2a, x.sstr))
```

```python
import sys, math, struct
NAME = "standalone__tree_speculative_verify_tree_attention_over_candidate_token_tree__decode"
HEADER = """; Kernarg layout for this problem (72 bytes, ptrs only, base s[0:1]):
"""
def f32hex(x):
    return "0x%08x" % struct.unpack("<I", struct.pack("<f", x))[0]
class Asm:
    def __init__(self): self.lines = []
    def __call__(self, s): self.lines.append("    " + s)
    def label(self, s): self.lines.append(s + ":")
    def c(self, s): self.lines.append("    ; " + s)
    def text(self): return "\n".join(self.lines) + "\n"
def vq(base, n=4): return "v[%d:%d]" % (base, base + n - 1)

def gen(ld="nt", hs="sc1", stamps=False, spin=0, spinref=None, ibar=True, vsplit=8, cons=15, local=True, na=8,
        skew=0, swave=0, qpos=4, fw=1, dpoll=0, xpos=1, mlwarm=True, hl="sc1", v2a=4, sstr=2048):
    a = Asm()
    LOG2E = 1.4426950408889634
    SCALE = 128 ** -0.5
    C = SCALE * LOG2E
    Q, KT, K = 12, 28, 44
    PR = 28
    KD, KR = 76, 80
    VD, vTR0, vTR1, vPW, vPR = 84, 86, 87, 88, 89
    S, ST = 92, 108
    PF = 112
    VF = 176
    D0, D1 = 208, 212
    T = 232
    vQr, vKToff, vVT, vOoff = 7, 8, 9, 10
    vTagO, vHead, vNonce = 248, 250, 251
    vFO, vFM, vFH, vFA = 11, 5, 246, 245
    vPT = 244
    L_M, L_L, L_ST, L_PT, L_Q, L_P, L_K = 0, 128, 256, 288, 512, 1536, 5632
    L_X = L_Q
    LDS = L_K + 8 * 16384
    WS_ML, WS_W, WS_B = 0xa0000, 0xb0000, 0x100000
    SSTR = sstr
    def stamp(i):
        if spinref == i: a("s_memrealtime s[96:97]")
        if stamps: a("s_memrealtime s[%d:%d]" % (64 + 2 * i, 65 + 2 * i))
    nfl = [0]
    def stamp_flush(n):
        if stamps:
            nfl[0] += 1
            a("s_waitcnt lgkmcnt(0)")
            a("s_cmp_eq_u32 s3, %d" % swave)
            a("s_cbranch_scc0 L_nostamp%d" % nfl[0])
            a("s_lshl_b32 s58, s2, 7")
            a("s_add_u32 s58, s58, 0x1000000")
            a("v_mov_b32 v252, s58")
            a("s_mov_b64 exec, 1")
            for i in range(n):
                a("v_mov_b32 v254, s%d" % (64 + 2 * i))
                a("v_mov_b32 v255, s%d" % (65 + 2 * i))
                a("global_store_dwordx2 v252, v[254:255], s[20:21] offset:%d" % (8 * i))
                a("s_nop 1")
            a("s_mov_b64 exec, -1")
            a.label("L_nostamp%d" % nfl[0])
    stamp(0)
    if spin: a("s_memrealtime s[90:91]")
    a("s_load_dwordx16 s[4:19], s[0:1], 0")
    a("s_load_dwordx2 s[20:21], s[0:1], 64")
    a("s_cmp_ge_u32 s2, 256")
    a("s_cbranch_scc1 L_end")
    if skew:
        a("s_mul_i32 s58, s2, 0x9E3779B1")
        a("s_lshr_b32 s58, s58, 29")
        a("s_mul_i32 s58, s58, %d" % skew)
        a("s_memrealtime s[90:91]")
        a("s_waitcnt lgkmcnt(0)")
        a.label("L_skew")
        a("s_memrealtime s[92:93]")
        a("s_waitcnt lgkmcnt(0)")
        a("s_sub_u32 s94, s92, s90")
        a("s_cmp_lt_u32 s94, s58")
        a("s_cbranch_scc1 L_skew")
    a("v_and_b32 v1, 63, v0")
    a("v_lshrrev_b32 v2, 6, v0")
    a("v_and_b32 v3, 15, v0")
    a("v_bfe_u32 v4, v0, 4, 2")
    a("v_readfirstlane_b32 s3, v2")
    if local:
        a("s_and_b32 s22, s2, 15")
        a("s_lshr_b32 s23, s2, 4")
    else:
        a("s_lshr_b32 s22, s2, 4")
        a("s_and_b32 s23, s2, 15")
    a("s_lshl_b32 s51, s22, 4")
    a("s_add_u32 s51, s51, s23")
    a("s_lshl_b32 s54, s51, 17")
    a("v_lshlrev_b32 v%d, 10, v2" % T)
    a("v_lshlrev_b32 v%d, 2, v4" % (T + 2))
    a("v_xor_b32 v%d, v3, v%d" % (T + 2, T + 2))
    a("v_lshl_add_u32 v%d, v4, 8, v%d" % (T + 3, T))
    for r in range(4):
        a("v_xor_b32 v%d, %d, v%d" % (KD + r, r, T + 2))
        a("v_lshl_add_u32 v%d, v%d, 4, v%d" % (KD + r, KD + r, T + 3))
    a("v_lshlrev_b32 v%d, 4, v1" % vQr)
    a("s_mov_b32 s26, 0x20000")
    a("s_mov_b32 s27, 0x00020000")
    a("s_mov_b32 s30, 0x20000")
    a("s_mov_b32 s31, 0x00020000")
    a("s_mov_b32 s34, 0x200000")
    a("s_mov_b32 s35, 0x00020000")
    a("s_mov_b32 s86, 0x400")
    a("s_mov_b32 s87, 0x00020000")
    a("s_lshl_b32 s52, s22, 10")
    a("s_lshl_b32 s53, s22, 8")
    a("s_lshl_b32 s55, s3, 14")
    a("s_add_u32 s55, s55, %d" % L_K)
    a("s_waitcnt lgkmcnt(0)")
    stamp(1)
    a("s_add_u32 s24, s6, s54")
    a("s_addc_u32 s25, s7, 0")
    a("s_and_b32 s25, s25, 0xffff")
    a("s_add_u32 s84, s4, s52")
    a("s_addc_u32 s85, s5, 0")
    a("s_and_b32 s85, s85, 0xffff")
    a("s_or_b32 s56, s3, s23")
    a("s_cmp_eq_u32 s56, 0")
    a("s_cbranch_scc0 L_nokt")
    a("v_lshlrev_b32 v%d, 4, v4" % vKToff)
    a("v_add_u32 v%d, s53, v%d" % (vKToff, vKToff))
    for j in range(4):
        a("global_load_dwordx4 %s, v%d, s[10:11] offset:%d" % (vq(KT + 4 * j), vKToff, j * 64))
    a.label("L_nokt")
    def qdma():
        a("s_mov_b32 m0, %d" % L_Q)
        a("s_nop 0")
        a("buffer_load_dwordx4 v%d, s[84:87], 0 offen lds" % vQr)
    a("s_mov_b32 s58, 0")
    for i in range(16):
        if i == qpos: qdma()
        if i == 0 or i == qpos:
            a("s_add_u32 m0, s55, %d" % (i * 1024))
            a("s_nop 0")
        a("buffer_load_dwordx4 v%d, s[24:27], s58 offen %s lds" % (KD + (i & 3), ld))
        if i < 15:
            if i + 1 != qpos: a("s_add_u32 m0, m0, 1024")
            a("s_add_u32 s58, s58, 0x2000")
    a("s_add_u32 s28, s8, s54")
    a("s_addc_u32 s29, s9, 0")
    a("s_and_b32 s29, s29, 0xffff")
    a("s_mov_b32 s32, s20")
    a("s_and_b32 s33, s21, 0xffff")
    a("s_load_dword s62, s[14:15], 0")
    a("s_lshl_b32 s58, s22, 7")
    a("s_add_u32 s60, s58, 0x%x" % WS_W)
    a("buffer_load_dword v%d, off, s[32:35], s60 %s" % (vNonce, hs))
    if mlwarm:
        a("s_lshl_b32 s58, s51, 6")
        a("s_add_u32 s58, s58, 0x%x" % WS_ML)
        a("buffer_load_dword v%d, off, s[32:35], s58 %s" % (T + 15, hs))
    if ibar: a("s_barrier")
    def vloads(i0, i1):
        a("s_add_u32 m0, s55, %d" % (i0 * 1024))
        a("s_mov_b32 s58, 0x%x" % (i0 * 0x2000))
        for i in range(i0, i1):
            a("buffer_load_dwordx4 v%d, s[28:31], s58 offen %s lds" % (VD + (i & 1), ld))
            if i < i1 - 1:
                a("s_add_u32 m0, m0, 1024")
                a("s_add_u32 s58, s58, 0x2000")
    a("v_lshlrev_b32 v%d, 8, v2" % vOoff)
    a("v_lshl_add_u32 v%d, v1, 2, v%d" % (vOoff, vOoff))
    a("v_and_b32 v%d, 1, v4" % (T + 8))
    a("v_lshlrev_b32 v%d, 1, v%d" % (T + 9, T + 8))
    a("v_lshrrev_b32 v%d, 1, v4" % (T + 10))
    a("v_or_b32 v%d, v%d, v%d" % (vHead, T + 9, T + 10))
    a("v_lshlrev_b32 v%d, 1, v3" % vVT)
    a("v_lshl_add_u32 v%d, v2, 5, v%d" % (vVT, vVT))
    a("v_add_u32 v%d, s53, v%d" % (vVT, vVT))
    a("v_and_b32 v%d, 1, v2" % (T + 9))
    a("v_lshlrev_b32 v%d, 2, v%d" % (T + 9, T + 9))
    a("v_lshl_add_u32 v%d, v%d, 3, v%d" % (T + 9, T + 8, T + 9))
    a("v_xor_b32 v%d, v3, v%d" % (T + 9, T + 9))
    a("v_lshlrev_b32 v%d, 10, v2" % (T + 10))
    a("v_lshl_add_u32 v%d, v4, 8, v%d" % (T + 10, T + 10))
    a("v_lshl_add_u32 v%d, v%d, 4, v%d" % (VD, T + 9, T + 10))
    a("v_xor_b32 v%d, 2, v%d" % (T + 9, T + 9))
    a("v_lshl_add_u32 v%d, v%d, 4, v%d" % (VD + 1, T + 9, T + 10))
    a("v_lshrrev_b32 v%d, 2, v3" % (T + 9))
    a("v_lshlrev_b32 v%d, 1, v%d" % (T + 10, T + 9))
    a("v_lshl_add_u32 v%d, v%d, 3, v%d" % (T + 10, T + 8, T + 10))
    a("v_bfe_u32 v%d, v3, 1, 1" % (T + 11))
    a("v_lshl_add_u32 v%d, v2, 1, v%d" % (T + 11, T + 11))
    a("v_xor_b32 v%d, v%d, v%d" % (T + 10, T + 10, T + 11))
    a("v_lshlrev_b32 v%d, 4, v%d" % (vTR0, T + 10))
    a("v_and_b32 v%d, 1, v3" % (T + 11))
    a("v_lshl_add_u32 v%d, v%d, 3, v%d" % (vTR0, T + 11, vTR0))
    a("v_lshl_add_u32 v%d, v4, 8, v%d" % (vTR0, vTR0))
    a("v_and_b32 v%d, 1, v%d" % (T + 11, T + 9))
    a("v_lshl_add_u32 v%d, v%d, 10, v%d" % (vTR0, T + 11, vTR0))
    a("v_lshrrev_b32 v%d, 1, v%d" % (T + 11, T + 9))
    a("v_lshl_add_u32 v%d, v%d, 14, v%d" % (vTR0, T + 11, vTR0))
    a("v_add_u32 v%d, 0x10000, v%d" % (vTR1, vTR0))
    a("v_lshlrev_b32 v%d, 6, v4" % vPR)
    a("v_lshl_add_u32 v%d, v3, 4, v%d" % (vPW, vPR))
    a("v_lshl_add_u32 v%d, v%d, 4, v%d" % (vPR, T + 9, vPR))
    a("s_lshr_b32 s36, s3, 2")
    a("s_lshl_b32 s36, s36, 8")
    a("s_and_b32 s37, s3, 3")
    a("s_lshl_b32 s37, s37, 2")
    a("s_add_u32 s36, s36, s37")
    a("v_add_u32 v%d, s36, v%d" % (vPW, vPW))
    a("v_lshrrev_b32 v%d, 3, v1" % (T + 8))
    a("v_and_b32 v%d, 7, v1" % (T + 9))
    a("s_mul_i32 s36, s22, %d" % (16 * SSTR))
    a("s_lshl_b32 s37, s23, 7")
    a("s_add_u32 s36, s36, s37")
    a("v_mul_u32_u24 v%d, %d, v%d" % (vFO, SSTR, T + 8))
    a("v_lshl_add_u32 v%d, v%d, 4, v%d" % (vFO, T + 9, vFO))
    a("v_add_u32 v%d, s36, v%d" % (vFO, vFO))
    a("v_lshrrev_b32 v%d, 2, v%d" % (vFH, T + 9))
    a("s_and_b32 s37, s23, 1")
    a("s_lshl_b32 s37, s37, 1")
    a("v_add_u32 v%d, s37, v%d" % (vFH, vFH))
    a("v_lshlrev_b32 v%d, 6, v%d" % (vFM, T + 8))
    a("v_lshl_add_u32 v%d, v%d, 4, v%d" % (vFM, vFH, vFM))
    a("s_lshl_b32 s37, s22, 10")
    a("s_add_u32 s37, s37, 0x%x" % WS_ML)
    a("v_add_u32 v%d, s37, v%d" % (vFM, vFM))
    a("v_and_b32 v%d, 3, v%d" % (T + 9, T + 9))
    a("v_lshl_add_u32 v%d, v%d, 2, v%d" % (T + 9, T + 9, vHead))
    a("v_lshlrev_b32 v%d, 1, v%d" % (T + 9, T + 9))
    a("v_lshl_add_u32 v%d, v%d, 8, v%d" % (vFA, vFH, T + 9))
    a("s_lshr_b32 s37, s23, 1")
    a("s_lshl_b32 s37, s37, 5")
    a("s_add_u32 s37, s37, s52")
    a("v_add_u32 v%d, s37, v%d" % (vFA, vFA))
    a("s_mov_b32 s38, %d" % (8 * SSTR))
    a("v_and_b32 v%d, 3, v3" % (T + 1))
    a("v_lshlrev_b32 v%d, 14, v2" % (T + 3))
    a("v_lshl_add_u32 v%d, v%d, 10, v%d" % (T + 3, T + 1, T + 3))
    a("v_lshrrev_b32 v%d, 2, v3" % (T + 2))
    a("v_lshl_add_u32 v%d, v%d, 8, v%d" % (T + 3, T + 2, T + 3))
    a("v_xor_b32 v%d, v4, v3" % (T + 2))
    for j in range(4):
        a("v_xor_b32 v%d, %d, v%d" % (KR + j, 4 * j, T + 2))
        a("v_lshl_add_u32 v%d, v%d, 4, v%d" % (KR + j, KR + j, T + 3))
    a("v_lshlrev_b32 v%d, 8, v%d" % (vQr, T + 1))
    a("v_lshl_add_u32 v%d, v4, 4, v%d" % (vQr, vQr))
    def kwait(t):
        last = 4 * t + 3
        younger = 15 - last
        if qpos > last:
            younger = 15 - (qpos - 1) if False else 15 - max(last, qpos - 1)
            younger = (15 - (qpos - 1))
        return younger + 1 + (1 if mlwarm else 0)
    for t in range(4):
        a("s_waitcnt vmcnt(%d)" % kwait(t))
        kb = K + (t & 1) * 16
        if t == 0:
            for j in range(4):
                a("ds_read_b128 %s, v%d offset:%d" % (vq(Q + 4 * j), vQr, L_Q + j * 64))
        for j in range(4):
            a("ds_read_b128 %s, v%d offset:%d" % (vq(kb + 4 * j), KR + j, L_K + t * 4096))
        for j in range(4):
            a("s_waitcnt lgkmcnt(%d)" % (3 - j))
            a("v_mfma_f32_16x16x32_bf16 %s, %s, %s, %s" % (vq(S + 4 * t), vq(kb + 4 * j), vq(Q + 4 * j), "0" if j == 0 else vq(S + 4 * t)))
    vloads(0, 8)
    stamp(2)
    a("s_cmp_eq_u32 s3, 0")
    a("s_cbranch_scc0 L_notree")
    a("v_mov_b32 v%d, %s" % (T + 8, f32hex(-3.0e38)))
    a("s_cmp_eq_u32 s23, 0")
    a("s_cbranch_scc0 L_tree1")
    for j in range(4):
        a("v_mfma_f32_16x16x32_bf16 %s, %s, %s, %s" % (vq(ST), vq(KT + 4 * j), vq(Q + 4 * j), "0" if j == 0 else vq(ST)))
    a("s_waitcnt lgkmcnt(0)")
    a("s_lshr_b32 s58, s22, 3")
    a("s_lshl_b32 s58, s58, 4")
    a("s_lshr_b32 s58, s62, s58")
    a("s_lshl_b32 s58, s58, 16")
    a("v_mov_b32 v%d, s58" % (T + 8))
    a("v_sub_f32 v%d, 1.0, v%d" % (T + 8, T + 8))
    a("s_mov_b32 s58, %s" % f32hex(-1e9 / SCALE))
    a("s_nop 3")
    a("v_fma_f32 v%d, v%d, s58, v%d" % (T + 8, T + 8, ST))
    a.label("L_tree1")
    a("v_lshlrev_b32 v%d, 2, v3" % (T + 9))
    a("s_mov_b64 exec, 0xf")
    a("ds_write_b32 v%d, v%d offset:%d" % (T + 9, T + 8, L_ST))
    a("s_mov_b64 exec, -1")
    a.label("L_notree")
    a("v_max3_f32 v%d, v%d, v%d, v%d" % (T, S + 0, S + 1, S + 2))
    a("v_max3_f32 v%d, v%d, v%d, v%d" % (T + 1, S + 3, S + 4, S + 5))
    a("v_max3_f32 v%d, v%d, v%d, v%d" % (T + 2, S + 6, S + 7, S + 8))
    a("v_max3_f32 v%d, v%d, v%d, v%d" % (T + 3, S + 9, S + 10, S + 11))
    a("s_nop 4")
    a("v_max3_f32 v%d, v%d, v%d, v%d" % (T, T, S + 12, S + 13))
    a("v_max3_f32 v%d, v%d, v%d, v%d" % (T + 1, T + 1, S + 14, S + 15))
    a("v_max3_f32 v%d, v%d, v%d, v%d" % (T, T, T + 1, T + 2))
    a("v_max_f32 v%d, v%d, v%d" % (T, T, T + 3))
    def xlane(op, r, t):
        a("v_mov_b32 v%d, v%d" % (t, r))
        a("s_nop 1")
        a("v_permlane32_swap_b32 v%d, v%d" % (r, t))
        a("%s v%d, v%d, v%d" % (op, r, r, t))
        a("v_mov_b32 v%d, v%d" % (t, r))
        a("s_nop 1")
        a("v_permlane16_swap_b32 v%d, v%d" % (r, t))
        a("%s v%d, v%d, v%d" % (op, r, r, t))
    xlane("v_max_f32", T, T + 1)
    a("v_and_b32 v%d, 3, v3" % (T + 10))
    a("v_lshlrev_b32 v%d, 5, v%d" % (T + 2, T + 10))
    a("s_lshl_b32 s58, s3, 2")
    a("v_add_u32 v%d, s58, v%d" % (T + 3, T + 2))
    a("v_lshlrev_b32 v%d, 2, v%d" % (T + 10, T + 10))
    a("s_mov_b64 exec, 0xf")
    a("ds_write_b32 v%d, v%d offset:%d" % (T + 3, T, L_M))
    a("s_mov_b64 exec, -1")
    a("s_waitcnt lgkmcnt(0)")
    a("s_barrier")
    stamp(3)
    a("global_load_ushort v%d, v%d, s[12:13]" % (vVT, vVT))
    a("s_mul_i32 s57, s51, %d" % SSTR)
    a("buffer_load_dword v%d, v%d, s[32:35], s57 offen %s" % (T + 15, vOoff, hs))
    vloads(8, 12)
    a("ds_read_b128 %s, v%d offset:%d" % (vq(T + 4), T + 2, L_M))
    a("ds_read_b128 %s, v%d offset:%d" % (vq(K), T + 2, L_M + 16))
    a("ds_read_b32 v%d, v%d offset:%d" % (T + 8, T + 10, L_ST))
    a("s_mov_b32 s63, %s" % f32hex(C))
    a("s_waitcnt vmcnt(14)")
    a("v_add_u32 v%d, 1, v%d" % (vNonce, vNonce))
    a("v_and_b32 v%d, 3, v3" % (T + 11))
    a("v_lshlrev_b32 v%d, 3, v%d" % (T + 11, T + 11))
    a("v_lshrrev_b32 v%d, v%d, v%d" % (vTagO, T + 11, vNonce))
    a("v_and_b32 v%d, 0xff, v%d" % (vTagO, vTagO))
    a("v_readfirstlane_b32 s39, v%d" % vNonce)
    a("v_xor_b32 v%d, 0xff, v%d" % (T + 11, vTagO))
    a("v_lshlrev_b32 v%d, 2, v1" % (T + 9))
    a("ds_write_b32 v%d, v%d offset:%d" % (T + 9, T + 11, L_X))
    a("s_waitcnt lgkmcnt(0)")
    a("v_max3_f32 v%d, v%d, v%d, v%d" % (T, T + 4, T + 5, T + 6))
    a("v_max3_f32 v%d, v%d, v%d, v%d" % (T + 1, T + 7, K, K + 1))
    a("v_max3_f32 v%d, v%d, v%d, v%d" % (T, T, K + 2, K + 3))
    a("v_max3_f32 v%d, v%d, v%d, v%d" % (T, T, T + 1, T + 8))
    for r in range(16):
        a("v_sub_f32 v%d, v%d, v%d" % (S + r, S + r, T))
    a("v_sub_f32 v%d, v%d, v%d" % (T + 8, T + 8, T))
    for r in range(16):
        a("v_mul_f32 v%d, s63, v%d" % (S + r, S + r))
    a("v_mul_f32 v%d, s63, v%d" % (T + 8, T + 8))
    for r in range(16):
        a("v_exp_f32 v%d, v%d" % (S + r, S + r))
    a("v_exp_f32 v%d, v%d" % (T + 8, T + 8))
    a("v_mul_f32 v%d, s63, v%d" % (T, T))
    a("v_add_f32 v%d, v%d, v%d" % (T + 1, S + 0, S + 1))
    a("v_add_f32 v%d, v%d, v%d" % (T + 4, S + 2, S + 3))
    for r in range(4, 16, 2):
        a("v_add_f32 v%d, v%d, v%d" % (T + 1, T + 1, S + r))
        a("v_add_f32 v%d, v%d, v%d" % (T + 4, T + 4, S + r + 1))
    a("v_add_f32 v%d, v%d, v%d" % (T + 1, T + 1, T + 4))
    for u in range(2):
        for hq in range(2):
            t = 2 * u + hq
            a("v_cvt_pk_bf16_f32 v%d, v%d, v%d" % (PR + 4 * u + 2 * hq, S + 4 * t, S + 4 * t + 1))
            a("v_cvt_pk_bf16_f32 v%d, v%d, v%d" % (PR + 4 * u + 2 * hq + 1, S + 4 * t + 2, S + 4 * t + 3))
    xlane("v_add_f32", T + 1, T + 4)
    a("s_mov_b64 exec, 0xf")
    a("ds_write_b32 v%d, v%d offset:%d" % (T + 3, T + 1, L_L))
    a("s_cmp_eq_u32 s3, 0")
    a("s_cbranch_scc0 L_nomq")
    a("ds_write_b32 v%d, v%d offset:%d" % (T + 10, T + 8, L_PT))
    a.label("L_nomq")
    a("s_mov_b64 exec, -1")
    a("s_mov_b32 exec_lo, 0x000f000f")
    a("s_mov_b32 exec_hi, 0x000f000f")
    for c in range(8):
        a("ds_write_b32 v%d, v%d offset:%d" % (vPW, PR + c, L_P + c * 512))
    a("s_mov_b64 exec, -1")
    a("s_waitcnt lgkmcnt(0)")
    a("s_barrier")
    a("v_lshlrev_b32 v%d, 2, v4" % (T + 9))
    a("ds_read_b32 v%d, v%d offset:%d" % (vPT, T + 9, L_PT))
    a("s_cmp_eq_u32 s3, 0")
    a("s_cbranch_scc0 L_noml")
    a("ds_read_b128 %s, v%d offset:%d" % (vq(K), T + 2, L_L))
    a("ds_read_b128 %s, v%d offset:%d" % (vq(K + 4), T + 2, L_L + 16))
    a("s_lshl_b32 s61, s51, 6")
    a("s_add_u32 s61, s61, 0x%x" % WS_ML)
    a("s_add_u32 s56, s61, 0x%x" % WS_B)
    a("v_lshlrev_b32 v%d, 4, v3" % (K + 12))
    a("s_waitcnt lgkmcnt(0)")
    a("v_add_f32 v%d, v%d, v%d" % (K, K, K + 1))
    a("v_add_f32 v%d, v%d, v%d" % (K + 2, K + 2, K + 3))
    a("v_add_f32 v%d, v%d, v%d" % (K + 4, K + 4, K + 5))
    a("v_add_f32 v%d, v%d, v%d" % (K + 6, K + 6, K + 7))
    a("v_add_f32 v%d, v%d, v%d" % (K, K, K + 2))
    a("v_add_f32 v%d, v%d, v%d" % (K + 4, K + 4, K + 6))
    a("v_add_f32 v%d, v%d, v%d" % (K, K, K + 4))
    a("v_mov_b32 v%d, v%d" % (K + 8, T))
    a("v_add_f32 v%d, v%d, v%d" % (K + 9, K, T + 8))
    a("v_mov_b32 v%d, v%d" % (K + 10, vNonce))
    a("v_mov_b32 v%d, v%d" % (K + 11, vNonce))
    a("s_mov_b64 exec, 0xf")
    a("buffer_store_dwordx4 %s, v%d, s[32:35], s61 offen" % (vq(K + 8), K + 12))
    a("buffer_store_dwordx4 %s, v%d, s[32:35], s56 offen %s" % (vq(K + 8), K + 12, hs))
    a("s_mov_b64 exec, -1")
    a.label("L_noml")
    vloads(12, 16)
    for c in range(8):
        if c == 5: a("s_waitcnt lgkmcnt(4)")
        for bq in range(2):
            a("ds_read_b128 %s, v%d offset:%d" % (vq(PF + (c * 2 + bq) * 4), vPR, L_P + c * 512 + bq * 256))
    def tr_reads(c, bq, q):
        base = vTR0 if bq == 0 else vTR1
        a("ds_read_b64_tr_b16 %s, v%d offset:%d" % (vq(VF + 4 * q, 2), base, L_K + c * 2048))
        a("ds_read_b64_tr_b16 %s, v%d offset:%d" % (vq(VF + 4 * q + 2, 2), base, L_K + c * 2048 + 32768))
    def pv_mfma(c, bq, q):
        d = D0 if bq == 0 else D1
        a("v_mfma_f32_16x16x32_bf16 %s, %s, %s, %s" % (vq(d), vq(PF + (c * 2 + bq) * 4), vq(VF + 4 * q), "0" if c == 0 else vq(d)))
    def pv_group(chunks):
        blocks = [(c, bq) for c in chunks for bq in range(2)]
        for b0 in range(0, len(blocks), 4):
            batch = blocks[b0:b0 + 4]
            for q, (c, bq) in enumerate(batch): tr_reads(c, bq, q + 4 * ((b0 // 4) & 1))
            for q, (c, bq) in enumerate(batch):
                a("s_waitcnt lgkmcnt(%d)" % (2 * (len(batch) - 1 - q)))
                pv_mfma(c, bq, q + 4 * ((b0 // 4) & 1))
    X0, X1, M0, M1 = 52, 56, 60, 64
    B1, B2, F0, F1, LS, TT = 68, 69, 70, 71, 72, 73
    AC = 76
    a("s_waitcnt vmcnt(10) lgkmcnt(0)")
    a("s_barrier")
    pv_group([0, 1, 2, 3])
    a("s_waitcnt vmcnt(4)")
    a("v_lshlrev_b32 v%d, 16, v%d" % (vVT, vVT))
    a("v_mul_f32 v%d, v%d, v%d" % (vPT, vPT, vVT))
    a("s_barrier")
    pv_group([4, 5])
    a("s_waitcnt vmcnt(2)")
    a("s_barrier")
    pv_group([6])
    a("s_add_u32 s59, s57, 0x%x" % WS_B)
    a("s_mov_b32 s58, 0xffffff00")
    a("s_waitcnt vmcnt(0)")
    stamp(4)
    a("s_cmp_eq_u32 s3, %d" % fw)
    a("s_cbranch_scc0 L_nomlphase")
    a("buffer_load_dwordx4 %s, v%d, s[32:35], 0 offen %s" % (vq(M0), vFM, hl))
    a("buffer_load_dwordx4 %s, v%d, s[32:35], 0 offen offset:512 %s" % (vq(M1), vFM, hl))
    a.label("L_nomlphase")
    a("s_barrier")
    stamp(5)
    pv_group([7])
    A = K
    a("v_lshlrev_b32 v%d, 2, v1" % (A + 2))
    a("s_nop 6")
    a("v_add_f32 v%d, v%d, v%d" % (A, D0, D1))
    a("v_add_f32 v%d, v%d, v%d" % (A, A, vPT))
    a("v_and_or_b32 v%d, v%d, s58, v%d" % (A + 1, A, vTagO))
    a("buffer_store_dword v%d, v%d, s[32:35], s57 offen" % (A + 1, vOoff))
    a("s_cmp_eq_u32 s3, %d" % fw)
    a("s_cbranch_scc1 L_final")
    a("buffer_store_dword v%d, v%d, s[32:35], s59 offen %s" % (A + 1, vOoff, hs))
    a("s_cmp_eq_u32 s3, 0")
    a("s_cbranch_scc0 L_pubdone")
    a("s_mov_b32 s54, 0")
    a.label("L_bpoll")
    a("ds_read_b32 v%d, v%d offset:%d" % (A + 3, A + 2, L_X))
    a("s_waitcnt lgkmcnt(0)")
    a("v_xor_b32 v%d, v%d, v%d" % (A + 4, A + 3, vTagO))
    a("v_and_b32 v%d, 0xff, v%d" % (A + 4, A + 4))
    a("v_cmp_ne_u32 vcc, 0, v%d" % (A + 4))
    a("s_cbranch_vccz L_bgo")
    a("s_add_u32 s54, s54, 1")
    a("s_cmp_lt_u32 s54, 0x400000")
    a("s_cbranch_scc1 L_bpoll")
    a.label("L_bgo")
    a("v_add_u32 v%d, %d, v%d" % (A + 5, fw * 256, vOoff))
    a("buffer_store_dword v%d, v%d, s[32:35], s59 offen %s" % (A + 3, A + 5, hs))
    a.label("L_pubdone")
    stamp(6)
    stamp_flush(7)
    a("s_branch L_end")
    a.label("L_final")
    stamp(6)
    a("ds_write_b32 v%d, v%d offset:%d" % (A + 2, A + 1, L_X))
    a("s_and_b32 s40, s39, 0xff")
    a("s_bfe_u32 s41, s39, 0x80008")
    a("s_bfe_u32 s42, s39, 0x80010")
    a("s_lshr_b32 s43, s39, 24")
    a("s_mov_b32 s54, 0")
    a("s_waitcnt vmcnt(1)")
    a("s_branch L_mlchk")
    a.label("L_mlpoll")
    a("buffer_load_dwordx4 %s, v%d, s[32:35], 0 offen %s" % (vq(M0), vFM, hl))
    a("buffer_load_dwordx4 %s, v%d, s[32:35], 0 offen offset:512 %s" % (vq(M1), vFM, hl))
    a("s_waitcnt vmcnt(0)")
    a.label("L_mlchk")
    a("v_xor_b32 v%d, s39, v%d" % (B1, M0 + 2))
    a("v_bitop3_b32 v%d, v%d, s39, v%d bitop3:0xbe" % (B1, M1 + 2, B1))
    a("v_bitop3_b32 v%d, v%d, s39, v%d bitop3:0xbe" % (B1, M0 + 3, B1))
    a("v_bitop3_b32 v%d, v%d, s39, v%d bitop3:0xbe" % (B1, M1 + 3, B1))
    a("v_cmp_ne_u32 vcc, 0, v%d" % B1)
    a("s_cbranch_vccz L_mlok")
    a("s_add_u32 s54, s54, 1")
    a("s_cmp_lt_u32 s54, 0x40000")
    a("s_cbranch_scc0 L_mlok")
    a("s_cmp_lt_u32 s54, %d" % na)
    a("s_cbranch_scc1 L_mlpoll")
    a("v_xor_b32 v%d, 0x%x, v%d" % (vFM, WS_B, vFM))
    a("s_branch L_mlpoll")
    a.label("L_mlok")
    stamp(7)
    Y0, Y1 = 100, 104
    def o_loads2(x0, x1):
        a("buffer_load_dwordx4 %s, v%d, s[32:35], 0 offen %s" % (vq(x0), vFO, hl))
        a("buffer_load_dwordx4 %s, v%d, s[32:35], s38 offen %s" % (vq(x1), vFO, hl))
    def o_check(x0, x1):
        a("v_xor_b32 v%d, s40, v%d" % (B1, x0))
        a("v_xor_b32 v%d, s41, v%d" % (B2, x0 + 1))
        a("v_bitop3_b32 v%d, v%d, s42, v%d bitop3:0xbe" % (B1, x0 + 2, B1))
        a("v_bitop3_b32 v%d, v%d, s43, v%d bitop3:0xbe" % (B2, x0 + 3, B2))
        a("v_bitop3_b32 v%d, v%d, s40, v%d bitop3:0xbe" % (B1, x1, B1))
        a("v_bitop3_b32 v%d, v%d, s41, v%d bitop3:0xbe" % (B2, x1 + 1, B2))
        a("v_bitop3_b32 v%d, v%d, s42, v%d bitop3:0xbe" % (B1, x1 + 2, B1))
        a("v_bitop3_b32 v%d, v%d, s43, v%d bitop3:0xbe" % (B2, x1 + 3, B2))
        a("v_or_b32 v%d, v%d, v%d" % (B1, B1, B2))
        a("v_and_b32 v%d, 0xff, v%d" % (B1, B1))
        a("v_cmp_ne_u32 vcc, 0, v%d" % B1)
    a("v_max_f32 v%d, v%d, v%d" % (F0, M0, M1))
    a("s_mov_b32 s54, 0")
    a("s_nop 0")
    a("v_max_f32_dpp v%d, v%d, v%d row_ror:8 row_mask:0xf bank_mask:0xf" % (F0, F0, F0))
    xlane("v_max_f32", F0, F1)
    a("v_sub_f32 v%d, v%d, v%d" % (F1, M1, F0))
    a("v_sub_f32 v%d, v%d, v%d" % (F0, M0, F0))
    a("v_exp_f32 v%d, v%d" % (F1, F1))
    a("v_exp_f32 v%d, v%d" % (F0, F0))
    if xpos == 0: o_loads2(X0, X1)
    a("s_nop 0")
    a("v_mul_f32 v%d, v%d, v%d" % (LS, F1, M1 + 1))
    a("v_fmac_f32 v%d, v%d, v%d" % (LS, F0, M0 + 1))
    a("s_nop 1")
    a("v_add_f32_dpp v%d, v%d, v%d row_ror:8 row_mask:0xf bank_mask:0xf" % (LS, LS, LS))
    xlane("v_add_f32", LS, TT)
    a("v_rcp_f32 v%d, v%d" % (LS, LS))
    if xpos == 1: o_loads2(X0, X1)
    def final_math(x0, x1):
        for c in range(4):
            a("v_and_b32 v%d, s58, v%d" % (x0 + c, x0 + c))
        for c in range(4):
            a("v_and_b32 v%d, s58, v%d" % (x1 + c, x1 + c))
        for c in range(4):
            a("v_mul_f32 v%d, v%d, v%d" % (AC + c, F0, x0 + c))
        for c in range(4):
            a("v_fmac_f32 v%d, v%d, v%d" % (AC + c, F1, x1 + c))
    if dpoll:
        a("s_sleep %d" % dpoll)
        o_loads2(Y0, Y1)
        a.label("L_owait")
        a("s_waitcnt vmcnt(2)")
        o_check(X0, X1)
        a("s_cbranch_vccz L_xok")
        a("s_add_u32 s54, s54, 1")
        a("s_cmp_lt_u32 s54, 0x40000")
        a("s_cbranch_scc0 L_xok")
        a("s_cmp_lt_u32 s54, %d" % na)
        a("s_cbranch_scc1 L_otog")
        a("v_xor_b32 v%d, 0x%x, v%d" % (vFO, WS_B, vFO))
        a.label("L_otog")
        o_loads2(X0, X1)
        a("s_waitcnt vmcnt(2)")
        o_check(Y0, Y1)
        a("s_cbranch_vccz L_yok")
        o_loads2(Y0, Y1)
        a("s_branch L_owait")
        a.label("L_yok")
        stamp(10)
        final_math(Y0, Y1)
        a("s_branch L_ook")
        a.label("L_xok")
        stamp(10)
        final_math(X0, X1)
    else:
        a.label("L_owait")
        a("s_waitcnt vmcnt(0)")
        o_check(X0, X1)
        a("s_cbranch_vccz L_xok")
        a("s_add_u32 s54, s54, 1")
        a("s_cmp_lt_u32 s54, 0x40000")
        a("s_cbranch_scc0 L_xok")
        a("s_cmp_lt_u32 s54, %d" % na)
        a("s_cbranch_scc1 L_otog")
        a("v_xor_b32 v%d, 0x%x, v%d" % (vFO, WS_B, vFO))
        a.label("L_otog")
        o_loads2(X0, X1)
        a("s_branch L_owait")
        a.label("L_xok")
        stamp(10)
        final_math(X0, X1)
    a.label("L_ook")
    for c in range(4):
        a("v_add_f32_dpp v%d, v%d, v%d row_ror:8 row_mask:0xf bank_mask:0xf" % (AC + c, AC + c, AC + c))
    a("s_nop 0")
    a("v_permlane32_swap_b32 v%d, v%d" % (AC, AC + 1))
    a("v_permlane32_swap_b32 v%d, v%d" % (AC + 2, AC + 3))
    a("v_add_f32 v%d, v%d, v%d" % (AC, AC, AC + 1))
    a("v_add_f32 v%d, v%d, v%d" % (AC + 2, AC + 2, AC + 3))
    a("s_nop 1")
    a("v_permlane16_swap_b32 v%d, v%d" % (AC, AC + 2))
    a("v_add_f32 v%d, v%d, v%d" % (AC, AC, AC + 2))
    a("v_mul_f32 v%d, v%d, v%d" % (AC, AC, LS))
    a("v_cvt_pk_bf16_f32 v%d, v%d, v%d" % (AC, AC, AC))
    a("s_mov_b32 exec_lo, 0x00ff00ff")
    a("s_mov_b32 exec_hi, 0x00ff00ff")
    a("global_store_short v%d, v%d, s[16:17]" % (vFA, AC))
    a("s_cmp_eq_u32 s23, 15")
    a("s_cbranch_scc0 L_now")
    a("s_mov_b64 exec, 1")
    a("buffer_store_dword v%d, off, s[32:35], s60" % vNonce)
    a.label("L_now")
    a("s_mov_b64 exec, -1")
    if stamps:
        stamp(11)
        a("s_waitcnt vmcnt(0)")
    stamp(12)
    if stamps:
        a("s_mov_b32 s82, s54")
        a("s_mov_b32 s83, 0")
    stamp_flush(13)
    a.label("L_end")
    if spin:
        a("s_waitcnt vmcnt(0) lgkmcnt(0)")
        a.label("L_spin")
        a("s_memrealtime s[92:93]")
        a("s_waitcnt lgkmcnt(0)")
        a("s_sub_u32 s94, s92, s90")
        if spinref is not None:
            a("s_sub_u32 s95, s96, s90")
            a("s_sub_u32 s94, s94, s95")
        a("s_cmp_lt_u32 s94, %d" % spin)
        a("s_cbranch_scc1 L_spin")
    a("s_endpgm")
    out = HEADER + "; @launch grid=(256,1,1) block=(512,1,1) lds=%d\n" % LDS
    out += '.amdgcn_target "amdgcn-amd-amdhsa--gfx950"\n.text\n.globl %s_kernel\n.p2align 8\n.type %s_kernel,@function\n%s_kernel:\n' % (NAME, NAME, NAME)
    out += a.text()
    out += """.section .rodata,"a"
.p2align 6
.amdhsa_kernel %s_kernel
  .amdhsa_next_free_vgpr 256
  .amdhsa_next_free_sgpr 100
  .amdhsa_accum_offset 256
  .amdhsa_group_segment_fixed_size 0
  .amdhsa_kernarg_size 72
  .amdhsa_user_sgpr_count 2
  .amdhsa_user_sgpr_kernarg_segment_ptr 1
  .amdhsa_system_sgpr_workgroup_id_x 1
  .amdhsa_float_denorm_mode_32 3
.end_amdhsa_kernel
""" % NAME
    return out

if __name__ == "__main__":
    import argparse
    p = argparse.ArgumentParser()
    p.add_argument("-o", default="cdna_kernels/%s.s" % NAME)
    p.add_argument("--ld", default="nt")
    p.add_argument("--hs", default="sc1")
    p.add_argument("--stamps", action="store_true")
    p.add_argument("--spin", type=int, default=0)
    p.add_argument("--spinref", type=int, default=None)
    p.add_argument("--noibar", action="store_true")
    p.add_argument("--vsplit", type=int, default=8)
    p.add_argument("--cons", type=int, default=15)
    p.add_argument("--nonlocal", dest="nonlocal_", action="store_true")
    p.add_argument("--na", type=int, default=8)
    p.add_argument("--swave", type=int, default=0)
    p.add_argument("--skew", type=int, default=0)
    p.add_argument("--qpos", type=int, default=4)
    p.add_argument("--fw", type=int, default=1)
    p.add_argument("--dpoll", type=int, default=0)
    p.add_argument("--xpos", type=int, default=1)
    p.add_argument("--nomlwarm", action="store_true")
    p.add_argument("--hl", default="sc1")
    p.add_argument("--sstr", type=int, default=2048)
    p.add_argument("--v2a", type=int, default=4)
    x = p.parse_args()
    open(x.o, "w").write(gen(x.ld, x.hs, x.stamps, x.spin, x.spinref, not x.noibar, x.vsplit, x.cons, not x.nonlocal_, x.na, x.skew, x.swave, x.qpos, x.fw, x.dpoll, x.xpos, not x.nomlwarm, x.hl, x.v2a, x.sstr))
```

```python
import sys, math, struct
NAME = "standalone__tree_speculative_verify_tree_attention_over_candidate_token_tree__decode"
HEADER = """; Kernarg layout for this problem (72 bytes, ptrs only, base s[0:1]):
"""
def f32hex(x):
    return "0x%08x" % struct.unpack("<I", struct.pack("<f", x))[0]
class Asm:
    def __init__(self): self.lines = []
    def __call__(self, s): self.lines.append("    " + s)
    def label(self, s): self.lines.append(s + ":")
    def c(self, s): self.lines.append("    ; " + s)
    def text(self): return "\n".join(self.lines) + "\n"
def vq(base, n=4): return "v[%d:%d]" % (base, base + n - 1)

def gen(ld="nt", hs="sc1", stamps=False, spin=0, spinref=None, ibar=1, vsplit=8, cons=15, local=True, na=8,
        skew=0, swave=0, qpos=4, fw=1, dpoll=0, xpos=1, mlwarm=True, hl="sc1", v2a=4, sstr=2048, kslim=True, vdelay=0, vwarm=False, npipe=3, early0=True):
    a = Asm()
    LOG2E = 1.4426950408889634
    SCALE = 128 ** -0.5
    C = SCALE * LOG2E
    Q, KT, K = 12, 28, 44
    PR = 28
    KD, KR = 76, 80
    VD, vTR0, vTR1, vPW, vPR = 84, 86, 87, 88, 89
    S, ST = 92, 108
    PF = 112
    VF = 176
    D0, D1 = 208, 212
    T = 232
    vQr, vKToff, vVT, vOoff = 7, 8, 9, 10
    vTagO, vHead, vNonce = 248, 250, 251
    vFO, vFM, vFH, vFA = 11, 5, 246, 245
    vPT = 244
    L_M, L_L, L_ST, L_PT, L_Q, L_P, L_K = 0, 128, 256, 288, 512, 1536, 5632
    L_X = L_Q
    LDS = L_K + 8 * 16384
    WS_ML, WS_W, WS_B = 0xa0000, 0xb0000, 0x100000
    SSTR = sstr
    def stamp(i):
        if spinref == i: a("s_memrealtime s[96:97]")
        if stamps: a("s_memrealtime s[%d:%d]" % (64 + 2 * i, 65 + 2 * i))
    nfl = [0]
    def stamp_flush(n):
        if stamps:
            nfl[0] += 1
            a("s_waitcnt lgkmcnt(0)")
            a("s_cmp_eq_u32 s3, %d" % swave)
            a("s_cbranch_scc0 L_nostamp%d" % nfl[0])
            a("s_lshl_b32 s58, s2, 7")
            a("s_add_u32 s58, s58, 0x1000000")
            a("v_mov_b32 v252, s58")
            a("s_mov_b64 exec, 1")
            for i in range(n):
                a("v_mov_b32 v254, s%d" % (64 + 2 * i))
                a("v_mov_b32 v255, s%d" % (65 + 2 * i))
                a("global_store_dwordx2 v252, v[254:255], s[20:21] offset:%d" % (8 * i))
                a("s_nop 1")
            a("s_mov_b64 exec, -1")
            a.label("L_nostamp%d" % nfl[0])
    stamp(0)
    if spin: a("s_memrealtime s[90:91]")
    a("s_load_dwordx16 s[4:19], s[0:1], 0")
    a("s_load_dwordx2 s[20:21], s[0:1], 64")
    a("s_cmp_ge_u32 s2, 256")
    a("s_cbranch_scc1 L_end")
    if skew:
        a("s_mul_i32 s58, s2, 0x9E3779B1")
        a("s_lshr_b32 s58, s58, 29")
        a("s_mul_i32 s58, s58, %d" % skew)
        a("s_memrealtime s[90:91]")
        a("s_waitcnt lgkmcnt(0)")
        a.label("L_skew")
        a("s_memrealtime s[92:93]")
        a("s_waitcnt lgkmcnt(0)")
        a("s_sub_u32 s94, s92, s90")
        a("s_cmp_lt_u32 s94, s58")
        a("s_cbranch_scc1 L_skew")
    a("v_and_b32 v1, 63, v0")
    a("v_lshrrev_b32 v2, 6, v0")
    a("v_and_b32 v3, 15, v0")
    a("v_bfe_u32 v4, v0, 4, 2")
    a("v_readfirstlane_b32 s3, v2")
    if local:
        a("s_and_b32 s22, s2, 15")
        a("s_lshr_b32 s23, s2, 4")
    else:
        a("s_lshr_b32 s22, s2, 4")
        a("s_and_b32 s23, s2, 15")
    a("s_lshl_b32 s51, s22, 4")
    a("s_add_u32 s51, s51, s23")
    a("s_lshl_b32 s54, s51, 17")
    a("v_lshlrev_b32 v%d, 10, v2" % T)
    a("v_lshlrev_b32 v%d, 2, v4" % (T + 2))
    a("v_xor_b32 v%d, v3, v%d" % (T + 2, T + 2))
    a("v_lshl_add_u32 v%d, v4, 8, v%d" % (T + 3, T))
    for r in range(4):
        a("v_xor_b32 v%d, %d, v%d" % (KD + r, r, T + 2))
        a("v_lshl_add_u32 v%d, v%d, 4, v%d" % (KD + r, KD + r, T + 3))
        if kslim and r: a("v_add_u32 v%d, %d, v%d" % (KD + r, r * 7168, KD + r))
    if kslim:
        a("s_mov_b32 s44, 0x8000")
        a("s_mov_b32 s45, 0x10000")
        a("s_mov_b32 s46, 0x18000")
    a("v_lshlrev_b32 v%d, 4, v1" % vQr)
    a("s_mov_b32 s26, 0x20000")
    a("s_mov_b32 s27, 0x00020000")
    a("s_mov_b32 s30, 0x20000")
    a("s_mov_b32 s31, 0x00020000")
    a("s_mov_b32 s34, 0x200000")
    a("s_mov_b32 s35, 0x00020000")
    a("s_mov_b32 s86, 0x400")
    a("s_mov_b32 s87, 0x00020000")
    a("s_lshl_b32 s52, s22, 10")
    a("s_lshl_b32 s53, s22, 8")
    a("s_lshl_b32 s55, s3, 14")
    a("s_add_u32 s55, s55, %d" % L_K)
    a("s_waitcnt lgkmcnt(0)")
    stamp(1)
    a("s_add_u32 s24, s6, s54")
    a("s_addc_u32 s25, s7, 0")
    a("s_and_b32 s25, s25, 0xffff")
    a("s_add_u32 s84, s4, s52")
    a("s_addc_u32 s85, s5, 0")
    a("s_and_b32 s85, s85, 0xffff")
    a("s_or_b32 s56, s3, s23")
    a("s_cmp_eq_u32 s56, 0")
    a("s_cbranch_scc0 L_nokt")
    a("v_lshlrev_b32 v%d, 4, v4" % vKToff)
    a("v_add_u32 v%d, s53, v%d" % (vKToff, vKToff))
    for j in range(4):
        a("global_load_dwordx4 %s, v%d, s[10:11] offset:%d" % (vq(KT + 4 * j), vKToff, j * 64))
    a.label("L_nokt")
    def qdma():
        a("s_mov_b32 m0, %d" % L_Q)
        a("s_nop 0")
        a("buffer_load_dwordx4 v%d, s[84:87], 0 offen lds" % vQr)
    if kslim:
        assert qpos == 4
        for t in range(4):
            if t == 1: qdma()
            a("s_add_u32 m0, s55, %d" % (t * 4096))
            if t == 0: a("s_nop 0")
            else: a("s_nop 0")
            for r in range(4):
                a("buffer_load_dwordx4 v%d, s[24:27], %s offen offset:%d %s lds" % (KD + r, ["0", "s44", "s45", "s46"][t], r * 1024, ld))
    else:
        a("s_mov_b32 s58, 0")
        for i in range(16):
            if i == qpos: qdma()
            if i == 0 or i == qpos:
                a("s_add_u32 m0, s55, %d" % (i * 1024))
                a("s_nop 0")
            a("buffer_load_dwordx4 v%d, s[24:27], s58 offen %s lds" % (KD + (i & 3), ld))
            if i < 15:
                if i + 1 != qpos: a("s_add_u32 m0, m0, 1024")
                a("s_add_u32 s58, s58, 0x2000")
    a("s_add_u32 s28, s8, s54")
    a("s_addc_u32 s29, s9, 0")
    a("s_and_b32 s29, s29, 0xffff")
    a("s_mov_b32 s32, s20")
    a("s_and_b32 s33, s21, 0xffff")
    a("s_load_dword s62, s[14:15], 0")
    if vwarm:
        a("buffer_load_dword v%d, off, s[28:31], 0 nt" % (T + 15))
    a("s_lshl_b32 s58, s22, 7")
    a("s_add_u32 s60, s58, 0x%x" % WS_W)
    a("buffer_load_dword v%d, off, s[32:35], s60 %s" % (vNonce, hs))
    if mlwarm:
        a("s_lshl_b32 s58, s51, 6")
        a("s_add_u32 s58, s58, 0x%x" % WS_ML)
        a("buffer_load_dword v%d, off, s[32:35], s58 %s" % (T + 15, hs))
    if ibar == 1: a("s_barrier")
    def vloads(i0, i1):
        a("s_add_u32 m0, s55, %d" % (i0 * 1024))
        a("s_mov_b32 s58, 0x%x" % (i0 * 0x2000))
        for i in range(i0, i1):
            a("buffer_load_dwordx4 v%d, s[28:31], s58 offen %s lds" % (VD + (i & 1), ld))
            if i < i1 - 1:
                a("s_add_u32 m0, m0, 1024")
                a("s_add_u32 s58, s58, 0x2000")
    a("v_lshlrev_b32 v%d, 8, v2" % vOoff)
    a("v_lshl_add_u32 v%d, v1, 2, v%d" % (vOoff, vOoff))
    a("v_and_b32 v%d, 1, v4" % (T + 8))
    a("v_lshlrev_b32 v%d, 1, v%d" % (T + 9, T + 8))
    a("v_lshrrev_b32 v%d, 1, v4" % (T + 10))
    a("v_or_b32 v%d, v%d, v%d" % (vHead, T + 9, T + 10))
    a("v_lshlrev_b32 v%d, 1, v3" % vVT)
    a("v_lshl_add_u32 v%d, v2, 5, v%d" % (vVT, vVT))
    a("v_add_u32 v%d, s53, v%d" % (vVT, vVT))
    a("v_and_b32 v%d, 1, v2" % (T + 9))
    a("v_lshlrev_b32 v%d, 2, v%d" % (T + 9, T + 9))
    a("v_lshl_add_u32 v%d, v%d, 3, v%d" % (T + 9, T + 8, T + 9))
    a("v_xor_b32 v%d, v3, v%d" % (T + 9, T + 9))
    a("v_lshlrev_b32 v%d, 10, v2" % (T + 10))
    a("v_lshl_add_u32 v%d, v4, 8, v%d" % (T + 10, T + 10))
    a("v_lshl_add_u32 v%d, v%d, 4, v%d" % (VD, T + 9, T + 10))
    a("v_xor_b32 v%d, 2, v%d" % (T + 9, T + 9))
    a("v_lshl_add_u32 v%d, v%d, 4, v%d" % (VD + 1, T + 9, T + 10))
    a("v_lshrrev_b32 v%d, 2, v3" % (T + 9))
    a("v_lshlrev_b32 v%d, 1, v%d" % (T + 10, T + 9))
    a("v_lshl_add_u32 v%d, v%d, 3, v%d" % (T + 10, T + 8, T + 10))
    a("v_bfe_u32 v%d, v3, 1, 1" % (T + 11))
    a("v_lshl_add_u32 v%d, v2, 1, v%d" % (T + 11, T + 11))
    a("v_xor_b32 v%d, v%d, v%d" % (T + 10, T + 10, T + 11))
    a("v_lshlrev_b32 v%d, 4, v%d" % (vTR0, T + 10))
    a("v_and_b32 v%d, 1, v3" % (T + 11))
    a("v_lshl_add_u32 v%d, v%d, 3, v%d" % (vTR0, T + 11, vTR0))
    a("v_lshl_add_u32 v%d, v4, 8, v%d" % (vTR0, vTR0))
    a("v_and_b32 v%d, 1, v%d" % (T + 11, T + 9))
    a("v_lshl_add_u32 v%d, v%d, 10, v%d" % (vTR0, T + 11, vTR0))
    a("v_lshrrev_b32 v%d, 1, v%d" % (T + 11, T + 9))
    a("v_lshl_add_u32 v%d, v%d, 14, v%d" % (vTR0, T + 11, vTR0))
    a("v_add_u32 v%d, 0x10000, v%d" % (vTR1, vTR0))
    a("v_lshlrev_b32 v%d, 6, v4" % vPR)
    a("v_lshl_add_u32 v%d, v3, 4, v%d" % (vPW, vPR))
    a("v_lshl_add_u32 v%d, v%d, 4, v%d" % (vPR, T + 9, vPR))
    a("s_lshr_b32 s36, s3, 2")
    a("s_lshl_b32 s36, s36, 8")
    a("s_and_b32 s37, s3, 3")
    a("s_lshl_b32 s37, s37, 2")
    a("s_add_u32 s36, s36, s37")
    a("v_add_u32 v%d, s36, v%d" % (vPW, vPW))
    a("v_lshrrev_b32 v%d, 3, v1" % (T + 8))
    a("v_and_b32 v%d, 7, v1" % (T + 9))
    a("s_mul_i32 s36, s22, %d" % (16 * SSTR))
    a("s_lshl_b32 s37, s23, 7")
    a("s_add_u32 s36, s36, s37")
    a("v_mul_u32_u24 v%d, %d, v%d" % (vFO, SSTR, T + 8))
    a("v_lshl_add_u32 v%d, v%d, 4, v%d" % (vFO, T + 9, vFO))
    a("v_add_u32 v%d, s36, v%d" % (vFO, vFO))
    a("v_lshrrev_b32 v%d, 2, v%d" % (vFH, T + 9))
    a("s_and_b32 s37, s23, 1")
    a("s_lshl_b32 s37, s37, 1")
    a("v_add_u32 v%d, s37, v%d" % (vFH, vFH))
    a("v_lshlrev_b32 v%d, 6, v%d" % (vFM, T + 8))
    a("v_lshl_add_u32 v%d, v%d, 4, v%d" % (vFM, vFH, vFM))
    a("s_lshl_b32 s37, s22, 10")
    a("s_add_u32 s37, s37, 0x%x" % WS_ML)
    a("v_add_u32 v%d, s37, v%d" % (vFM, vFM))
    a("v_and_b32 v%d, 3, v%d" % (T + 9, T + 9))
    a("v_lshl_add_u32 v%d, v%d, 2, v%d" % (T + 9, T + 9, vHead))
    a("v_lshlrev_b32 v%d, 1, v%d" % (T + 9, T + 9))
    a("v_lshl_add_u32 v%d, v%d, 8, v%d" % (vFA, vFH, T + 9))
    a("s_lshr_b32 s37, s23, 1")
    a("s_lshl_b32 s37, s37, 5")
    a("s_add_u32 s37, s37, s52")
    a("v_add_u32 v%d, s37, v%d" % (vFA, vFA))
    a("s_mov_b32 s38, %d" % (8 * SSTR))
    a("v_and_b32 v%d, 3, v3" % (T + 1))
    a("v_lshlrev_b32 v%d, 14, v2" % (T + 3))
    a("v_lshl_add_u32 v%d, v%d, 10, v%d" % (T + 3, T + 1, T + 3))
    a("v_lshrrev_b32 v%d, 2, v3" % (T + 2))
    a("v_lshl_add_u32 v%d, v%d, 8, v%d" % (T + 3, T + 2, T + 3))
    a("v_xor_b32 v%d, v4, v3" % (T + 2))
    for j in range(4):
        a("v_xor_b32 v%d, %d, v%d" % (KR + j, 4 * j, T + 2))
        a("v_lshl_add_u32 v%d, v%d, 4, v%d" % (KR + j, KR + j, T + 3))
    a("v_lshlrev_b32 v%d, 8, v%d" % (vQr, T + 1))
    a("v_lshl_add_u32 v%d, v4, 4, v%d" % (vQr, vQr))
    if ibar == 2: a("s_barrier")
    for _ in range(vdelay): a("s_nop 15")
    def kwait(t):
        last = 4 * t + 3
        younger = 15 - last
        if qpos > last:
            younger = 15 - (qpos - 1) if False else 15 - max(last, qpos - 1)
            younger = (15 - (qpos - 1))
        return younger + 1 + (1 if mlwarm else 0) + (1 if vwarm else 0)
    for t in range(4):
        a("s_waitcnt vmcnt(%d)" % kwait(t))
        if t == 0: stamp(13)
        kb = K + (t & 1) * 16
        if t == 0:
            for j in range(4):
                a("ds_read_b128 %s, v%d offset:%d" % (vq(Q + 4 * j), vQr, L_Q + j * 64))
        for j in range(4):
            a("ds_read_b128 %s, v%d offset:%d" % (vq(kb + 4 * j), KR + j, L_K + t * 4096))
        for j in range(4):
            a("s_waitcnt lgkmcnt(%d)" % (3 - j))
            a("v_mfma_f32_16x16x32_bf16 %s, %s, %s, %s" % (vq(S + 4 * t), vq(kb + 4 * j), vq(Q + 4 * j), "0" if j == 0 else vq(S + 4 * t)))
    vloads(0, 8)
    stamp(2)
    a("s_cmp_eq_u32 s3, 0")
    a("s_cbranch_scc0 L_notree")
    a("v_mov_b32 v%d, %s" % (T + 8, f32hex(-3.0e38)))
    a("s_cmp_eq_u32 s23, 0")
    a("s_cbranch_scc0 L_tree1")
    for j in range(4):
        a("v_mfma_f32_16x16x32_bf16 %s, %s, %s, %s" % (vq(ST), vq(KT + 4 * j), vq(Q + 4 * j), "0" if j == 0 else vq(ST)))
    a("s_waitcnt lgkmcnt(0)")
    a("s_lshr_b32 s58, s22, 3")
    a("s_lshl_b32 s58, s58, 4")
    a("s_lshr_b32 s58, s62, s58")
    a("s_lshl_b32 s58, s58, 16")
    a("v_mov_b32 v%d, s58" % (T + 8))
    a("v_sub_f32 v%d, 1.0, v%d" % (T + 8, T + 8))
    a("s_mov_b32 s58, %s" % f32hex(-1e9 / SCALE))
    a("s_nop 3")
    a("v_fma_f32 v%d, v%d, s58, v%d" % (T + 8, T + 8, ST))
    a.label("L_tree1")
    a("v_lshlrev_b32 v%d, 2, v3" % (T + 9))
    a("s_mov_b64 exec, 0xf")
    a("ds_write_b32 v%d, v%d offset:%d" % (T + 9, T + 8, L_ST))
    a("s_mov_b64 exec, -1")
    a.label("L_notree")
    a("v_max3_f32 v%d, v%d, v%d, v%d" % (T, S + 0, S + 1, S + 2))
    a("v_max3_f32 v%d, v%d, v%d, v%d" % (T + 1, S + 3, S + 4, S + 5))
    a("v_max3_f32 v%d, v%d, v%d, v%d" % (T + 2, S + 6, S + 7, S + 8))
    a("v_max3_f32 v%d, v%d, v%d, v%d" % (T + 3, S + 9, S + 10, S + 11))
    a("s_nop 4")
    a("v_max3_f32 v%d, v%d, v%d, v%d" % (T, T, S + 12, S + 13))
    a("v_max3_f32 v%d, v%d, v%d, v%d" % (T + 1, T + 1, S + 14, S + 15))
    a("v_max3_f32 v%d, v%d, v%d, v%d" % (T, T, T + 1, T + 2))
    a("v_max_f32 v%d, v%d, v%d" % (T, T, T + 3))
    def xlane(op, r, t):
        a("v_mov_b32 v%d, v%d" % (t, r))
        a("s_nop 1")
        a("v_permlane32_swap_b32 v%d, v%d" % (r, t))
        a("%s v%d, v%d, v%d" % (op, r, r, t))
        a("v_mov_b32 v%d, v%d" % (t, r))
        a("s_nop 1")
        a("v_permlane16_swap_b32 v%d, v%d" % (r, t))
        a("%s v%d, v%d, v%d" % (op, r, r, t))
    xlane("v_max_f32", T, T + 1)
    a("v_and_b32 v%d, 3, v3" % (T + 10))
    a("v_lshlrev_b32 v%d, 5, v%d" % (T + 2, T + 10))
    a("s_lshl_b32 s58, s3, 2")
    a("v_add_u32 v%d, s58, v%d" % (T + 3, T + 2))
    a("v_lshlrev_b32 v%d, 2, v%d" % (T + 10, T + 10))
    a("s_mov_b64 exec, 0xf")
    a("ds_write_b32 v%d, v%d offset:%d" % (T + 3, T, L_M))
    a("s_mov_b64 exec, -1")
    a("s_waitcnt lgkmcnt(0)")
    a("s_barrier")
    stamp(3)
    a("global_load_ushort v%d, v%d, s[12:13]" % (vVT, vVT))
    a("s_mul_i32 s57, s51, %d" % SSTR)
    a("buffer_load_dword v%d, v%d, s[32:35], s57 offen %s" % (T + 15, vOoff, hs))
    vloads(8, 12)
    a("ds_read_b128 %s, v%d offset:%d" % (vq(T + 4), T + 2, L_M))
    a("ds_read_b128 %s, v%d offset:%d" % (vq(K), T + 2, L_M + 16))
    a("ds_read_b32 v%d, v%d offset:%d" % (T + 8, T + 10, L_ST))
    a("s_mov_b32 s63, %s" % f32hex(C))
    a("s_waitcnt vmcnt(14)")
    a("v_add_u32 v%d, 1, v%d" % (vNonce, vNonce))
    a("v_and_b32 v%d, 3, v3" % (T + 11))
    a("v_lshlrev_b32 v%d, 3, v%d" % (T + 11, T + 11))
    a("v_lshrrev_b32 v%d, v%d, v%d" % (vTagO, T + 11, vNonce))
    a("v_and_b32 v%d, 0xff, v%d" % (vTagO, vTagO))
    a("v_readfirstlane_b32 s39, v%d" % vNonce)
    a("v_xor_b32 v%d, 0xff, v%d" % (T + 11, vTagO))
    a("v_lshlrev_b32 v%d, 2, v1" % (T + 9))
    a("ds_write_b32 v%d, v%d offset:%d" % (T + 9, T + 11, L_X))
    a("s_waitcnt lgkmcnt(0)")
    a("v_max3_f32 v%d, v%d, v%d, v%d" % (T, T + 4, T + 5, T + 6))
    a("v_max3_f32 v%d, v%d, v%d, v%d" % (T + 1, T + 7, K, K + 1))
    a("v_max3_f32 v%d, v%d, v%d, v%d" % (T, T, K + 2, K + 3))
    a("v_max3_f32 v%d, v%d, v%d, v%d" % (T, T, T + 1, T + 8))
    for r in range(16):
        a("v_sub_f32 v%d, v%d, v%d" % (S + r, S + r, T))
    a("v_sub_f32 v%d, v%d, v%d" % (T + 8, T + 8, T))
    for r in range(16):
        a("v_mul_f32 v%d, s63, v%d" % (S + r, S + r))
    a("v_mul_f32 v%d, s63, v%d" % (T + 8, T + 8))
    for r in range(16):
        a("v_exp_f32 v%d, v%d" % (S + r, S + r))
    a("v_exp_f32 v%d, v%d" % (T + 8, T + 8))
    a("v_mul_f32 v%d, s63, v%d" % (T, T))
    a("v_add_f32 v%d, v%d, v%d" % (T + 1, S + 0, S + 1))
    a("v_add_f32 v%d, v%d, v%d" % (T + 4, S + 2, S + 3))
    for r in range(4, 16, 2):
        a("v_add_f32 v%d, v%d, v%d" % (T + 1, T + 1, S + r))
        a("v_add_f32 v%d, v%d, v%d" % (T + 4, T + 4, S + r + 1))
    a("v_add_f32 v%d, v%d, v%d" % (T + 1, T + 1, T + 4))
    for u in range(2):
        for hq in range(2):
            t = 2 * u + hq
            a("v_cvt_pk_bf16_f32 v%d, v%d, v%d" % (PR + 4 * u + 2 * hq, S + 4 * t, S + 4 * t + 1))
            a("v_cvt_pk_bf16_f32 v%d, v%d, v%d" % (PR + 4 * u + 2 * hq + 1, S + 4 * t + 2, S + 4 * t + 3))
    xlane("v_add_f32", T + 1, T + 4)
    a("s_mov_b64 exec, 0xf")
    a("ds_write_b32 v%d, v%d offset:%d" % (T + 3, T + 1, L_L))
    a("s_cmp_eq_u32 s3, 0")
    a("s_cbranch_scc0 L_nomq")
    a("ds_write_b32 v%d, v%d offset:%d" % (T + 10, T + 8, L_PT))
    a.label("L_nomq")
    a("s_mov_b64 exec, -1")
    a("s_mov_b32 exec_lo, 0x000f000f")
    a("s_mov_b32 exec_hi, 0x000f000f")
    for c in range(8):
        a("ds_write_b32 v%d, v%d offset:%d" % (vPW, PR + c, L_P + c * 512))
    a("s_mov_b64 exec, -1")
    a("s_waitcnt lgkmcnt(0)")
    a("s_barrier")
    a("v_lshlrev_b32 v%d, 2, v4" % (T + 9))
    a("ds_read_b32 v%d, v%d offset:%d" % (vPT, T + 9, L_PT))
    a("s_cmp_eq_u32 s3, 0")
    a("s_cbranch_scc0 L_noml")
    a("ds_read_b128 %s, v%d offset:%d" % (vq(K), T + 2, L_L))
    a("ds_read_b128 %s, v%d offset:%d" % (vq(K + 4), T + 2, L_L + 16))
    a("s_lshl_b32 s61, s51, 6")
    a("s_add_u32 s61, s61, 0x%x" % WS_ML)
    a("s_add_u32 s56, s61, 0x%x" % WS_B)
    a("v_lshlrev_b32 v%d, 4, v3" % (K + 12))
    a("s_waitcnt lgkmcnt(0)")
    a("v_add_f32 v%d, v%d, v%d" % (K, K, K + 1))
    a("v_add_f32 v%d, v%d, v%d" % (K + 2, K + 2, K + 3))
    a("v_add_f32 v%d, v%d, v%d" % (K + 4, K + 4, K + 5))
    a("v_add_f32 v%d, v%d, v%d" % (K + 6, K + 6, K + 7))
    a("v_add_f32 v%d, v%d, v%d" % (K, K, K + 2))
    a("v_add_f32 v%d, v%d, v%d" % (K + 4, K + 4, K + 6))
    a("v_add_f32 v%d, v%d, v%d" % (K, K, K + 4))
    a("v_mov_b32 v%d, v%d" % (K + 8, T))
    a("v_add_f32 v%d, v%d, v%d" % (K + 9, K, T + 8))
    a("v_mov_b32 v%d, v%d" % (K + 10, vNonce))
    a("v_mov_b32 v%d, v%d" % (K + 11, vNonce))
    a("s_mov_b64 exec, 0xf")
    a("buffer_store_dwordx4 %s, v%d, s[32:35], s61 offen" % (vq(K + 8), K + 12))
    a("buffer_store_dwordx4 %s, v%d, s[32:35], s56 offen %s" % (vq(K + 8), K + 12, hs))
    a("s_mov_b64 exec, -1")
    a.label("L_noml")
    vloads(12, 16)
    for c in range(8):
        if c == 5: a("s_waitcnt lgkmcnt(4)")
        for bq in range(2):
            a("ds_read_b128 %s, v%d offset:%d" % (vq(PF + (c * 2 + bq) * 4), vPR, L_P + c * 512 + bq * 256))
    def tr_reads(c, bq, q):
        base = vTR0 if bq == 0 else vTR1
        a("ds_read_b64_tr_b16 %s, v%d offset:%d" % (vq(VF + 4 * q, 2), base, L_K + c * 2048))
        a("ds_read_b64_tr_b16 %s, v%d offset:%d" % (vq(VF + 4 * q + 2, 2), base, L_K + c * 2048 + 32768))
    def pv_mfma(c, bq, q):
        d = D0 if bq == 0 else D1
        a("v_mfma_f32_16x16x32_bf16 %s, %s, %s, %s" % (vq(d), vq(PF + (c * 2 + bq) * 4), vq(VF + 4 * q), "0" if c == 0 else vq(d)))
    def pv_group(chunks):
        blocks = [(c, bq) for c in chunks for bq in range(2)]
        for b0 in range(0, len(blocks), 4):
            batch = blocks[b0:b0 + 4]
            for q, (c, bq) in enumerate(batch): tr_reads(c, bq, q + 4 * ((b0 // 4) & 1))
            for q, (c, bq) in enumerate(batch):
                a("s_waitcnt lgkmcnt(%d)" % (2 * (len(batch) - 1 - q)))
                pv_mfma(c, bq, q + 4 * ((b0 // 4) & 1))
    X0, X1, M0, M1 = 52, 56, 60, 64
    B1, B2, F0, F1, LS, TT = 68, 69, 70, 71, 72, 73
    AC = 76
    a("s_waitcnt vmcnt(10) lgkmcnt(0)")
    a("s_barrier")
    pv_group([0, 1, 2, 3])
    a("s_waitcnt vmcnt(4)")
    a("v_lshlrev_b32 v%d, 16, v%d" % (vVT, vVT))
    a("v_mul_f32 v%d, v%d, v%d" % (vPT, vPT, vVT))
    a("s_barrier")
    pv_group([4, 5])
    a("s_waitcnt vmcnt(2)")
    a("s_barrier")
    pv_group([6])
    a("s_add_u32 s59, s57, 0x%x" % WS_B)
    a("s_mov_b32 s58, 0xffffff00")
    a("s_waitcnt vmcnt(0)")
    stamp(4)
    a("s_cmp_eq_u32 s3, %d" % fw)
    a("s_cbranch_scc0 L_nomlphase")
    a("buffer_load_dwordx4 %s, v%d, s[32:35], 0 offen %s" % (vq(M0), vFM, hl))
    a("buffer_load_dwordx4 %s, v%d, s[32:35], 0 offen offset:512 %s" % (vq(M1), vFM, hl))
    a.label("L_nomlphase")
    a("s_barrier")
    stamp(5)
    pv_group([7])
    A = K
    a("v_lshlrev_b32 v%d, 2, v1" % (A + 2))
    a("s_nop 6")
    a("v_add_f32 v%d, v%d, v%d" % (A, D0, D1))
    a("v_add_f32 v%d, v%d, v%d" % (A, A, vPT))
    a("v_and_or_b32 v%d, v%d, s58, v%d" % (A + 1, A, vTagO))
    a("buffer_store_dword v%d, v%d, s[32:35], s57 offen" % (A + 1, vOoff))
    a("s_cmp_eq_u32 s3, %d" % fw)
    a("s_cbranch_scc1 L_final")
    a("buffer_store_dword v%d, v%d, s[32:35], s59 offen %s" % (A + 1, vOoff, hs))
    a("s_cmp_eq_u32 s3, 0")
    a("s_cbranch_scc0 L_pubdone")
    a("s_mov_b32 s54, 0")
    a.label("L_bpoll")
    a("ds_read_b32 v%d, v%d offset:%d" % (A + 3, A + 2, L_X))
    a("s_waitcnt lgkmcnt(0)")
    a("v_xor_b32 v%d, v%d, v%d" % (A + 4, A + 3, vTagO))
    a("v_and_b32 v%d, 0xff, v%d" % (A + 4, A + 4))
    a("v_cmp_ne_u32 vcc, 0, v%d" % (A + 4))
    a("s_cbranch_vccz L_bgo")
    a("s_add_u32 s54, s54, 1")
    a("s_cmp_lt_u32 s54, 0x400000")
    a("s_cbranch_scc1 L_bpoll")
    a.label("L_bgo")
    a("v_add_u32 v%d, %d, v%d" % (A + 5, fw * 256, vOoff))
    a("buffer_store_dword v%d, v%d, s[32:35], s59 offen %s" % (A + 3, A + 5, hs))
    a.label("L_pubdone")
    stamp(6)
    stamp_flush(7)
    a("s_branch L_end")
    a.label("L_final")
    stamp(6)
    a("ds_write_b32 v%d, v%d offset:%d" % (A + 2, A + 1, L_X))
    a("s_and_b32 s40, s39, 0xff")
    a("s_bfe_u32 s41, s39, 0x80008")
    a("s_bfe_u32 s42, s39, 0x80010")
    a("s_lshr_b32 s43, s39, 24")
    a("s_mov_b32 s54, 0")
    if npipe and early0:
        a("buffer_load_dwordx4 %s, v%d, s[32:35], 0 offen %s" % (vq(PF), vFO, hl))
        a("buffer_load_dwordx4 %s, v%d, s[32:35], s38 offen %s" % (vq(PF + 4), vFO, hl))
        a("s_waitcnt vmcnt(3)")
    else:
        a("s_waitcnt vmcnt(1)")
    a("s_branch L_mlchk")
    a.label("L_mlpoll")
    a("buffer_load_dwordx4 %s, v%d, s[32:35], 0 offen %s" % (vq(M0), vFM, hl))
    a("buffer_load_dwordx4 %s, v%d, s[32:35], 0 offen offset:512 %s" % (vq(M1), vFM, hl))
    a("s_waitcnt vmcnt(0)")
    a.label("L_mlchk")
    a("v_xor_b32 v%d, s39, v%d" % (B1, M0 + 2))
    a("v_bitop3_b32 v%d, v%d, s39, v%d bitop3:0xbe" % (B1, M1 + 2, B1))
    a("v_bitop3_b32 v%d, v%d, s39, v%d bitop3:0xbe" % (B1, M0 + 3, B1))
    a("v_bitop3_b32 v%d, v%d, s39, v%d bitop3:0xbe" % (B1, M1 + 3, B1))
    a("v_cmp_ne_u32 vcc, 0, v%d" % B1)
    a("s_cbranch_vccz L_mlok")
    a("s_add_u32 s54, s54, 1")
    a("s_cmp_lt_u32 s54, 0x40000")
    a("s_cbranch_scc0 L_mlok")
    a("s_cmp_lt_u32 s54, %d" % na)
    a("s_cbranch_scc1 L_mlpoll")
    a("v_xor_b32 v%d, 0x%x, v%d" % (vFM, WS_B, vFM))
    a("s_branch L_mlpoll")
    a.label("L_mlok")
    stamp(7)
    Y0, Y1 = 100, 104
    def o_loads2(x0, x1):
        a("buffer_load_dwordx4 %s, v%d, s[32:35], 0 offen %s" % (vq(x0), vFO, hl))
        a("buffer_load_dwordx4 %s, v%d, s[32:35], s38 offen %s" % (vq(x1), vFO, hl))
    def o_check(x0, x1):
        a("v_xor_b32 v%d, s40, v%d" % (B1, x0))
        a("v_xor_b32 v%d, s41, v%d" % (B2, x0 + 1))
        a("v_bitop3_b32 v%d, v%d, s42, v%d bitop3:0xbe" % (B1, x0 + 2, B1))
        a("v_bitop3_b32 v%d, v%d, s43, v%d bitop3:0xbe" % (B2, x0 + 3, B2))
        a("v_bitop3_b32 v%d, v%d, s40, v%d bitop3:0xbe" % (B1, x1, B1))
        a("v_bitop3_b32 v%d, v%d, s41, v%d bitop3:0xbe" % (B2, x1 + 1, B2))
        a("v_bitop3_b32 v%d, v%d, s42, v%d bitop3:0xbe" % (B1, x1 + 2, B1))
        a("v_bitop3_b32 v%d, v%d, s43, v%d bitop3:0xbe" % (B2, x1 + 3, B2))
        a("v_or_b32 v%d, v%d, v%d" % (B1, B1, B2))
        a("v_and_b32 v%d, 0xff, v%d" % (B1, B1))
        a("v_cmp_ne_u32 vcc, 0, v%d" % B1)
    a("v_max_f32 v%d, v%d, v%d" % (F0, M0, M1))
    a("s_mov_b32 s54, 0")
    a("s_nop 0")
    a("v_max_f32_dpp v%d, v%d, v%d row_ror:8 row_mask:0xf bank_mask:0xf" % (F0, F0, F0))
    xlane("v_max_f32", F0, F1)
    a("v_sub_f32 v%d, v%d, v%d" % (F1, M1, F0))
    a("v_sub_f32 v%d, v%d, v%d" % (F0, M0, F0))
    a("v_exp_f32 v%d, v%d" % (F1, F1))
    a("v_exp_f32 v%d, v%d" % (F0, F0))
    issued = [0]
    if npipe and early0:
        issued[0] = 1
        if npipe >= 2:
            o_loads2(PF + 8, PF + 12); issued[0] = 2
    elif npipe:
        o_loads2(PF, PF + 4); issued[0] = 1
    elif xpos == 0: o_loads2(X0, X1)
    a("s_nop 0")
    a("v_mul_f32 v%d, v%d, v%d" % (LS, F1, M1 + 1))
    a("v_fmac_f32 v%d, v%d, v%d" % (LS, F0, M0 + 1))
    a("s_nop 1")
    a("v_add_f32_dpp v%d, v%d, v%d row_ror:8 row_mask:0xf bank_mask:0xf" % (LS, LS, LS))
    if npipe > issued[0] and npipe >= 2:
        k_ = issued[0]
        o_loads2(PF + 8 * k_, PF + 8 * k_ + 4); issued[0] = k_ + 1
    xlane("v_add_f32", LS, TT)
    a("v_rcp_f32 v%d, v%d" % (LS, LS))
    if xpos == 1 and not npipe: o_loads2(X0, X1)
    def final_math(x0, x1):
        for c in range(4):
            a("v_and_b32 v%d, s58, v%d" % (x0 + c, x0 + c))
        for c in range(4):
            a("v_and_b32 v%d, s58, v%d" % (x1 + c, x1 + c))
        for c in range(4):
            a("v_mul_f32 v%d, v%d, v%d" % (AC + c, F0, x0 + c))
        for c in range(4):
            a("v_fmac_f32 v%d, v%d, v%d" % (AC + c, F1, x1 + c))
    if npipe:
        sets = [(PF + 8 * i, PF + 8 * i + 4) for i in range(npipe)]
        for i in range(issued[0], npipe): o_loads2(*sets[i])
        a.label("L_owait")
        for i in range(npipe):
            a("s_waitcnt vmcnt(%d)" % (2 * (npipe - 1)))
            o_check(*sets[i])
            a("s_cbranch_vccz L_ok%d" % i)
            if i == npipe - 1:
                a("s_add_u32 s54, s54, 1")
                a("s_cmp_lt_u32 s54, 0x40000")
                a("s_cbranch_scc0 L_ok%d" % i)
                a("s_cmp_lt_u32 s54, %d" % na)
                a("s_cbranch_scc1 L_otog")
                a("v_xor_b32 v%d, 0x%x, v%d" % (vFO, WS_B, vFO))
                a.label("L_otog")
            o_loads2(*sets[i])
        a("s_branch L_owait")
        for i in range(npipe):
            a.label("L_ok%d" % i)
            stamp(10)
            final_math(*sets[i])
            if i < npipe - 1: a("s_branch L_ook")
    else:
        a.label("L_owait")
        a("s_waitcnt vmcnt(0)")
        o_check(X0, X1)
        a("s_cbranch_vccz L_xok")
        a("s_add_u32 s54, s54, 1")
        a("s_cmp_lt_u32 s54, 0x40000")
        a("s_cbranch_scc0 L_xok")
        a("s_cmp_lt_u32 s54, %d" % na)
        a("s_cbranch_scc1 L_otog")
        a("v_xor_b32 v%d, 0x%x, v%d" % (vFO, WS_B, vFO))
        a.label("L_otog")
        o_loads2(X0, X1)
        a("s_branch L_owait")
        a.label("L_xok")
        stamp(10)
        final_math(X0, X1)
    a.label("L_ook")
    for c in range(4):
        a("v_add_f32_dpp v%d, v%d, v%d row_ror:8 row_mask:0xf bank_mask:0xf" % (AC + c, AC + c, AC + c))
    a("s_nop 0")
    a("v_permlane32_swap_b32 v%d, v%d" % (AC, AC + 1))
    a("v_permlane32_swap_b32 v%d, v%d" % (AC + 2, AC + 3))
    a("v_add_f32 v%d, v%d, v%d" % (AC, AC, AC + 1))
    a("v_add_f32 v%d, v%d, v%d" % (AC + 2, AC + 2, AC + 3))
    a("s_nop 1")
    a("v_permlane16_swap_b32 v%d, v%d" % (AC, AC + 2))
    a("v_add_f32 v%d, v%d, v%d" % (AC, AC, AC + 2))
    a("v_mul_f32 v%d, v%d, v%d" % (AC, AC, LS))
    a("v_cvt_pk_bf16_f32 v%d, v%d, v%d" % (AC, AC, AC))
    a("s_mov_b32 exec_lo, 0x00ff00ff")
    a("s_mov_b32 exec_hi, 0x00ff00ff")
    a("global_store_short v%d, v%d, s[16:17]" % (vFA, AC))
    a("s_cmp_eq_u32 s23, 15")
    a("s_cbranch_scc0 L_now")
    a("s_mov_b64 exec, 1")
    a("buffer_store_dword v%d, off, s[32:35], s60" % vNonce)
    a.label("L_now")
    a("s_mov_b64 exec, -1")
    if stamps:
        stamp(11)
        a("s_waitcnt vmcnt(0)")
    stamp(12)
    if stamps:
        a("s_mov_b32 s82, s54")
        a("s_mov_b32 s83, 0")
    stamp_flush(14)
    a.label("L_end")
    if spin:
        a("s_waitcnt vmcnt(0) lgkmcnt(0)")
        a.label("L_spin")
        a("s_memrealtime s[92:93]")
        a("s_waitcnt lgkmcnt(0)")
        a("s_sub_u32 s94, s92, s90")
        if spinref is not None:
            a("s_sub_u32 s95, s96, s90")
            a("s_sub_u32 s94, s94, s95")
        a("s_cmp_lt_u32 s94, %d" % spin)
        a("s_cbranch_scc1 L_spin")
    a("s_endpgm")
    out = HEADER + "; @launch grid=(256,1,1) block=(512,1,1) lds=%d\n" % LDS
    out += '.amdgcn_target "amdgcn-amd-amdhsa--gfx950"\n.text\n.globl %s_kernel\n.p2align 8\n.type %s_kernel,@function\n%s_kernel:\n' % (NAME, NAME, NAME)
    out += a.text()
    out += """.section .rodata,"a"
.p2align 6
.amdhsa_kernel %s_kernel
  .amdhsa_next_free_vgpr 256
  .amdhsa_next_free_sgpr 100
  .amdhsa_accum_offset 256
  .amdhsa_group_segment_fixed_size 0
  .amdhsa_kernarg_size 72
  .amdhsa_user_sgpr_count 2
  .amdhsa_user_sgpr_kernarg_segment_ptr 1
  .amdhsa_system_sgpr_workgroup_id_x 1
  .amdhsa_float_denorm_mode_32 3
.end_amdhsa_kernel
""" % NAME
    return out

if __name__ == "__main__":
    import argparse
    p = argparse.ArgumentParser()
    p.add_argument("-o", default="cdna_kernels/%s.s" % NAME)
    p.add_argument("--ld", default="nt")
    p.add_argument("--hs", default="sc1")
    p.add_argument("--stamps", action="store_true")
    p.add_argument("--spin", type=int, default=0)
    p.add_argument("--spinref", type=int, default=None)
    p.add_argument("--ibar", type=int, default=1)
    p.add_argument("--vsplit", type=int, default=8)
    p.add_argument("--cons", type=int, default=15)
    p.add_argument("--nonlocal", dest="nonlocal_", action="store_true")
    p.add_argument("--na", type=int, default=8)
    p.add_argument("--swave", type=int, default=0)
    p.add_argument("--skew", type=int, default=0)
    p.add_argument("--qpos", type=int, default=4)
    p.add_argument("--fw", type=int, default=1)
    p.add_argument("--dpoll", type=int, default=0)
    p.add_argument("--xpos", type=int, default=1)
    p.add_argument("--nomlwarm", action="store_true")
    p.add_argument("--hl", default="sc1")
    p.add_argument("--sstr", type=int, default=2048)
    p.add_argument("--nokslim", action="store_true")
    p.add_argument("--vdelay", type=int, default=0)
    p.add_argument("--vwarm", action="store_true")
    p.add_argument("--npipe", type=int, default=3)
    p.add_argument("--noearly0", action="store_true")
    p.add_argument("--v2a", type=int, default=4)
    x = p.parse_args()
    open(x.o, "w").write(gen(x.ld, x.hs, x.stamps, x.spin, x.spinref, x.ibar, x.vsplit, x.cons, not x.nonlocal_, x.na, x.skew, x.swave, x.qpos, x.fw, x.dpoll, x.xpos, not x.nomlwarm, x.hl, x.v2a, x.sstr, not x.nokslim, x.vdelay, x.vwarm, x.npipe, not x.noearly0))
```

```python
import sys, math, struct
NAME = "standalone__tree_speculative_verify_tree_attention_over_candidate_token_tree__decode"
HEADER = """; Kernarg layout for this problem (72 bytes, ptrs only, base s[0:1]):
"""
def f32hex(x):
    return "0x%08x" % struct.unpack("<I", struct.pack("<f", x))[0]
class Asm:
    def __init__(self): self.lines = []
    def __call__(self, s): self.lines.append("    " + s)
    def label(self, s): self.lines.append(s + ":")
    def c(self, s): self.lines.append("    ; " + s)
    def text(self): return "\n".join(self.lines) + "\n"
def vq(base, n=4): return "v[%d:%d]" % (base, base + n - 1)

def gen(ld="nt", hs="sc1", stamps=False, spin=0, spinref=None, ibar=1, vsplit=8, cons=15, local=True, na=8,
        skew=0, swave=0, qpos=4, fw=1, dpoll=0, xpos=1, mlwarm=True, hl="sc1", v2a=4, sstr=2048, kslim=True, vdelay=0, vwarm=0, npipe=3, early0=True, owarm=False):
    a = Asm()
    LOG2E = 1.4426950408889634
    SCALE = 128 ** -0.5
    C = SCALE * LOG2E
    Q, KT, K = 12, 28, 44
    PR = 28
    KD, KR = 76, 80
    VD, vTR0, vTR1, vPW, vPR = 84, 86, 87, 88, 89
    S, ST = 92, 108
    PF = 112
    VF = 176
    D0, D1 = 208, 212
    T = 232
    vQr, vKToff, vVT, vOoff = 7, 8, 9, 10
    vTagO, vHead, vNonce = 248, 250, 251
    vFO, vFM, vFH, vFA = 11, 5, 246, 245
    vPT = 244
    L_M, L_L, L_ST, L_PT, L_Q, L_P, L_K = 0, 128, 256, 288, 512, 1536, 5632
    L_X = L_Q
    LDS = L_K + 8 * 16384
    WS_ML, WS_W, WS_B = 0xa0000, 0xb0000, 0x100000
    SSTR = sstr
    def stamp(i):
        if spinref == i: a("s_memrealtime s[96:97]")
        if stamps: a("s_memrealtime s[%d:%d]" % (64 + 2 * i, 65 + 2 * i))
    nfl = [0]
    def stamp_flush(n):
        if stamps:
            nfl[0] += 1
            a("s_waitcnt lgkmcnt(0)")
            a("s_cmp_eq_u32 s3, %d" % swave)
            a("s_cbranch_scc0 L_nostamp%d" % nfl[0])
            a("s_lshl_b32 s58, s2, 7")
            a("s_add_u32 s58, s58, 0x1000000")
            a("v_mov_b32 v252, s58")
            a("s_mov_b64 exec, 1")
            for i in range(n):
                a("v_mov_b32 v254, s%d" % (64 + 2 * i))
                a("v_mov_b32 v255, s%d" % (65 + 2 * i))
                a("global_store_dwordx2 v252, v[254:255], s[20:21] offset:%d" % (8 * i))
                a("s_nop 1")
            a("s_mov_b64 exec, -1")
            a.label("L_nostamp%d" % nfl[0])
    stamp(0)
    if spin: a("s_memrealtime s[90:91]")
    a("s_load_dwordx16 s[4:19], s[0:1], 0")
    a("s_load_dwordx2 s[20:21], s[0:1], 64")
    a("s_cmp_ge_u32 s2, 256")
    a("s_cbranch_scc1 L_end")
    if skew:
        a("s_mul_i32 s58, s2, 0x9E3779B1")
        a("s_lshr_b32 s58, s58, 29")
        a("s_mul_i32 s58, s58, %d" % skew)
        a("s_memrealtime s[90:91]")
        a("s_waitcnt lgkmcnt(0)")
        a.label("L_skew")
        a("s_memrealtime s[92:93]")
        a("s_waitcnt lgkmcnt(0)")
        a("s_sub_u32 s94, s92, s90")
        a("s_cmp_lt_u32 s94, s58")
        a("s_cbranch_scc1 L_skew")
    a("v_and_b32 v1, 63, v0")
    a("v_lshrrev_b32 v2, 6, v0")
    a("v_and_b32 v3, 15, v0")
    a("v_bfe_u32 v4, v0, 4, 2")
    a("v_readfirstlane_b32 s3, v2")
    if local:
        a("s_and_b32 s22, s2, 15")
        a("s_lshr_b32 s23, s2, 4")
    else:
        a("s_lshr_b32 s22, s2, 4")
        a("s_and_b32 s23, s2, 15")
    a("s_lshl_b32 s51, s22, 4")
    a("s_add_u32 s51, s51, s23")
    a("s_lshl_b32 s54, s51, 17")
    a("v_lshlrev_b32 v%d, 10, v2" % T)
    a("v_lshlrev_b32 v%d, 2, v4" % (T + 2))
    a("v_xor_b32 v%d, v3, v%d" % (T + 2, T + 2))
    a("v_lshl_add_u32 v%d, v4, 8, v%d" % (T + 3, T))
    for r in range(4):
        a("v_xor_b32 v%d, %d, v%d" % (KD + r, r, T + 2))
        a("v_lshl_add_u32 v%d, v%d, 4, v%d" % (KD + r, KD + r, T + 3))
        if kslim and r: a("v_add_u32 v%d, %d, v%d" % (KD + r, r * 7168, KD + r))
    if kslim:
        a("s_mov_b32 s44, 0x8000")
        a("s_mov_b32 s45, 0x10000")
        a("s_mov_b32 s46, 0x18000")
    a("v_lshlrev_b32 v%d, 4, v1" % vQr)
    a("s_mov_b32 s26, 0x20000")
    a("s_mov_b32 s27, 0x00020000")
    a("s_mov_b32 s30, 0x20000")
    a("s_mov_b32 s31, 0x00020000")
    a("s_mov_b32 s34, 0x200000")
    a("s_mov_b32 s35, 0x00020000")
    a("s_mov_b32 s86, 0x400")
    a("s_mov_b32 s87, 0x00020000")
    a("s_lshl_b32 s52, s22, 10")
    a("s_lshl_b32 s53, s22, 8")
    a("s_lshl_b32 s55, s3, 14")
    a("s_add_u32 s55, s55, %d" % L_K)
    a("s_waitcnt lgkmcnt(0)")
    stamp(1)
    a("s_add_u32 s24, s6, s54")
    a("s_addc_u32 s25, s7, 0")
    a("s_and_b32 s25, s25, 0xffff")
    a("s_add_u32 s84, s4, s52")
    a("s_addc_u32 s85, s5, 0")
    a("s_and_b32 s85, s85, 0xffff")
    a("s_or_b32 s56, s3, s23")
    a("s_cmp_eq_u32 s56, 0")
    a("s_cbranch_scc0 L_nokt")
    a("v_lshlrev_b32 v%d, 4, v4" % vKToff)
    a("v_add_u32 v%d, s53, v%d" % (vKToff, vKToff))
    for j in range(4):
        a("global_load_dwordx4 %s, v%d, s[10:11] offset:%d" % (vq(KT + 4 * j), vKToff, j * 64))
    a.label("L_nokt")
    def qdma():
        a("s_mov_b32 m0, %d" % L_Q)
        a("s_nop 0")
        a("buffer_load_dwordx4 v%d, s[84:87], 0 offen lds" % vQr)
    if kslim:
        assert qpos == 4
        for t in range(4):
            if t == 1: qdma()
            a("s_add_u32 m0, s55, %d" % (t * 4096))
            if t == 0: a("s_nop 0")
            else: a("s_nop 0")
            for r in range(4):
                a("buffer_load_dwordx4 v%d, s[24:27], %s offen offset:%d %s lds" % (KD + r, ["0", "s44", "s45", "s46"][t], r * 1024, ld))
    else:
        a("s_mov_b32 s58, 0")
        for i in range(16):
            if i == qpos: qdma()
            if i == 0 or i == qpos:
                a("s_add_u32 m0, s55, %d" % (i * 1024))
                a("s_nop 0")
            a("buffer_load_dwordx4 v%d, s[24:27], s58 offen %s lds" % (KD + (i & 3), ld))
            if i < 15:
                if i + 1 != qpos: a("s_add_u32 m0, m0, 1024")
                a("s_add_u32 s58, s58, 0x2000")
    a("s_add_u32 s28, s8, s54")
    a("s_addc_u32 s29, s9, 0")
    a("s_and_b32 s29, s29, 0xffff")
    a("s_mov_b32 s32, s20")
    a("s_and_b32 s33, s21, 0xffff")
    a("s_load_dword s62, s[14:15], 0")
    if vwarm == 1:
        a("buffer_load_dword v%d, off, s[28:31], 0 nt" % (T + 15))
    if vwarm == 2:
        a("s_cmp_eq_u32 s3, 0")
        a("s_cbranch_scc0 L_novw")
        a("v_and_b32 v%d, 15, v0" % (T + 14))
        a("v_lshlrev_b32 v%d, 13, v%d" % (T + 14, T + 14))
        a("s_mov_b64 exec, 0xffff")
        a("buffer_load_dword v%d, v%d, s[28:31], 0 offen nt" % (T + 15, T + 14))
        a("s_mov_b64 exec, -1")
        a.label("L_novw")
    a("s_lshl_b32 s58, s22, 7")
    a("s_add_u32 s60, s58, 0x%x" % WS_W)
    a("buffer_load_dword v%d, off, s[32:35], s60 %s" % (vNonce, hs))
    if mlwarm:
        a("s_lshl_b32 s58, s51, 6")
        a("s_add_u32 s58, s58, 0x%x" % WS_ML)
        a("buffer_load_dword v%d, off, s[32:35], s58 %s" % (T + 15, hs))
    if ibar == 1: a("s_barrier")
    def vloads(i0, i1):
        a("s_add_u32 m0, s55, %d" % (i0 * 1024))
        a("s_mov_b32 s58, 0x%x" % (i0 * 0x2000))
        for i in range(i0, i1):
            a("buffer_load_dwordx4 v%d, s[28:31], s58 offen %s lds" % (VD + (i & 1), ld))
            if i < i1 - 1:
                a("s_add_u32 m0, m0, 1024")
                a("s_add_u32 s58, s58, 0x2000")
    a("v_lshlrev_b32 v%d, 8, v2" % vOoff)
    a("v_lshl_add_u32 v%d, v1, 2, v%d" % (vOoff, vOoff))
    a("v_and_b32 v%d, 1, v4" % (T + 8))
    a("v_lshlrev_b32 v%d, 1, v%d" % (T + 9, T + 8))
    a("v_lshrrev_b32 v%d, 1, v4" % (T + 10))
    a("v_or_b32 v%d, v%d, v%d" % (vHead, T + 9, T + 10))
    a("v_lshlrev_b32 v%d, 1, v3" % vVT)
    a("v_lshl_add_u32 v%d, v2, 5, v%d" % (vVT, vVT))
    a("v_add_u32 v%d, s53, v%d" % (vVT, vVT))
    a("v_and_b32 v%d, 1, v2" % (T + 9))
    a("v_lshlrev_b32 v%d, 2, v%d" % (T + 9, T + 9))
    a("v_lshl_add_u32 v%d, v%d, 3, v%d" % (T + 9, T + 8, T + 9))
    a("v_xor_b32 v%d, v3, v%d" % (T + 9, T + 9))
    a("v_lshlrev_b32 v%d, 10, v2" % (T + 10))
    a("v_lshl_add_u32 v%d, v4, 8, v%d" % (T + 10, T + 10))
    a("v_lshl_add_u32 v%d, v%d, 4, v%d" % (VD, T + 9, T + 10))
    a("v_xor_b32 v%d, 2, v%d" % (T + 9, T + 9))
    a("v_lshl_add_u32 v%d, v%d, 4, v%d" % (VD + 1, T + 9, T + 10))
    a("v_lshrrev_b32 v%d, 2, v3" % (T + 9))
    a("v_lshlrev_b32 v%d, 1, v%d" % (T + 10, T + 9))
    a("v_lshl_add_u32 v%d, v%d, 3, v%d" % (T + 10, T + 8, T + 10))
    a("v_bfe_u32 v%d, v3, 1, 1" % (T + 11))
    a("v_lshl_add_u32 v%d, v2, 1, v%d" % (T + 11, T + 11))
    a("v_xor_b32 v%d, v%d, v%d" % (T + 10, T + 10, T + 11))
    a("v_lshlrev_b32 v%d, 4, v%d" % (vTR0, T + 10))
    a("v_and_b32 v%d, 1, v3" % (T + 11))
    a("v_lshl_add_u32 v%d, v%d, 3, v%d" % (vTR0, T + 11, vTR0))
    a("v_lshl_add_u32 v%d, v4, 8, v%d" % (vTR0, vTR0))
    a("v_and_b32 v%d, 1, v%d" % (T + 11, T + 9))
    a("v_lshl_add_u32 v%d, v%d, 10, v%d" % (vTR0, T + 11, vTR0))
    a("v_lshrrev_b32 v%d, 1, v%d" % (T + 11, T + 9))
    a("v_lshl_add_u32 v%d, v%d, 14, v%d" % (vTR0, T + 11, vTR0))
    a("v_add_u32 v%d, 0x10000, v%d" % (vTR1, vTR0))
    a("v_lshlrev_b32 v%d, 6, v4" % vPR)
    a("v_lshl_add_u32 v%d, v3, 4, v%d" % (vPW, vPR))
    a("v_lshl_add_u32 v%d, v%d, 4, v%d" % (vPR, T + 9, vPR))
    a("s_lshr_b32 s36, s3, 2")
    a("s_lshl_b32 s36, s36, 8")
    a("s_and_b32 s37, s3, 3")
    a("s_lshl_b32 s37, s37, 2")
    a("s_add_u32 s36, s36, s37")
    a("v_add_u32 v%d, s36, v%d" % (vPW, vPW))
    a("v_lshrrev_b32 v%d, 3, v1" % (T + 8))
    a("v_and_b32 v%d, 7, v1" % (T + 9))
    a("s_mul_i32 s36, s22, %d" % (16 * SSTR))
    a("s_lshl_b32 s37, s23, 7")
    a("s_add_u32 s36, s36, s37")
    a("v_mul_u32_u24 v%d, %d, v%d" % (vFO, SSTR, T + 8))
    a("v_lshl_add_u32 v%d, v%d, 4, v%d" % (vFO, T + 9, vFO))
    a("v_add_u32 v%d, s36, v%d" % (vFO, vFO))
    a("v_lshrrev_b32 v%d, 2, v%d" % (vFH, T + 9))
    a("s_and_b32 s37, s23, 1")
    a("s_lshl_b32 s37, s37, 1")
    a("v_add_u32 v%d, s37, v%d" % (vFH, vFH))
    a("v_lshlrev_b32 v%d, 6, v%d" % (vFM, T + 8))
    a("v_lshl_add_u32 v%d, v%d, 4, v%d" % (vFM, vFH, vFM))
    a("s_lshl_b32 s37, s22, 10")
    a("s_add_u32 s37, s37, 0x%x" % WS_ML)
    a("v_add_u32 v%d, s37, v%d" % (vFM, vFM))
    a("v_and_b32 v%d, 3, v%d" % (T + 9, T + 9))
    a("v_lshl_add_u32 v%d, v%d, 2, v%d" % (T + 9, T + 9, vHead))
    a("v_lshlrev_b32 v%d, 1, v%d" % (T + 9, T + 9))
    a("v_lshl_add_u32 v%d, v%d, 8, v%d" % (vFA, vFH, T + 9))
    a("s_lshr_b32 s37, s23, 1")
    a("s_lshl_b32 s37, s37, 5")
    a("s_add_u32 s37, s37, s52")
    a("v_add_u32 v%d, s37, v%d" % (vFA, vFA))
    a("s_mov_b32 s38, %d" % (8 * SSTR))
    a("v_and_b32 v%d, 3, v3" % (T + 1))
    a("v_lshlrev_b32 v%d, 14, v2" % (T + 3))
    a("v_lshl_add_u32 v%d, v%d, 10, v%d" % (T + 3, T + 1, T + 3))
    a("v_lshrrev_b32 v%d, 2, v3" % (T + 2))
    a("v_lshl_add_u32 v%d, v%d, 8, v%d" % (T + 3, T + 2, T + 3))
    a("v_xor_b32 v%d, v4, v3" % (T + 2))
    for j in range(4):
        a("v_xor_b32 v%d, %d, v%d" % (KR + j, 4 * j, T + 2))
        a("v_lshl_add_u32 v%d, v%d, 4, v%d" % (KR + j, KR + j, T + 3))
    a("v_lshlrev_b32 v%d, 8, v%d" % (vQr, T + 1))
    a("v_lshl_add_u32 v%d, v4, 4, v%d" % (vQr, vQr))
    if ibar == 2: a("s_barrier")
    for _ in range(vdelay): a("s_nop 15")
    def kwait(t):
        last = 4 * t + 3
        younger = 15 - last
        if qpos > last:
            younger = 15 - (qpos - 1) if False else 15 - max(last, qpos - 1)
            younger = (15 - (qpos - 1))
        return younger + 1 + (1 if mlwarm else 0) + (1 if vwarm == 1 else 0)
    for t in range(4):
        a("s_waitcnt vmcnt(%d)" % kwait(t))
        if t == 0: stamp(13)
        kb = K + (t & 1) * 16
        if t == 0:
            for j in range(4):
                a("ds_read_b128 %s, v%d offset:%d" % (vq(Q + 4 * j), vQr, L_Q + j * 64))
        for j in range(4):
            a("ds_read_b128 %s, v%d offset:%d" % (vq(kb + 4 * j), KR + j, L_K + t * 4096))
        for j in range(4):
            a("s_waitcnt lgkmcnt(%d)" % (3 - j))
            a("v_mfma_f32_16x16x32_bf16 %s, %s, %s, %s" % (vq(S + 4 * t), vq(kb + 4 * j), vq(Q + 4 * j), "0" if j == 0 else vq(S + 4 * t)))
    vloads(0, 8)
    stamp(2)
    a("s_cmp_eq_u32 s3, 0")
    a("s_cbranch_scc0 L_notree")
    a("v_mov_b32 v%d, %s" % (T + 8, f32hex(-3.0e38)))
    a("s_cmp_eq_u32 s23, 0")
    a("s_cbranch_scc0 L_tree1")
    for j in range(4):
        a("v_mfma_f32_16x16x32_bf16 %s, %s, %s, %s" % (vq(ST), vq(KT + 4 * j), vq(Q + 4 * j), "0" if j == 0 else vq(ST)))
    a("s_waitcnt lgkmcnt(0)")
    a("s_lshr_b32 s58, s22, 3")
    a("s_lshl_b32 s58, s58, 4")
    a("s_lshr_b32 s58, s62, s58")
    a("s_lshl_b32 s58, s58, 16")
    a("v_mov_b32 v%d, s58" % (T + 8))
    a("v_sub_f32 v%d, 1.0, v%d" % (T + 8, T + 8))
    a("s_mov_b32 s58, %s" % f32hex(-1e9 / SCALE))
    a("s_nop 3")
    a("v_fma_f32 v%d, v%d, s58, v%d" % (T + 8, T + 8, ST))
    a.label("L_tree1")
    a("v_lshlrev_b32 v%d, 2, v3" % (T + 9))
    a("s_mov_b64 exec, 0xf")
    a("ds_write_b32 v%d, v%d offset:%d" % (T + 9, T + 8, L_ST))
    a("s_mov_b64 exec, -1")
    a.label("L_notree")
    a("v_max3_f32 v%d, v%d, v%d, v%d" % (T, S + 0, S + 1, S + 2))
    a("v_max3_f32 v%d, v%d, v%d, v%d" % (T + 1, S + 3, S + 4, S + 5))
    a("v_max3_f32 v%d, v%d, v%d, v%d" % (T + 2, S + 6, S + 7, S + 8))
    a("v_max3_f32 v%d, v%d, v%d, v%d" % (T + 3, S + 9, S + 10, S + 11))
    a("s_nop 4")
    a("v_max3_f32 v%d, v%d, v%d, v%d" % (T, T, S + 12, S + 13))
    a("v_max3_f32 v%d, v%d, v%d, v%d" % (T + 1, T + 1, S + 14, S + 15))
    a("v_max3_f32 v%d, v%d, v%d, v%d" % (T, T, T + 1, T + 2))
    a("v_max_f32 v%d, v%d, v%d" % (T, T, T + 3))
    def xlane(op, r, t):
        a("v_mov_b32 v%d, v%d" % (t, r))
        a("s_nop 1")
        a("v_permlane32_swap_b32 v%d, v%d" % (r, t))
        a("%s v%d, v%d, v%d" % (op, r, r, t))
        a("v_mov_b32 v%d, v%d" % (t, r))
        a("s_nop 1")
        a("v_permlane16_swap_b32 v%d, v%d" % (r, t))
        a("%s v%d, v%d, v%d" % (op, r, r, t))
    xlane("v_max_f32", T, T + 1)
    a("v_and_b32 v%d, 3, v3" % (T + 10))
    a("v_lshlrev_b32 v%d, 5, v%d" % (T + 2, T + 10))
    a("s_lshl_b32 s58, s3, 2")
    a("v_add_u32 v%d, s58, v%d" % (T + 3, T + 2))
    a("v_lshlrev_b32 v%d, 2, v%d" % (T + 10, T + 10))
    a("s_mov_b64 exec, 0xf")
    a("ds_write_b32 v%d, v%d offset:%d" % (T + 3, T, L_M))
    a("s_mov_b64 exec, -1")
    a("s_waitcnt lgkmcnt(0)")
    a("s_barrier")
    stamp(3)
    a("global_load_ushort v%d, v%d, s[12:13]" % (vVT, vVT))
    if owarm:
        a("global_load_ushort v%d, v%d, s[16:17]" % (T + 15, vFA))
    a("s_mul_i32 s57, s51, %d" % SSTR)
    a("buffer_load_dword v%d, v%d, s[32:35], s57 offen %s" % (T + 15, vOoff, hs))
    vloads(8, 12)
    a("ds_read_b128 %s, v%d offset:%d" % (vq(T + 4), T + 2, L_M))
    a("ds_read_b128 %s, v%d offset:%d" % (vq(K), T + 2, L_M + 16))
    a("ds_read_b32 v%d, v%d offset:%d" % (T + 8, T + 10, L_ST))
    a("s_mov_b32 s63, %s" % f32hex(C))
    a("s_waitcnt vmcnt(%d)" % (14 + (1 if owarm else 0)))
    a("v_add_u32 v%d, 1, v%d" % (vNonce, vNonce))
    a("v_and_b32 v%d, 3, v3" % (T + 11))
    a("v_lshlrev_b32 v%d, 3, v%d" % (T + 11, T + 11))
    a("v_lshrrev_b32 v%d, v%d, v%d" % (vTagO, T + 11, vNonce))
    a("v_and_b32 v%d, 0xff, v%d" % (vTagO, vTagO))
    a("v_readfirstlane_b32 s39, v%d" % vNonce)
    a("v_xor_b32 v%d, 0xff, v%d" % (T + 11, vTagO))
    a("v_lshlrev_b32 v%d, 2, v1" % (T + 9))
    a("ds_write_b32 v%d, v%d offset:%d" % (T + 9, T + 11, L_X))
    a("s_waitcnt lgkmcnt(0)")
    a("v_max3_f32 v%d, v%d, v%d, v%d" % (T, T + 4, T + 5, T + 6))
    a("v_max3_f32 v%d, v%d, v%d, v%d" % (T + 1, T + 7, K, K + 1))
    a("v_max3_f32 v%d, v%d, v%d, v%d" % (T, T, K + 2, K + 3))
    a("v_max3_f32 v%d, v%d, v%d, v%d" % (T, T, T + 1, T + 8))
    for r in range(16):
        a("v_sub_f32 v%d, v%d, v%d" % (S + r, S + r, T))
    a("v_sub_f32 v%d, v%d, v%d" % (T + 8, T + 8, T))
    for r in range(16):
        a("v_mul_f32 v%d, s63, v%d" % (S + r, S + r))
    a("v_mul_f32 v%d, s63, v%d" % (T + 8, T + 8))
    for r in range(16):
        a("v_exp_f32 v%d, v%d" % (S + r, S + r))
    a("v_exp_f32 v%d, v%d" % (T + 8, T + 8))
    a("v_mul_f32 v%d, s63, v%d" % (T, T))
    a("v_add_f32 v%d, v%d, v%d" % (T + 1, S + 0, S + 1))
    a("v_add_f32 v%d, v%d, v%d" % (T + 4, S + 2, S + 3))
    for r in range(4, 16, 2):
        a("v_add_f32 v%d, v%d, v%d" % (T + 1, T + 1, S + r))
        a("v_add_f32 v%d, v%d, v%d" % (T + 4, T + 4, S + r + 1))
    a("v_add_f32 v%d, v%d, v%d" % (T + 1, T + 1, T + 4))
    for u in range(2):
        for hq in range(2):
            t = 2 * u + hq
            a("v_cvt_pk_bf16_f32 v%d, v%d, v%d" % (PR + 4 * u + 2 * hq, S + 4 * t, S + 4 * t + 1))
            a("v_cvt_pk_bf16_f32 v%d, v%d, v%d" % (PR + 4 * u + 2 * hq + 1, S + 4 * t + 2, S + 4 * t + 3))
    xlane("v_add_f32", T + 1, T + 4)
    a("s_mov_b64 exec, 0xf")
    a("ds_write_b32 v%d, v%d offset:%d" % (T + 3, T + 1, L_L))
    a("s_cmp_eq_u32 s3, 0")
    a("s_cbranch_scc0 L_nomq")
    a("ds_write_b32 v%d, v%d offset:%d" % (T + 10, T + 8, L_PT))
    a.label("L_nomq")
    a("s_mov_b64 exec, -1")
    a("s_mov_b32 exec_lo, 0x000f000f")
    a("s_mov_b32 exec_hi, 0x000f000f")
    for c in range(8):
        a("ds_write_b32 v%d, v%d offset:%d" % (vPW, PR + c, L_P + c * 512))
    a("s_mov_b64 exec, -1")
    a("s_waitcnt lgkmcnt(0)")
    a("s_barrier")
    a("v_lshlrev_b32 v%d, 2, v4" % (T + 9))
    a("ds_read_b32 v%d, v%d offset:%d" % (vPT, T + 9, L_PT))
    a("s_cmp_eq_u32 s3, 0")
    a("s_cbranch_scc0 L_noml")
    a("ds_read_b128 %s, v%d offset:%d" % (vq(K), T + 2, L_L))
    a("ds_read_b128 %s, v%d offset:%d" % (vq(K + 4), T + 2, L_L + 16))
    a("s_lshl_b32 s61, s51, 6")
    a("s_add_u32 s61, s61, 0x%x" % WS_ML)
    a("s_add_u32 s56, s61, 0x%x" % WS_B)
    a("v_lshlrev_b32 v%d, 4, v3" % (K + 12))
    a("s_waitcnt lgkmcnt(0)")
    a("v_add_f32 v%d, v%d, v%d" % (K, K, K + 1))
    a("v_add_f32 v%d, v%d, v%d" % (K + 2, K + 2, K + 3))
    a("v_add_f32 v%d, v%d, v%d" % (K + 4, K + 4, K + 5))
    a("v_add_f32 v%d, v%d, v%d" % (K + 6, K + 6, K + 7))
    a("v_add_f32 v%d, v%d, v%d" % (K, K, K + 2))
    a("v_add_f32 v%d, v%d, v%d" % (K + 4, K + 4, K + 6))
    a("v_add_f32 v%d, v%d, v%d" % (K, K, K + 4))
    a("v_mov_b32 v%d, v%d" % (K + 8, T))
    a("v_add_f32 v%d, v%d, v%d" % (K + 9, K, T + 8))
    a("v_mov_b32 v%d, v%d" % (K + 10, vNonce))
    a("v_mov_b32 v%d, v%d" % (K + 11, vNonce))
    a("s_mov_b64 exec, 0xf")
    a("buffer_store_dwordx4 %s, v%d, s[32:35], s61 offen" % (vq(K + 8), K + 12))
    a("buffer_store_dwordx4 %s, v%d, s[32:35], s56 offen %s" % (vq(K + 8), K + 12, hs))
    a("s_mov_b64 exec, -1")
    a.label("L_noml")
    vloads(12, 16)
    for c in range(8):
        if c == 5: a("s_waitcnt lgkmcnt(4)")
        for bq in range(2):
            a("ds_read_b128 %s, v%d offset:%d" % (vq(PF + (c * 2 + bq) * 4), vPR, L_P + c * 512 + bq * 256))
    def tr_reads(c, bq, q):
        base = vTR0 if bq == 0 else vTR1
        a("ds_read_b64_tr_b16 %s, v%d offset:%d" % (vq(VF + 4 * q, 2), base, L_K + c * 2048))
        a("ds_read_b64_tr_b16 %s, v%d offset:%d" % (vq(VF + 4 * q + 2, 2), base, L_K + c * 2048 + 32768))
    def pv_mfma(c, bq, q):
        d = D0 if bq == 0 else D1
        a("v_mfma_f32_16x16x32_bf16 %s, %s, %s, %s" % (vq(d), vq(PF + (c * 2 + bq) * 4), vq(VF + 4 * q), "0" if c == 0 else vq(d)))
    def pv_group(chunks):
        blocks = [(c, bq) for c in chunks for bq in range(2)]
        for b0 in range(0, len(blocks), 4):
            batch = blocks[b0:b0 + 4]
            for q, (c, bq) in enumerate(batch): tr_reads(c, bq, q + 4 * ((b0 // 4) & 1))
            for q, (c, bq) in enumerate(batch):
                a("s_waitcnt lgkmcnt(%d)" % (2 * (len(batch) - 1 - q)))
                pv_mfma(c, bq, q + 4 * ((b0 // 4) & 1))
    X0, X1, M0, M1 = 52, 56, 60, 64
    B1, B2, F0, F1, LS, TT = 68, 69, 70, 71, 72, 73
    AC = 76
    a("s_waitcnt vmcnt(%d) lgkmcnt(0)" % (10 + (1 if owarm else 0)))
    a("s_barrier")
    pv_group([0, 1, 2, 3])
    a("s_waitcnt vmcnt(4)")
    a("v_lshlrev_b32 v%d, 16, v%d" % (vVT, vVT))
    a("v_mul_f32 v%d, v%d, v%d" % (vPT, vPT, vVT))
    a("s_barrier")
    pv_group([4, 5])
    a("s_waitcnt vmcnt(2)")
    a("s_barrier")
    pv_group([6])
    a("s_add_u32 s59, s57, 0x%x" % WS_B)
    a("s_mov_b32 s58, 0xffffff00")
    a("s_waitcnt vmcnt(0)")
    stamp(4)
    a("s_cmp_eq_u32 s3, %d" % fw)
    a("s_cbranch_scc0 L_nomlphase")
    a("buffer_load_dwordx4 %s, v%d, s[32:35], 0 offen %s" % (vq(M0), vFM, hl))
    a("buffer_load_dwordx4 %s, v%d, s[32:35], 0 offen offset:512 %s" % (vq(M1), vFM, hl))
    a.label("L_nomlphase")
    a("s_barrier")
    stamp(5)
    pv_group([7])
    A = K
    a("v_lshlrev_b32 v%d, 2, v1" % (A + 2))
    a("s_nop 6")
    a("v_add_f32 v%d, v%d, v%d" % (A, D0, D1))
    a("v_add_f32 v%d, v%d, v%d" % (A, A, vPT))
    a("v_and_or_b32 v%d, v%d, s58, v%d" % (A + 1, A, vTagO))
    a("buffer_store_dword v%d, v%d, s[32:35], s57 offen" % (A + 1, vOoff))
    a("s_cmp_eq_u32 s3, %d" % fw)
    a("s_cbranch_scc1 L_final")
    a("buffer_store_dword v%d, v%d, s[32:35], s59 offen %s" % (A + 1, vOoff, hs))
    a("s_cmp_eq_u32 s3, 0")
    a("s_cbranch_scc0 L_pubdone")
    a("s_mov_b32 s54, 0")
    a.label("L_bpoll")
    a("ds_read_b32 v%d, v%d offset:%d" % (A + 3, A + 2, L_X))
    a("s_waitcnt lgkmcnt(0)")
    a("v_xor_b32 v%d, v%d, v%d" % (A + 4, A + 3, vTagO))
    a("v_and_b32 v%d, 0xff, v%d" % (A + 4, A + 4))
    a("v_cmp_ne_u32 vcc, 0, v%d" % (A + 4))
    a("s_cbranch_vccz L_bgo")
    a("s_add_u32 s54, s54, 1")
    a("s_cmp_lt_u32 s54, 0x400000")
    a("s_cbranch_scc1 L_bpoll")
    a.label("L_bgo")
    a("v_add_u32 v%d, %d, v%d" % (A + 5, fw * 256, vOoff))
    a("buffer_store_dword v%d, v%d, s[32:35], s59 offen %s" % (A + 3, A + 5, hs))
    a.label("L_pubdone")
    stamp(6)
    stamp_flush(7)
    a("s_branch L_end")
    a.label("L_final")
    stamp(6)
    a("ds_write_b32 v%d, v%d offset:%d" % (A + 2, A + 1, L_X))
    a("s_and_b32 s40, s39, 0xff")
    a("s_bfe_u32 s41, s39, 0x80008")
    a("s_bfe_u32 s42, s39, 0x80010")
    a("s_lshr_b32 s43, s39, 24")
    a("s_mov_b32 s54, 0")
    if npipe and early0:
        a("buffer_load_dwordx4 %s, v%d, s[32:35], 0 offen %s" % (vq(PF), vFO, hl))
        a("buffer_load_dwordx4 %s, v%d, s[32:35], s38 offen %s" % (vq(PF + 4), vFO, hl))
        a("s_waitcnt vmcnt(3)")
    else:
        a("s_waitcnt vmcnt(1)")
    a("s_branch L_mlchk")
    a.label("L_mlpoll")
    a("buffer_load_dwordx4 %s, v%d, s[32:35], 0 offen %s" % (vq(M0), vFM, hl))
    a("buffer_load_dwordx4 %s, v%d, s[32:35], 0 offen offset:512 %s" % (vq(M1), vFM, hl))
    a("s_waitcnt vmcnt(0)")
    a.label("L_mlchk")
    a("v_xor_b32 v%d, s39, v%d" % (B1, M0 + 2))
    a("v_bitop3_b32 v%d, v%d, s39, v%d bitop3:0xbe" % (B1, M1 + 2, B1))
    a("v_bitop3_b32 v%d, v%d, s39, v%d bitop3:0xbe" % (B1, M0 + 3, B1))
    a("v_bitop3_b32 v%d, v%d, s39, v%d bitop3:0xbe" % (B1, M1 + 3, B1))
    a("v_cmp_ne_u32 vcc, 0, v%d" % B1)
    a("s_cbranch_vccz L_mlok")
    a("s_add_u32 s54, s54, 1")
    a("s_cmp_lt_u32 s54, 0x40000")
    a("s_cbranch_scc0 L_mlok")
    a("s_cmp_lt_u32 s54, %d" % na)
    a("s_cbranch_scc1 L_mlpoll")
    a("v_xor_b32 v%d, 0x%x, v%d" % (vFM, WS_B, vFM))
    a("s_branch L_mlpoll")
    a.label("L_mlok")
    stamp(7)
    Y0, Y1 = 100, 104
    def o_loads2(x0, x1):
        a("buffer_load_dwordx4 %s, v%d, s[32:35], 0 offen %s" % (vq(x0), vFO, hl))
        a("buffer_load_dwordx4 %s, v%d, s[32:35], s38 offen %s" % (vq(x1), vFO, hl))
    def o_check(x0, x1):
        a("v_xor_b32 v%d, s40, v%d" % (B1, x0))
        a("v_xor_b32 v%d, s41, v%d" % (B2, x0 + 1))
        a("v_bitop3_b32 v%d, v%d, s42, v%d bitop3:0xbe" % (B1, x0 + 2, B1))
        a("v_bitop3_b32 v%d, v%d, s43, v%d bitop3:0xbe" % (B2, x0 + 3, B2))
        a("v_bitop3_b32 v%d, v%d, s40, v%d bitop3:0xbe" % (B1, x1, B1))
        a("v_bitop3_b32 v%d, v%d, s41, v%d bitop3:0xbe" % (B2, x1 + 1, B2))
        a("v_bitop3_b32 v%d, v%d, s42, v%d bitop3:0xbe" % (B1, x1 + 2, B1))
        a("v_bitop3_b32 v%d, v%d, s43, v%d bitop3:0xbe" % (B2, x1 + 3, B2))
        a("v_or_b32 v%d, v%d, v%d" % (B1, B1, B2))
        a("v_and_b32 v%d, 0xff, v%d" % (B1, B1))
        a("v_cmp_ne_u32 vcc, 0, v%d" % B1)
    a("v_max_f32 v%d, v%d, v%d" % (F0, M0, M1))
    a("s_mov_b32 s54, 0")
    a("s_nop 0")
    a("v_max_f32_dpp v%d, v%d, v%d row_ror:8 row_mask:0xf bank_mask:0xf" % (F0, F0, F0))
    xlane("v_max_f32", F0, F1)
    a("v_sub_f32 v%d, v%d, v%d" % (F1, M1, F0))
    a("v_sub_f32 v%d, v%d, v%d" % (F0, M0, F0))
    a("v_exp_f32 v%d, v%d" % (F1, F1))
    a("v_exp_f32 v%d, v%d" % (F0, F0))
    issued = [0]
    if npipe and early0:
        issued[0] = 1
        if npipe >= 2:
            o_loads2(PF + 8, PF + 12); issued[0] = 2
    elif npipe:
        o_loads2(PF, PF + 4); issued[0] = 1
    elif xpos == 0: o_loads2(X0, X1)
    a("s_nop 0")
    a("v_mul_f32 v%d, v%d, v%d" % (LS, F1, M1 + 1))
    a("v_fmac_f32 v%d, v%d, v%d" % (LS, F0, M0 + 1))
    a("s_nop 1")
    a("v_add_f32_dpp v%d, v%d, v%d row_ror:8 row_mask:0xf bank_mask:0xf" % (LS, LS, LS))
    if npipe > issued[0] and npipe >= 2:
        k_ = issued[0]
        o_loads2(PF + 8 * k_, PF + 8 * k_ + 4); issued[0] = k_ + 1
    xlane("v_add_f32", LS, TT)
    a("v_rcp_f32 v%d, v%d" % (LS, LS))
    if xpos == 1 and not npipe: o_loads2(X0, X1)
    def final_math(x0, x1):
        for c in range(4):
            a("v_and_b32 v%d, s58, v%d" % (x0 + c, x0 + c))
        for c in range(4):
            a("v_and_b32 v%d, s58, v%d" % (x1 + c, x1 + c))
        for c in range(4):
            a("v_mul_f32 v%d, v%d, v%d" % (AC + c, F0, x0 + c))
        for c in range(4):
            a("v_fmac_f32 v%d, v%d, v%d" % (AC + c, F1, x1 + c))
    if npipe:
        sets = [(PF + 8 * i, PF + 8 * i + 4) for i in range(npipe)]
        for i in range(issued[0], npipe): o_loads2(*sets[i])
        a.label("L_owait")
        for i in range(npipe):
            a("s_waitcnt vmcnt(%d)" % (2 * (npipe - 1)))
            o_check(*sets[i])
            a("s_cbranch_vccz L_ok%d" % i)
            if i == npipe - 1:
                a("s_add_u32 s54, s54, 1")
                a("s_cmp_lt_u32 s54, 0x40000")
                a("s_cbranch_scc0 L_ok%d" % i)
                a("s_cmp_lt_u32 s54, %d" % na)
                a("s_cbranch_scc1 L_otog")
                a("v_xor_b32 v%d, 0x%x, v%d" % (vFO, WS_B, vFO))
                a.label("L_otog")
            o_loads2(*sets[i])
        a("s_branch L_owait")
        for i in range(npipe):
            a.label("L_ok%d" % i)
            stamp(10)
            final_math(*sets[i])
            if i < npipe - 1: a("s_branch L_ook")
    else:
        a.label("L_owait")
        a("s_waitcnt vmcnt(0)")
        o_check(X0, X1)
        a("s_cbranch_vccz L_xok")
        a("s_add_u32 s54, s54, 1")
        a("s_cmp_lt_u32 s54, 0x40000")
        a("s_cbranch_scc0 L_xok")
        a("s_cmp_lt_u32 s54, %d" % na)
        a("s_cbranch_scc1 L_otog")
        a("v_xor_b32 v%d, 0x%x, v%d" % (vFO, WS_B, vFO))
        a.label("L_otog")
        o_loads2(X0, X1)
        a("s_branch L_owait")
        a.label("L_xok")
        stamp(10)
        final_math(X0, X1)
    a.label("L_ook")
    for c in range(4):
        a("v_add_f32_dpp v%d, v%d, v%d row_ror:8 row_mask:0xf bank_mask:0xf" % (AC + c, AC + c, AC + c))
    a("s_nop 0")
    a("v_permlane32_swap_b32 v%d, v%d" % (AC, AC + 1))
    a("v_permlane32_swap_b32 v%d, v%d" % (AC + 2, AC + 3))
    a("v_add_f32 v%d, v%d, v%d" % (AC, AC, AC + 1))
    a("v_add_f32 v%d, v%d, v%d" % (AC + 2, AC + 2, AC + 3))
    a("s_nop 1")
    a("v_permlane16_swap_b32 v%d, v%d" % (AC, AC + 2))
    a("v_add_f32 v%d, v%d, v%d" % (AC, AC, AC + 2))
    a("v_mul_f32 v%d, v%d, v%d" % (AC, AC, LS))
    a("v_cvt_pk_bf16_f32 v%d, v%d, v%d" % (AC, AC, AC))
    a("s_mov_b32 exec_lo, 0x00ff00ff")
    a("s_mov_b32 exec_hi, 0x00ff00ff")
    a("global_store_short v%d, v%d, s[16:17]" % (vFA, AC))
    a("s_cmp_eq_u32 s23, 15")
    a("s_cbranch_scc0 L_now")
    a("s_mov_b64 exec, 1")
    a("buffer_store_dword v%d, off, s[32:35], s60" % vNonce)
    a.label("L_now")
    a("s_mov_b64 exec, -1")
    if stamps:
        stamp(11)
        a("s_waitcnt vmcnt(0)")
    stamp(12)
    if stamps:
        a("s_mov_b32 s82, s54")
        a("s_mov_b32 s83, 0")
    stamp_flush(14)
    a.label("L_end")
    if spin:
        a("s_waitcnt vmcnt(0) lgkmcnt(0)")
        a.label("L_spin")
        a("s_memrealtime s[92:93]")
        a("s_waitcnt lgkmcnt(0)")
        a("s_sub_u32 s94, s92, s90")
        if spinref is not None:
            a("s_sub_u32 s95, s96, s90")
            a("s_sub_u32 s94, s94, s95")
        a("s_cmp_lt_u32 s94, %d" % spin)
        a("s_cbranch_scc1 L_spin")
    a("s_endpgm")
    out = HEADER + "; @launch grid=(256,1,1) block=(512,1,1) lds=%d\n" % LDS
    out += '.amdgcn_target "amdgcn-amd-amdhsa--gfx950"\n.text\n.globl %s_kernel\n.p2align 8\n.type %s_kernel,@function\n%s_kernel:\n' % (NAME, NAME, NAME)
    out += a.text()
    out += """.section .rodata,"a"
.p2align 6
.amdhsa_kernel %s_kernel
  .amdhsa_next_free_vgpr 256
  .amdhsa_next_free_sgpr 100
  .amdhsa_accum_offset 256
  .amdhsa_group_segment_fixed_size 0
  .amdhsa_kernarg_size 72
  .amdhsa_user_sgpr_count 2
  .amdhsa_user_sgpr_kernarg_segment_ptr 1
  .amdhsa_system_sgpr_workgroup_id_x 1
  .amdhsa_float_denorm_mode_32 3
.end_amdhsa_kernel
""" % NAME
    return out

if __name__ == "__main__":
    import argparse
    p = argparse.ArgumentParser()
    p.add_argument("-o", default="cdna_kernels/%s.s" % NAME)
    p.add_argument("--ld", default="nt")
    p.add_argument("--hs", default="sc1")
    p.add_argument("--stamps", action="store_true")
    p.add_argument("--spin", type=int, default=0)
    p.add_argument("--spinref", type=int, default=None)
    p.add_argument("--ibar", type=int, default=1)
    p.add_argument("--vsplit", type=int, default=8)
    p.add_argument("--cons", type=int, default=15)
    p.add_argument("--nonlocal", dest="nonlocal_", action="store_true")
    p.add_argument("--na", type=int, default=8)
    p.add_argument("--swave", type=int, default=0)
    p.add_argument("--skew", type=int, default=0)
    p.add_argument("--qpos", type=int, default=4)
    p.add_argument("--fw", type=int, default=1)
    p.add_argument("--dpoll", type=int, default=0)
    p.add_argument("--xpos", type=int, default=1)
    p.add_argument("--nomlwarm", action="store_true")
    p.add_argument("--hl", default="sc1")
    p.add_argument("--sstr", type=int, default=2048)
    p.add_argument("--nokslim", action="store_true")
    p.add_argument("--vdelay", type=int, default=0)
    p.add_argument("--vwarm", type=int, default=0)
    p.add_argument("--owarm", action="store_true")
    p.add_argument("--npipe", type=int, default=3)
    p.add_argument("--noearly0", action="store_true")
    p.add_argument("--v2a", type=int, default=4)
    x = p.parse_args()
    open(x.o, "w").write(gen(x.ld, x.hs, x.stamps, x.spin, x.spinref, x.ibar, x.vsplit, x.cons, not x.nonlocal_, x.na, x.skew, x.swave, x.qpos, x.fw, x.dpoll, x.xpos, not x.nomlwarm, x.hl, x.v2a, x.sstr, not x.nokslim, x.vdelay, x.vwarm, x.npipe, not x.noearly0, x.owarm))
```

```python
import sys, math, struct
NAME = "standalone__tree_speculative_verify_tree_attention_over_candidate_token_tree__decode"
HEADER = """; Kernarg layout for this problem (72 bytes, ptrs only, base s[0:1]):
"""
def f32hex(x):
    return "0x%08x" % struct.unpack("<I", struct.pack("<f", x))[0]
class Asm:
    def __init__(self): self.lines = []
    def __call__(self, s): self.lines.append("    " + s)
    def label(self, s): self.lines.append(s + ":")
    def c(self, s): self.lines.append("    ; " + s)
    def text(self): return "\n".join(self.lines) + "\n"
def vq(base, n=4): return "v[%d:%d]" % (base, base + n - 1)

def gen(ld="nt", hs="sc1", stamps=False, spin=0, spinref=None, ibar=1, vsplit=8, cons=15, local=True, na=8,
        skew=0, swave=0, qpos=4, fw=1, dpoll=0, xpos=1, mlwarm=True, hl="sc1", v2a=4, sstr=2048, kslim=True, vdelay=0, vwarm=0, npipe=3, early0=True, owarm=False, gwarm=False, early_small=False):
    a = Asm()
    LOG2E = 1.4426950408889634
    SCALE = 128 ** -0.5
    C = SCALE * LOG2E
    Q, KT, K = 12, 28, 44
    PR = 28
    KD, KR = 76, 80
    VD, vTR0, vTR1, vPW, vPR = 84, 86, 87, 88, 89
    S, ST = 92, 108
    PF = 112
    VF = 176
    D0, D1 = 208, 212
    T = 232
    vQr, vKToff, vVT, vOoff = 7, 8, 9, 10
    vTagO, vHead, vNonce = 248, 250, 251
    vFO, vFM, vFH, vFA = 11, 5, 246, 245
    vPT = 244
    L_M, L_L, L_ST, L_PT, L_Q, L_P, L_K = 0, 128, 256, 288, 512, 1536, 5632
    L_X = L_Q
    LDS = L_K + 8 * 16384
    WS_ML, WS_W, WS_B = 0xa0000, 0xb0000, 0x100000
    SSTR = sstr
    def stamp(i):
        if spinref == i: a("s_memrealtime s[96:97]")
        if stamps: a("s_memrealtime s[%d:%d]" % (64 + 2 * i, 65 + 2 * i))
    nfl = [0]
    def stamp_flush(n):
        if stamps:
            nfl[0] += 1
            a("s_waitcnt lgkmcnt(0)")
            a("s_cmp_eq_u32 s3, %d" % swave)
            a("s_cbranch_scc0 L_nostamp%d" % nfl[0])
            a("s_lshl_b32 s58, s2, 7")
            a("s_add_u32 s58, s58, 0x1000000")
            a("v_mov_b32 v252, s58")
            a("s_mov_b64 exec, 1")
            for i in range(n):
                a("v_mov_b32 v254, s%d" % (64 + 2 * i))
                a("v_mov_b32 v255, s%d" % (65 + 2 * i))
                a("global_store_dwordx2 v252, v[254:255], s[20:21] offset:%d" % (8 * i))
                a("s_nop 1")
            a("s_mov_b64 exec, -1")
            a.label("L_nostamp%d" % nfl[0])
    stamp(0)
    if spin: a("s_memrealtime s[90:91]")
    a("s_load_dwordx16 s[4:19], s[0:1], 0")
    a("s_load_dwordx2 s[20:21], s[0:1], 64")
    a("s_cmp_ge_u32 s2, 256")
    a("s_cbranch_scc1 L_end")
    if skew:
        a("s_mul_i32 s58, s2, 0x9E3779B1")
        a("s_lshr_b32 s58, s58, 29")
        a("s_mul_i32 s58, s58, %d" % skew)
        a("s_memrealtime s[90:91]")
        a("s_waitcnt lgkmcnt(0)")
        a.label("L_skew")
        a("s_memrealtime s[92:93]")
        a("s_waitcnt lgkmcnt(0)")
        a("s_sub_u32 s94, s92, s90")
        a("s_cmp_lt_u32 s94, s58")
        a("s_cbranch_scc1 L_skew")
    a("v_and_b32 v1, 63, v0")
    a("v_lshrrev_b32 v2, 6, v0")
    a("v_and_b32 v3, 15, v0")
    a("v_bfe_u32 v4, v0, 4, 2")
    a("v_readfirstlane_b32 s3, v2")
    if local:
        a("s_and_b32 s22, s2, 15")
        a("s_lshr_b32 s23, s2, 4")
    else:
        a("s_lshr_b32 s22, s2, 4")
        a("s_and_b32 s23, s2, 15")
    a("s_lshl_b32 s51, s22, 4")
    a("s_add_u32 s51, s51, s23")
    a("s_lshl_b32 s54, s51, 17")
    a("v_lshlrev_b32 v%d, 10, v2" % T)
    a("v_lshlrev_b32 v%d, 2, v4" % (T + 2))
    a("v_xor_b32 v%d, v3, v%d" % (T + 2, T + 2))
    a("v_lshl_add_u32 v%d, v4, 8, v%d" % (T + 3, T))
    for r in range(4):
        a("v_xor_b32 v%d, %d, v%d" % (KD + r, r, T + 2))
        a("v_lshl_add_u32 v%d, v%d, 4, v%d" % (KD + r, KD + r, T + 3))
        if kslim and r: a("v_add_u32 v%d, %d, v%d" % (KD + r, r * 7168, KD + r))
    if kslim:
        a("s_mov_b32 s44, 0x8000")
        a("s_mov_b32 s45, 0x10000")
        a("s_mov_b32 s46, 0x18000")
    a("v_lshlrev_b32 v%d, 4, v1" % vQr)
    a("s_mov_b32 s26, 0x20000")
    a("s_mov_b32 s27, 0x00020000")
    a("s_mov_b32 s30, 0x20000")
    a("s_mov_b32 s31, 0x00020000")
    a("s_mov_b32 s34, 0x200000")
    a("s_mov_b32 s35, 0x00020000")
    a("s_mov_b32 s86, 0x400")
    a("s_mov_b32 s87, 0x00020000")
    a("s_lshl_b32 s52, s22, 10")
    a("s_lshl_b32 s53, s22, 8")
    a("s_lshl_b32 s55, s3, 14")
    a("s_add_u32 s55, s55, %d" % L_K)
    a("s_waitcnt lgkmcnt(0)")
    stamp(1)
    a("s_add_u32 s24, s6, s54")
    a("s_addc_u32 s25, s7, 0")
    a("s_and_b32 s25, s25, 0xffff")
    a("s_add_u32 s84, s4, s52")
    a("s_addc_u32 s85, s5, 0")
    a("s_and_b32 s85, s85, 0xffff")
    a("s_or_b32 s56, s3, s23")
    a("s_cmp_eq_u32 s56, 0")
    a("s_cbranch_scc0 L_nokt")
    a("v_lshlrev_b32 v%d, 4, v4" % vKToff)
    a("v_add_u32 v%d, s53, v%d" % (vKToff, vKToff))
    for j in range(4):
        a("global_load_dwordx4 %s, v%d, s[10:11] offset:%d" % (vq(KT + 4 * j), vKToff, j * 64))
    a.label("L_nokt")
    def qdma():
        a("s_mov_b32 m0, %d" % L_Q)
        a("s_nop 0")
        a("buffer_load_dwordx4 v%d, s[84:87], 0 offen lds" % vQr)
    if kslim:
        assert qpos == 4
        for t in range(4):
            if t == 1: qdma()
            a("s_add_u32 m0, s55, %d" % (t * 4096))
            if t == 0: a("s_nop 0")
            else: a("s_nop 0")
            for r in range(4):
                a("buffer_load_dwordx4 v%d, s[24:27], %s offen offset:%d %s lds" % (KD + r, ["0", "s44", "s45", "s46"][t], r * 1024, ld))
    else:
        a("s_mov_b32 s58, 0")
        for i in range(16):
            if i == qpos: qdma()
            if i == 0 or i == qpos:
                a("s_add_u32 m0, s55, %d" % (i * 1024))
                a("s_nop 0")
            a("buffer_load_dwordx4 v%d, s[24:27], s58 offen %s lds" % (KD + (i & 3), ld))
            if i < 15:
                if i + 1 != qpos: a("s_add_u32 m0, m0, 1024")
                a("s_add_u32 s58, s58, 0x2000")
    a("s_add_u32 s28, s8, s54")
    a("s_addc_u32 s29, s9, 0")
    a("s_and_b32 s29, s29, 0xffff")
    a("s_mov_b32 s32, s20")
    a("s_and_b32 s33, s21, 0xffff")
    a("s_load_dword s62, s[14:15], 0")
    if vwarm == 1:
        a("buffer_load_dword v%d, off, s[28:31], 0 nt" % (T + 15))
    if vwarm == 2:
        a("s_cmp_eq_u32 s3, 0")
        a("s_cbranch_scc0 L_novw")
        a("v_and_b32 v%d, 15, v0" % (T + 14))
        a("v_lshlrev_b32 v%d, 13, v%d" % (T + 14, T + 14))
        a("s_mov_b64 exec, 0xffff")
        a("buffer_load_dword v%d, v%d, s[28:31], 0 offen nt" % (T + 15, T + 14))
        a("s_mov_b64 exec, -1")
        a.label("L_novw")
    a("s_lshl_b32 s58, s22, 7")
    a("s_add_u32 s60, s58, 0x%x" % WS_W)
    a("buffer_load_dword v%d, off, s[32:35], s60 %s" % (vNonce, hs))
    if mlwarm:
        a("s_lshl_b32 s58, s51, 6")
        a("s_add_u32 s58, s58, 0x%x" % WS_ML)
        a("buffer_load_dword v%d, off, s[32:35], s58 %s" % (T + 15, hs))
    if early_small:
        a("v_lshlrev_b32 v%d, 1, v3" % vVT)
        a("v_lshl_add_u32 v%d, v2, 5, v%d" % (vVT, vVT))
        a("v_add_u32 v%d, s53, v%d" % (vVT, vVT))
        a("global_load_ushort v%d, v%d, s[12:13]" % (vVT, vVT))
        if owarm:
            a("v_mov_b32 v%d, s52" % (T + 14))
            a("global_load_ushort v%d, v%d, s[16:17]" % (T + 15, T + 14))
    if ibar == 1: a("s_barrier")
    def vloads(i0, i1):
        a("s_add_u32 m0, s55, %d" % (i0 * 1024))
        a("s_mov_b32 s58, 0x%x" % (i0 * 0x2000))
        for i in range(i0, i1):
            a("buffer_load_dwordx4 v%d, s[28:31], s58 offen %s lds" % (VD + (i & 1), ld))
            if i < i1 - 1:
                a("s_add_u32 m0, m0, 1024")
                a("s_add_u32 s58, s58, 0x2000")
    a("v_lshlrev_b32 v%d, 8, v2" % vOoff)
    a("v_lshl_add_u32 v%d, v1, 2, v%d" % (vOoff, vOoff))
    a("v_and_b32 v%d, 1, v4" % (T + 8))
    a("v_lshlrev_b32 v%d, 1, v%d" % (T + 9, T + 8))
    a("v_lshrrev_b32 v%d, 1, v4" % (T + 10))
    a("v_or_b32 v%d, v%d, v%d" % (vHead, T + 9, T + 10))
    if not early_small:
        a("v_lshlrev_b32 v%d, 1, v3" % vVT)
        a("v_lshl_add_u32 v%d, v2, 5, v%d" % (vVT, vVT))
        a("v_add_u32 v%d, s53, v%d" % (vVT, vVT))
    a("v_and_b32 v%d, 1, v2" % (T + 9))
    a("v_lshlrev_b32 v%d, 2, v%d" % (T + 9, T + 9))
    a("v_lshl_add_u32 v%d, v%d, 3, v%d" % (T + 9, T + 8, T + 9))
    a("v_xor_b32 v%d, v3, v%d" % (T + 9, T + 9))
    a("v_lshlrev_b32 v%d, 10, v2" % (T + 10))
    a("v_lshl_add_u32 v%d, v4, 8, v%d" % (T + 10, T + 10))
    a("v_lshl_add_u32 v%d, v%d, 4, v%d" % (VD, T + 9, T + 10))
    a("v_xor_b32 v%d, 2, v%d" % (T + 9, T + 9))
    a("v_lshl_add_u32 v%d, v%d, 4, v%d" % (VD + 1, T + 9, T + 10))
    a("v_lshrrev_b32 v%d, 2, v3" % (T + 9))
    a("v_lshlrev_b32 v%d, 1, v%d" % (T + 10, T + 9))
    a("v_lshl_add_u32 v%d, v%d, 3, v%d" % (T + 10, T + 8, T + 10))
    a("v_bfe_u32 v%d, v3, 1, 1" % (T + 11))
    a("v_lshl_add_u32 v%d, v2, 1, v%d" % (T + 11, T + 11))
    a("v_xor_b32 v%d, v%d, v%d" % (T + 10, T + 10, T + 11))
    a("v_lshlrev_b32 v%d, 4, v%d" % (vTR0, T + 10))
    a("v_and_b32 v%d, 1, v3" % (T + 11))
    a("v_lshl_add_u32 v%d, v%d, 3, v%d" % (vTR0, T + 11, vTR0))
    a("v_lshl_add_u32 v%d, v4, 8, v%d" % (vTR0, vTR0))
    a("v_and_b32 v%d, 1, v%d" % (T + 11, T + 9))
    a("v_lshl_add_u32 v%d, v%d, 10, v%d" % (vTR0, T + 11, vTR0))
    a("v_lshrrev_b32 v%d, 1, v%d" % (T + 11, T + 9))
    a("v_lshl_add_u32 v%d, v%d, 14, v%d" % (vTR0, T + 11, vTR0))
    a("v_add_u32 v%d, 0x10000, v%d" % (vTR1, vTR0))
    a("v_lshlrev_b32 v%d, 6, v4" % vPR)
    a("v_lshl_add_u32 v%d, v3, 4, v%d" % (vPW, vPR))
    a("v_lshl_add_u32 v%d, v%d, 4, v%d" % (vPR, T + 9, vPR))
    a("s_lshr_b32 s36, s3, 2")
    a("s_lshl_b32 s36, s36, 8")
    a("s_and_b32 s37, s3, 3")
    a("s_lshl_b32 s37, s37, 2")
    a("s_add_u32 s36, s36, s37")
    a("v_add_u32 v%d, s36, v%d" % (vPW, vPW))
    a("v_lshrrev_b32 v%d, 3, v1" % (T + 8))
    a("v_and_b32 v%d, 7, v1" % (T + 9))
    a("s_mul_i32 s36, s22, %d" % (16 * SSTR))
    a("s_lshl_b32 s37, s23, 7")
    a("s_add_u32 s36, s36, s37")
    a("v_mul_u32_u24 v%d, %d, v%d" % (vFO, SSTR, T + 8))
    a("v_lshl_add_u32 v%d, v%d, 4, v%d" % (vFO, T + 9, vFO))
    a("v_add_u32 v%d, s36, v%d" % (vFO, vFO))
    a("v_lshrrev_b32 v%d, 2, v%d" % (vFH, T + 9))
    a("s_and_b32 s37, s23, 1")
    a("s_lshl_b32 s37, s37, 1")
    a("v_add_u32 v%d, s37, v%d" % (vFH, vFH))
    a("v_lshlrev_b32 v%d, 6, v%d" % (vFM, T + 8))
    a("v_lshl_add_u32 v%d, v%d, 4, v%d" % (vFM, vFH, vFM))
    a("s_lshl_b32 s37, s22, 10")
    a("s_add_u32 s37, s37, 0x%x" % WS_ML)
    a("v_add_u32 v%d, s37, v%d" % (vFM, vFM))
    a("v_and_b32 v%d, 3, v%d" % (T + 9, T + 9))
    a("v_lshl_add_u32 v%d, v%d, 2, v%d" % (T + 9, T + 9, vHead))
    a("v_lshlrev_b32 v%d, 1, v%d" % (T + 9, T + 9))
    a("v_lshl_add_u32 v%d, v%d, 8, v%d" % (vFA, vFH, T + 9))
    a("s_lshr_b32 s37, s23, 1")
    a("s_lshl_b32 s37, s37, 5")
    a("s_add_u32 s37, s37, s52")
    a("v_add_u32 v%d, s37, v%d" % (vFA, vFA))
    a("s_mov_b32 s38, %d" % (8 * SSTR))
    a("v_and_b32 v%d, 3, v3" % (T + 1))
    a("v_lshlrev_b32 v%d, 14, v2" % (T + 3))
    a("v_lshl_add_u32 v%d, v%d, 10, v%d" % (T + 3, T + 1, T + 3))
    a("v_lshrrev_b32 v%d, 2, v3" % (T + 2))
    a("v_lshl_add_u32 v%d, v%d, 8, v%d" % (T + 3, T + 2, T + 3))
    a("v_xor_b32 v%d, v4, v3" % (T + 2))
    for j in range(4):
        a("v_xor_b32 v%d, %d, v%d" % (KR + j, 4 * j, T + 2))
        a("v_lshl_add_u32 v%d, v%d, 4, v%d" % (KR + j, KR + j, T + 3))
    a("v_lshlrev_b32 v%d, 8, v%d" % (vQr, T + 1))
    a("v_lshl_add_u32 v%d, v4, 4, v%d" % (vQr, vQr))
    if ibar == 2: a("s_barrier")
    for _ in range(vdelay): a("s_nop 15")
    def kwait(t):
        last = 4 * t + 3
        younger = 15 - last
        if qpos > last:
            younger = 15 - (qpos - 1) if False else 15 - max(last, qpos - 1)
            younger = (15 - (qpos - 1))
        return younger + 1 + (1 if mlwarm else 0) + (1 if vwarm == 1 else 0) + ((1 + (1 if owarm else 0)) if early_small else 0)
    for t in range(4):
        a("s_waitcnt vmcnt(%d)" % kwait(t))
        if t == 0: stamp(13)
        kb = K + (t & 1) * 16
        if t == 0:
            for j in range(4):
                a("ds_read_b128 %s, v%d offset:%d" % (vq(Q + 4 * j), vQr, L_Q + j * 64))
        for j in range(4):
            a("ds_read_b128 %s, v%d offset:%d" % (vq(kb + 4 * j), KR + j, L_K + t * 4096))
        for j in range(4):
            a("s_waitcnt lgkmcnt(%d)" % (3 - j))
            a("v_mfma_f32_16x16x32_bf16 %s, %s, %s, %s" % (vq(S + 4 * t), vq(kb + 4 * j), vq(Q + 4 * j), "0" if j == 0 else vq(S + 4 * t)))
    vloads(0, 8)
    stamp(2)
    a("s_cmp_eq_u32 s3, 0")
    a("s_cbranch_scc0 L_notree")
    a("v_mov_b32 v%d, %s" % (T + 8, f32hex(-3.0e38)))
    a("s_cmp_eq_u32 s23, 0")
    a("s_cbranch_scc0 L_tree1")
    for j in range(4):
        a("v_mfma_f32_16x16x32_bf16 %s, %s, %s, %s" % (vq(ST), vq(KT + 4 * j), vq(Q + 4 * j), "0" if j == 0 else vq(ST)))
    a("s_waitcnt lgkmcnt(0)")
    a("s_lshr_b32 s58, s22, 3")
    a("s_lshl_b32 s58, s58, 4")
    a("s_lshr_b32 s58, s62, s58")
    a("s_lshl_b32 s58, s58, 16")
    a("v_mov_b32 v%d, s58" % (T + 8))
    a("v_sub_f32 v%d, 1.0, v%d" % (T + 8, T + 8))
    a("s_mov_b32 s58, %s" % f32hex(-1e9 / SCALE))
    a("s_nop 3")
    a("v_fma_f32 v%d, v%d, s58, v%d" % (T + 8, T + 8, ST))
    a.label("L_tree1")
    a("v_lshlrev_b32 v%d, 2, v3" % (T + 9))
    a("s_mov_b64 exec, 0xf")
    a("ds_write_b32 v%d, v%d offset:%d" % (T + 9, T + 8, L_ST))
    a("s_mov_b64 exec, -1")
    a.label("L_notree")
    a("v_max3_f32 v%d, v%d, v%d, v%d" % (T, S + 0, S + 1, S + 2))
    a("v_max3_f32 v%d, v%d, v%d, v%d" % (T + 1, S + 3, S + 4, S + 5))
    a("v_max3_f32 v%d, v%d, v%d, v%d" % (T + 2, S + 6, S + 7, S + 8))
    a("v_max3_f32 v%d, v%d, v%d, v%d" % (T + 3, S + 9, S + 10, S + 11))
    a("s_nop 4")
    a("v_max3_f32 v%d, v%d, v%d, v%d" % (T, T, S + 12, S + 13))
    a("v_max3_f32 v%d, v%d, v%d, v%d" % (T + 1, T + 1, S + 14, S + 15))
    a("v_max3_f32 v%d, v%d, v%d, v%d" % (T, T, T + 1, T + 2))
    a("v_max_f32 v%d, v%d, v%d" % (T, T, T + 3))
    def xlane(op, r, t):
        a("v_mov_b32 v%d, v%d" % (t, r))
        a("s_nop 1")
        a("v_permlane32_swap_b32 v%d, v%d" % (r, t))
        a("%s v%d, v%d, v%d" % (op, r, r, t))
        a("v_mov_b32 v%d, v%d" % (t, r))
        a("s_nop 1")
        a("v_permlane16_swap_b32 v%d, v%d" % (r, t))
        a("%s v%d, v%d, v%d" % (op, r, r, t))
    xlane("v_max_f32", T, T + 1)
    a("v_and_b32 v%d, 3, v3" % (T + 10))
    a("v_lshlrev_b32 v%d, 5, v%d" % (T + 2, T + 10))
    a("s_lshl_b32 s58, s3, 2")
    a("v_add_u32 v%d, s58, v%d" % (T + 3, T + 2))
    a("v_lshlrev_b32 v%d, 2, v%d" % (T + 10, T + 10))
    a("s_mov_b64 exec, 0xf")
    a("ds_write_b32 v%d, v%d offset:%d" % (T + 3, T, L_M))
    a("s_mov_b64 exec, -1")
    a("s_waitcnt lgkmcnt(0)")
    a("s_barrier")
    stamp(3)
    if not early_small:
        a("global_load_ushort v%d, v%d, s[12:13]" % (vVT, vVT))
        if owarm:
            a("global_load_ushort v%d, v%d, s[16:17]" % (T + 15, vFA))
    if gwarm:
        a("buffer_load_dword v%d, v%d, s[32:35], 0 offen %s" % (T + 15, vFO, hl))
        a("buffer_load_dword v%d, v%d, s[32:35], s38 offen %s" % (T + 15, vFO, hl))
    a("s_mul_i32 s57, s51, %d" % SSTR)
    a("buffer_load_dword v%d, v%d, s[32:35], s57 offen %s" % (T + 15, vOoff, hs))
    vloads(8, 12)
    a("ds_read_b128 %s, v%d offset:%d" % (vq(T + 4), T + 2, L_M))
    a("ds_read_b128 %s, v%d offset:%d" % (vq(K), T + 2, L_M + 16))
    a("ds_read_b32 v%d, v%d offset:%d" % (T + 8, T + 10, L_ST))
    a("s_mov_b32 s63, %s" % f32hex(C))
    a("s_waitcnt vmcnt(%d)" % (13 + (0 if early_small else 1 + (1 if owarm else 0)) + (2 if gwarm else 0)))
    a("v_add_u32 v%d, 1, v%d" % (vNonce, vNonce))
    a("v_and_b32 v%d, 3, v3" % (T + 11))
    a("v_lshlrev_b32 v%d, 3, v%d" % (T + 11, T + 11))
    a("v_lshrrev_b32 v%d, v%d, v%d" % (vTagO, T + 11, vNonce))
    a("v_and_b32 v%d, 0xff, v%d" % (vTagO, vTagO))
    a("v_readfirstlane_b32 s39, v%d" % vNonce)
    a("v_xor_b32 v%d, 0xff, v%d" % (T + 11, vTagO))
    a("v_lshlrev_b32 v%d, 2, v1" % (T + 9))
    a("ds_write_b32 v%d, v%d offset:%d" % (T + 9, T + 11, L_X))
    a("s_waitcnt lgkmcnt(0)")
    a("v_max3_f32 v%d, v%d, v%d, v%d" % (T, T + 4, T + 5, T + 6))
    a("v_max3_f32 v%d, v%d, v%d, v%d" % (T + 1, T + 7, K, K + 1))
    a("v_max3_f32 v%d, v%d, v%d, v%d" % (T, T, K + 2, K + 3))
    a("v_max3_f32 v%d, v%d, v%d, v%d" % (T, T, T + 1, T + 8))
    for r in range(16):
        a("v_sub_f32 v%d, v%d, v%d" % (S + r, S + r, T))
    a("v_sub_f32 v%d, v%d, v%d" % (T + 8, T + 8, T))
    for r in range(16):
        a("v_mul_f32 v%d, s63, v%d" % (S + r, S + r))
    a("v_mul_f32 v%d, s63, v%d" % (T + 8, T + 8))
    for r in range(16):
        a("v_exp_f32 v%d, v%d" % (S + r, S + r))
    a("v_exp_f32 v%d, v%d" % (T + 8, T + 8))
    a("v_mul_f32 v%d, s63, v%d" % (T, T))
    a("v_add_f32 v%d, v%d, v%d" % (T + 1, S + 0, S + 1))
    a("v_add_f32 v%d, v%d, v%d" % (T + 4, S + 2, S + 3))
    for r in range(4, 16, 2):
        a("v_add_f32 v%d, v%d, v%d" % (T + 1, T + 1, S + r))
        a("v_add_f32 v%d, v%d, v%d" % (T + 4, T + 4, S + r + 1))
    a("v_add_f32 v%d, v%d, v%d" % (T + 1, T + 1, T + 4))
    for u in range(2):
        for hq in range(2):
            t = 2 * u + hq
            a("v_cvt_pk_bf16_f32 v%d, v%d, v%d" % (PR + 4 * u + 2 * hq, S + 4 * t, S + 4 * t + 1))
            a("v_cvt_pk_bf16_f32 v%d, v%d, v%d" % (PR + 4 * u + 2 * hq + 1, S + 4 * t + 2, S + 4 * t + 3))
    xlane("v_add_f32", T + 1, T + 4)
    a("s_mov_b64 exec, 0xf")
    a("ds_write_b32 v%d, v%d offset:%d" % (T + 3, T + 1, L_L))
    a("s_cmp_eq_u32 s3, 0")
    a("s_cbranch_scc0 L_nomq")
    a("ds_write_b32 v%d, v%d offset:%d" % (T + 10, T + 8, L_PT))
    a.label("L_nomq")
    a("s_mov_b64 exec, -1")
    a("s_mov_b32 exec_lo, 0x000f000f")
    a("s_mov_b32 exec_hi, 0x000f000f")
    for c in range(8):
        a("ds_write_b32 v%d, v%d offset:%d" % (vPW, PR + c, L_P + c * 512))
    a("s_mov_b64 exec, -1")
    a("s_waitcnt lgkmcnt(0)")
    a("s_barrier")
    a("v_lshlrev_b32 v%d, 2, v4" % (T + 9))
    a("ds_read_b32 v%d, v%d offset:%d" % (vPT, T + 9, L_PT))
    a("s_cmp_eq_u32 s3, 0")
    a("s_cbranch_scc0 L_noml")
    a("ds_read_b128 %s, v%d offset:%d" % (vq(K), T + 2, L_L))
    a("ds_read_b128 %s, v%d offset:%d" % (vq(K + 4), T + 2, L_L + 16))
    a("s_lshl_b32 s61, s51, 6")
    a("s_add_u32 s61, s61, 0x%x" % WS_ML)
    a("s_add_u32 s56, s61, 0x%x" % WS_B)
    a("v_lshlrev_b32 v%d, 4, v3" % (K + 12))
    a("s_waitcnt lgkmcnt(0)")
    a("v_add_f32 v%d, v%d, v%d" % (K, K, K + 1))
    a("v_add_f32 v%d, v%d, v%d" % (K + 2, K + 2, K + 3))
    a("v_add_f32 v%d, v%d, v%d" % (K + 4, K + 4, K + 5))
    a("v_add_f32 v%d, v%d, v%d" % (K + 6, K + 6, K + 7))
    a("v_add_f32 v%d, v%d, v%d" % (K, K, K + 2))
    a("v_add_f32 v%d, v%d, v%d" % (K + 4, K + 4, K + 6))
    a("v_add_f32 v%d, v%d, v%d" % (K, K, K + 4))
    a("v_mov_b32 v%d, v%d" % (K + 8, T))
    a("v_add_f32 v%d, v%d, v%d" % (K + 9, K, T + 8))
    a("v_mov_b32 v%d, v%d" % (K + 10, vNonce))
    a("v_mov_b32 v%d, v%d" % (K + 11, vNonce))
    a("s_mov_b64 exec, 0xf")
    a("buffer_store_dwordx4 %s, v%d, s[32:35], s61 offen" % (vq(K + 8), K + 12))
    a("buffer_store_dwordx4 %s, v%d, s[32:35], s56 offen %s" % (vq(K + 8), K + 12, hs))
    a("s_mov_b64 exec, -1")
    a.label("L_noml")
    vloads(12, 16)
    for c in range(8):
        if c == 5: a("s_waitcnt lgkmcnt(4)")
        for bq in range(2):
            a("ds_read_b128 %s, v%d offset:%d" % (vq(PF + (c * 2 + bq) * 4), vPR, L_P + c * 512 + bq * 256))
    def tr_reads(c, bq, q):
        base = vTR0 if bq == 0 else vTR1
        a("ds_read_b64_tr_b16 %s, v%d offset:%d" % (vq(VF + 4 * q, 2), base, L_K + c * 2048))
        a("ds_read_b64_tr_b16 %s, v%d offset:%d" % (vq(VF + 4 * q + 2, 2), base, L_K + c * 2048 + 32768))
    def pv_mfma(c, bq, q):
        d = D0 if bq == 0 else D1
        a("v_mfma_f32_16x16x32_bf16 %s, %s, %s, %s" % (vq(d), vq(PF + (c * 2 + bq) * 4), vq(VF + 4 * q), "0" if c == 0 else vq(d)))
    def pv_group(chunks):
        blocks = [(c, bq) for c in chunks for bq in range(2)]
        for b0 in range(0, len(blocks), 4):
            batch = blocks[b0:b0 + 4]
            for q, (c, bq) in enumerate(batch): tr_reads(c, bq, q + 4 * ((b0 // 4) & 1))
            for q, (c, bq) in enumerate(batch):
                a("s_waitcnt lgkmcnt(%d)" % (2 * (len(batch) - 1 - q)))
                pv_mfma(c, bq, q + 4 * ((b0 // 4) & 1))
    X0, X1, M0, M1 = 52, 56, 60, 64
    B1, B2, F0, F1, LS, TT = 68, 69, 70, 71, 72, 73
    AC = 76
    a("s_waitcnt vmcnt(%d) lgkmcnt(0)" % (9 + (0 if early_small else 1 + (1 if owarm else 0)) + (2 if gwarm else 0)))
    a("s_barrier")
    pv_group([0, 1, 2, 3])
    a("s_waitcnt vmcnt(4)")
    a("v_lshlrev_b32 v%d, 16, v%d" % (vVT, vVT))
    a("v_mul_f32 v%d, v%d, v%d" % (vPT, vPT, vVT))
    a("s_barrier")
    pv_group([4, 5])
    a("s_waitcnt vmcnt(2)")
    a("s_barrier")
    pv_group([6])
    a("s_add_u32 s59, s57, 0x%x" % WS_B)
    a("s_mov_b32 s58, 0xffffff00")
    a("s_waitcnt vmcnt(0)")
    stamp(4)
    a("s_cmp_eq_u32 s3, %d" % fw)
    a("s_cbranch_scc0 L_nomlphase")
    a("buffer_load_dwordx4 %s, v%d, s[32:35], 0 offen %s" % (vq(M0), vFM, hl))
    a("buffer_load_dwordx4 %s, v%d, s[32:35], 0 offen offset:512 %s" % (vq(M1), vFM, hl))
    a.label("L_nomlphase")
    a("s_barrier")
    stamp(5)
    pv_group([7])
    A = K
    a("v_lshlrev_b32 v%d, 2, v1" % (A + 2))
    a("s_nop 6")
    a("v_add_f32 v%d, v%d, v%d" % (A, D0, D1))
    a("v_add_f32 v%d, v%d, v%d" % (A, A, vPT))
    a("v_and_or_b32 v%d, v%d, s58, v%d" % (A + 1, A, vTagO))
    a("buffer_store_dword v%d, v%d, s[32:35], s57 offen" % (A + 1, vOoff))
    a("s_cmp_eq_u32 s3, %d" % fw)
    a("s_cbranch_scc1 L_final")
    a("buffer_store_dword v%d, v%d, s[32:35], s59 offen %s" % (A + 1, vOoff, hs))
    a("s_cmp_eq_u32 s3, 0")
    a("s_cbranch_scc0 L_pubdone")
    a("s_mov_b32 s54, 0")
    a.label("L_bpoll")
    a("ds_read_b32 v%d, v%d offset:%d" % (A + 3, A + 2, L_X))
    a("s_waitcnt lgkmcnt(0)")
    a("v_xor_b32 v%d, v%d, v%d" % (A + 4, A + 3, vTagO))
    a("v_and_b32 v%d, 0xff, v%d" % (A + 4, A + 4))
    a("v_cmp_ne_u32 vcc, 0, v%d" % (A + 4))
    a("s_cbranch_vccz L_bgo")
    a("s_add_u32 s54, s54, 1")
    a("s_cmp_lt_u32 s54, 0x400000")
    a("s_cbranch_scc1 L_bpoll")
    a.label("L_bgo")
    a("v_add_u32 v%d, %d, v%d" % (A + 5, fw * 256, vOoff))
    a("buffer_store_dword v%d, v%d, s[32:35], s59 offen %s" % (A + 3, A + 5, hs))
    a.label("L_pubdone")
    stamp(6)
    stamp_flush(7)
    a("s_branch L_end")
    a.label("L_final")
    stamp(6)
    a("ds_write_b32 v%d, v%d offset:%d" % (A + 2, A + 1, L_X))
    a("s_and_b32 s40, s39, 0xff")
    a("s_bfe_u32 s41, s39, 0x80008")
    a("s_bfe_u32 s42, s39, 0x80010")
    a("s_lshr_b32 s43, s39, 24")
    a("s_mov_b32 s54, 0")
    if npipe and early0:
        a("buffer_load_dwordx4 %s, v%d, s[32:35], 0 offen %s" % (vq(PF), vFO, hl))
        a("buffer_load_dwordx4 %s, v%d, s[32:35], s38 offen %s" % (vq(PF + 4), vFO, hl))
        a("s_waitcnt vmcnt(3)")
    else:
        a("s_waitcnt vmcnt(1)")
    a("s_branch L_mlchk")
    a.label("L_mlpoll")
    a("buffer_load_dwordx4 %s, v%d, s[32:35], 0 offen %s" % (vq(M0), vFM, hl))
    a("buffer_load_dwordx4 %s, v%d, s[32:35], 0 offen offset:512 %s" % (vq(M1), vFM, hl))
    a("s_waitcnt vmcnt(0)")
    a.label("L_mlchk")
    a("v_xor_b32 v%d, s39, v%d" % (B1, M0 + 2))
    a("v_bitop3_b32 v%d, v%d, s39, v%d bitop3:0xbe" % (B1, M1 + 2, B1))
    a("v_bitop3_b32 v%d, v%d, s39, v%d bitop3:0xbe" % (B1, M0 + 3, B1))
    a("v_bitop3_b32 v%d, v%d, s39, v%d bitop3:0xbe" % (B1, M1 + 3, B1))
    a("v_cmp_ne_u32 vcc, 0, v%d" % B1)
    a("s_cbranch_vccz L_mlok")
    a("s_add_u32 s54, s54, 1")
    a("s_cmp_lt_u32 s54, 0x40000")
    a("s_cbranch_scc0 L_mlok")
    a("s_cmp_lt_u32 s54, %d" % na)
    a("s_cbranch_scc1 L_mlpoll")
    a("v_xor_b32 v%d, 0x%x, v%d" % (vFM, WS_B, vFM))
    a("s_branch L_mlpoll")
    a.label("L_mlok")
    stamp(7)
    Y0, Y1 = 100, 104
    def o_loads2(x0, x1):
        a("buffer_load_dwordx4 %s, v%d, s[32:35], 0 offen %s" % (vq(x0), vFO, hl))
        a("buffer_load_dwordx4 %s, v%d, s[32:35], s38 offen %s" % (vq(x1), vFO, hl))
    def o_check(x0, x1):
        a("v_xor_b32 v%d, s40, v%d" % (B1, x0))
        a("v_xor_b32 v%d, s41, v%d" % (B2, x0 + 1))
        a("v_bitop3_b32 v%d, v%d, s42, v%d bitop3:0xbe" % (B1, x0 + 2, B1))
        a("v_bitop3_b32 v%d, v%d, s43, v%d bitop3:0xbe" % (B2, x0 + 3, B2))
        a("v_bitop3_b32 v%d, v%d, s40, v%d bitop3:0xbe" % (B1, x1, B1))
        a("v_bitop3_b32 v%d, v%d, s41, v%d bitop3:0xbe" % (B2, x1 + 1, B2))
        a("v_bitop3_b32 v%d, v%d, s42, v%d bitop3:0xbe" % (B1, x1 + 2, B1))
        a("v_bitop3_b32 v%d, v%d, s43, v%d bitop3:0xbe" % (B2, x1 + 3, B2))
        a("v_or_b32 v%d, v%d, v%d" % (B1, B1, B2))
        a("v_and_b32 v%d, 0xff, v%d" % (B1, B1))
        a("v_cmp_ne_u32 vcc, 0, v%d" % B1)
    a("v_max_f32 v%d, v%d, v%d" % (F0, M0, M1))
    a("s_mov_b32 s54, 0")
    a("s_nop 0")
    a("v_max_f32_dpp v%d, v%d, v%d row_ror:8 row_mask:0xf bank_mask:0xf" % (F0, F0, F0))
    xlane("v_max_f32", F0, F1)
    a("v_sub_f32 v%d, v%d, v%d" % (F1, M1, F0))
    a("v_sub_f32 v%d, v%d, v%d" % (F0, M0, F0))
    a("v_exp_f32 v%d, v%d" % (F1, F1))
    a("v_exp_f32 v%d, v%d" % (F0, F0))
    issued = [0]
    if npipe and early0:
        issued[0] = 1
        if npipe >= 2:
            o_loads2(PF + 8, PF + 12); issued[0] = 2
    elif npipe:
        o_loads2(PF, PF + 4); issued[0] = 1
    elif xpos == 0: o_loads2(X0, X1)
    a("s_nop 0")
    a("v_mul_f32 v%d, v%d, v%d" % (LS, F1, M1 + 1))
    a("v_fmac_f32 v%d, v%d, v%d" % (LS, F0, M0 + 1))
    a("s_nop 1")
    a("v_add_f32_dpp v%d, v%d, v%d row_ror:8 row_mask:0xf bank_mask:0xf" % (LS, LS, LS))
    if npipe > issued[0] and npipe >= 2:
        k_ = issued[0]
        o_loads2(PF + 8 * k_, PF + 8 * k_ + 4); issued[0] = k_ + 1
    xlane("v_add_f32", LS, TT)
    a("v_rcp_f32 v%d, v%d" % (LS, LS))
    if xpos == 1 and not npipe: o_loads2(X0, X1)
    def final_math(x0, x1):
        for c in range(4):
            a("v_and_b32 v%d, s58, v%d" % (x0 + c, x0 + c))
        for c in range(4):
            a("v_and_b32 v%d, s58, v%d" % (x1 + c, x1 + c))
        for c in range(4):
            a("v_mul_f32 v%d, v%d, v%d" % (AC + c, F0, x0 + c))
        for c in range(4):
            a("v_fmac_f32 v%d, v%d, v%d" % (AC + c, F1, x1 + c))
    if npipe:
        sets = [(PF + 8 * i, PF + 8 * i + 4) for i in range(npipe)]
        for i in range(issued[0], npipe): o_loads2(*sets[i])
        a.label("L_owait")
        for i in range(npipe):
            a("s_waitcnt vmcnt(%d)" % (2 * (npipe - 1)))
            o_check(*sets[i])
            a("s_cbranch_vccz L_ok%d" % i)
            if i == npipe - 1:
                a("s_add_u32 s54, s54, 1")
                a("s_cmp_lt_u32 s54, 0x40000")
                a("s_cbranch_scc0 L_ok%d" % i)
                a("s_cmp_lt_u32 s54, %d" % na)
                a("s_cbranch_scc1 L_otog")
                a("v_xor_b32 v%d, 0x%x, v%d" % (vFO, WS_B, vFO))
                a.label("L_otog")
            o_loads2(*sets[i])
        a("s_branch L_owait")
        for i in range(npipe):
            a.label("L_ok%d" % i)
            stamp(10)
            final_math(*sets[i])
            if i < npipe - 1: a("s_branch L_ook")
    else:
        a.label("L_owait")
        a("s_waitcnt vmcnt(0)")
        o_check(X0, X1)
        a("s_cbranch_vccz L_xok")
        a("s_add_u32 s54, s54, 1")
        a("s_cmp_lt_u32 s54, 0x40000")
        a("s_cbranch_scc0 L_xok")
        a("s_cmp_lt_u32 s54, %d" % na)
        a("s_cbranch_scc1 L_otog")
        a("v_xor_b32 v%d, 0x%x, v%d" % (vFO, WS_B, vFO))
        a.label("L_otog")
        o_loads2(X0, X1)
        a("s_branch L_owait")
        a.label("L_xok")
        stamp(10)
        final_math(X0, X1)
    a.label("L_ook")
    for c in range(4):
        a("v_add_f32_dpp v%d, v%d, v%d row_ror:8 row_mask:0xf bank_mask:0xf" % (AC + c, AC + c, AC + c))
    a("s_nop 0")
    a("v_permlane32_swap_b32 v%d, v%d" % (AC, AC + 1))
    a("v_permlane32_swap_b32 v%d, v%d" % (AC + 2, AC + 3))
    a("v_add_f32 v%d, v%d, v%d" % (AC, AC, AC + 1))
    a("v_add_f32 v%d, v%d, v%d" % (AC + 2, AC + 2, AC + 3))
    a("s_nop 1")
    a("v_permlane16_swap_b32 v%d, v%d" % (AC, AC + 2))
    a("v_add_f32 v%d, v%d, v%d" % (AC, AC, AC + 2))
    a("v_mul_f32 v%d, v%d, v%d" % (AC, AC, LS))
    a("v_cvt_pk_bf16_f32 v%d, v%d, v%d" % (AC, AC, AC))
    a("s_mov_b32 exec_lo, 0x00ff00ff")
    a("s_mov_b32 exec_hi, 0x00ff00ff")
    a("global_store_short v%d, v%d, s[16:17]" % (vFA, AC))
    a("s_cmp_eq_u32 s23, 15")
    a("s_cbranch_scc0 L_now")
    a("s_mov_b64 exec, 1")
    a("buffer_store_dword v%d, off, s[32:35], s60" % vNonce)
    a.label("L_now")
    a("s_mov_b64 exec, -1")
    if stamps:
        stamp(11)
        a("s_waitcnt vmcnt(0)")
    stamp(12)
    if stamps:
        a("s_mov_b32 s82, s54")
        a("s_mov_b32 s83, 0")
    stamp_flush(14)
    a.label("L_end")
    if spin:
        a("s_waitcnt vmcnt(0) lgkmcnt(0)")
        a.label("L_spin")
        a("s_memrealtime s[92:93]")
        a("s_waitcnt lgkmcnt(0)")
        a("s_sub_u32 s94, s92, s90")
        if spinref is not None:
            a("s_sub_u32 s95, s96, s90")
            a("s_sub_u32 s94, s94, s95")
        a("s_cmp_lt_u32 s94, %d" % spin)
        a("s_cbranch_scc1 L_spin")
    a("s_endpgm")
    out = HEADER + "; @launch grid=(256,1,1) block=(512,1,1) lds=%d\n" % LDS
    out += '.amdgcn_target "amdgcn-amd-amdhsa--gfx950"\n.text\n.globl %s_kernel\n.p2align 8\n.type %s_kernel,@function\n%s_kernel:\n' % (NAME, NAME, NAME)
    out += a.text()
    out += """.section .rodata,"a"
.p2align 6
.amdhsa_kernel %s_kernel
  .amdhsa_next_free_vgpr 256
  .amdhsa_next_free_sgpr 100
  .amdhsa_accum_offset 256
  .amdhsa_group_segment_fixed_size 0
  .amdhsa_kernarg_size 72
  .amdhsa_user_sgpr_count 2
  .amdhsa_user_sgpr_kernarg_segment_ptr 1
  .amdhsa_system_sgpr_workgroup_id_x 1
  .amdhsa_float_denorm_mode_32 3
.end_amdhsa_kernel
""" % NAME
    return out

if __name__ == "__main__":
    import argparse
    p = argparse.ArgumentParser()
    p.add_argument("-o", default="cdna_kernels/%s.s" % NAME)
    p.add_argument("--ld", default="nt")
    p.add_argument("--hs", default="sc1")
    p.add_argument("--stamps", action="store_true")
    p.add_argument("--spin", type=int, default=0)
    p.add_argument("--spinref", type=int, default=None)
    p.add_argument("--ibar", type=int, default=1)
    p.add_argument("--vsplit", type=int, default=8)
    p.add_argument("--cons", type=int, default=15)
    p.add_argument("--nonlocal", dest="nonlocal_", action="store_true")
    p.add_argument("--na", type=int, default=8)
    p.add_argument("--swave", type=int, default=0)
    p.add_argument("--skew", type=int, default=0)
    p.add_argument("--qpos", type=int, default=4)
    p.add_argument("--fw", type=int, default=1)
    p.add_argument("--dpoll", type=int, default=0)
    p.add_argument("--xpos", type=int, default=1)
    p.add_argument("--nomlwarm", action="store_true")
    p.add_argument("--hl", default="sc1")
    p.add_argument("--sstr", type=int, default=2048)
    p.add_argument("--nokslim", action="store_true")
    p.add_argument("--vdelay", type=int, default=0)
    p.add_argument("--vwarm", type=int, default=0)
    p.add_argument("--owarm", action="store_true")
    p.add_argument("--gwarm", action="store_true")
    p.add_argument("--early_small", action="store_true")
    p.add_argument("--npipe", type=int, default=3)
    p.add_argument("--noearly0", action="store_true")
    p.add_argument("--v2a", type=int, default=4)
    x = p.parse_args()
    open(x.o, "w").write(gen(x.ld, x.hs, x.stamps, x.spin, x.spinref, x.ibar, x.vsplit, x.cons, not x.nonlocal_, x.na, x.skew, x.swave, x.qpos, x.fw, x.dpoll, x.xpos, not x.nomlwarm, x.hl, x.v2a, x.sstr, not x.nokslim, x.vdelay, x.vwarm, x.npipe, not x.noearly0, x.owarm, x.gwarm, x.early_small))
```

```python
import sys, math, struct
NAME = "standalone__tree_speculative_verify_tree_attention_over_candidate_token_tree__decode"
HEADER = """; Kernarg layout for this problem (72 bytes, ptrs only, base s[0:1]):
"""
def f32hex(x):
    return "0x%08x" % struct.unpack("<I", struct.pack("<f", x))[0]
class Asm:
    def __init__(self): self.lines = []
    def __call__(self, s): self.lines.append("    " + s)
    def label(self, s): self.lines.append(s + ":")
    def c(self, s): self.lines.append("    ; " + s)
    def text(self): return "\n".join(self.lines) + "\n"
def vq(base, n=4): return "v[%d:%d]" % (base, base + n - 1)

def gen(ld="nt", hs="sc1", stamps=False, spin=0, spinref=None, ibar=1, vsplit=8, cons=15, local=True, na=8,
        skew=0, swave=0, qpos=4, fw=1, dpoll=0, xpos=1, mlwarm=True, hl="sc1", v2a=4, sstr=2048, kslim=True, vdelay=0, vwarm=1, npipe=3, early0=True, owarm=True, gwarm=False, early_small=True):
    a = Asm()
    LOG2E = 1.4426950408889634
    SCALE = 128 ** -0.5
    C = SCALE * LOG2E
    Q, KT, K = 12, 28, 44
    PR = 28
    KD, KR = 76, 80
    VD, vTR0, vTR1, vPW, vPR = 84, 86, 87, 88, 89
    S, ST = 92, 108
    PF = 112
    VF = 176
    D0, D1 = 208, 212
    T = 232
    vQr, vKToff, vVT, vOoff = 7, 8, 9, 10
    vTagO, vHead, vNonce = 248, 250, 251
    vFO, vFM, vFH, vFA = 11, 5, 246, 245
    vPT = 244
    L_M, L_L, L_ST, L_PT, L_Q, L_P, L_K = 0, 128, 256, 288, 512, 1536, 5632
    L_X = L_Q
    LDS = L_K + 8 * 16384
    WS_ML, WS_W, WS_B = 0xa0000, 0xb0000, 0x100000
    SSTR = sstr
    def stamp(i):
        if spinref == i: a("s_memrealtime s[96:97]")
        if stamps: a("s_memrealtime s[%d:%d]" % (64 + 2 * i, 65 + 2 * i))
    nfl = [0]
    def stamp_flush(n):
        if stamps:
            nfl[0] += 1
            a("s_waitcnt lgkmcnt(0)")
            a("s_cmp_eq_u32 s3, %d" % swave)
            a("s_cbranch_scc0 L_nostamp%d" % nfl[0])
            a("s_lshl_b32 s58, s2, 7")
            a("s_add_u32 s58, s58, 0x1000000")
            a("v_mov_b32 v252, s58")
            a("s_mov_b64 exec, 1")
            for i in range(n):
                a("v_mov_b32 v254, s%d" % (64 + 2 * i))
                a("v_mov_b32 v255, s%d" % (65 + 2 * i))
                a("global_store_dwordx2 v252, v[254:255], s[20:21] offset:%d" % (8 * i))
                a("s_nop 1")
            a("s_mov_b64 exec, -1")
            a.label("L_nostamp%d" % nfl[0])
    stamp(0)
    if spin: a("s_memrealtime s[90:91]")
    a("s_load_dwordx16 s[4:19], s[0:1], 0")
    a("s_load_dwordx2 s[20:21], s[0:1], 64")
    a("s_cmp_ge_u32 s2, 256")
    a("s_cbranch_scc1 L_end")
    if skew:
        a("s_mul_i32 s58, s2, 0x9E3779B1")
        a("s_lshr_b32 s58, s58, 29")
        a("s_mul_i32 s58, s58, %d" % skew)
        a("s_memrealtime s[90:91]")
        a("s_waitcnt lgkmcnt(0)")
        a.label("L_skew")
        a("s_memrealtime s[92:93]")
        a("s_waitcnt lgkmcnt(0)")
        a("s_sub_u32 s94, s92, s90")
        a("s_cmp_lt_u32 s94, s58")
        a("s_cbranch_scc1 L_skew")
    a("v_and_b32 v1, 63, v0")
    a("v_lshrrev_b32 v2, 6, v0")
    a("v_and_b32 v3, 15, v0")
    a("v_bfe_u32 v4, v0, 4, 2")
    a("v_readfirstlane_b32 s3, v2")
    if local:
        a("s_and_b32 s22, s2, 15")
        a("s_lshr_b32 s23, s2, 4")
    else:
        a("s_lshr_b32 s22, s2, 4")
        a("s_and_b32 s23, s2, 15")
    a("s_lshl_b32 s51, s22, 4")
    a("s_add_u32 s51, s51, s23")
    a("s_lshl_b32 s54, s51, 17")
    a("v_lshlrev_b32 v%d, 10, v2" % T)
    a("v_lshlrev_b32 v%d, 2, v4" % (T + 2))
    a("v_xor_b32 v%d, v3, v%d" % (T + 2, T + 2))
    a("v_lshl_add_u32 v%d, v4, 8, v%d" % (T + 3, T))
    for r in range(4):
        a("v_xor_b32 v%d, %d, v%d" % (KD + r, r, T + 2))
        a("v_lshl_add_u32 v%d, v%d, 4, v%d" % (KD + r, KD + r, T + 3))
        if kslim and r: a("v_add_u32 v%d, %d, v%d" % (KD + r, r * 7168, KD + r))
    if kslim:
        a("s_mov_b32 s44, 0x8000")
        a("s_mov_b32 s45, 0x10000")
        a("s_mov_b32 s46, 0x18000")
    a("v_lshlrev_b32 v%d, 4, v1" % vQr)
    a("s_mov_b32 s26, 0x20000")
    a("s_mov_b32 s27, 0x00020000")
    a("s_mov_b32 s30, 0x20000")
    a("s_mov_b32 s31, 0x00020000")
    a("s_mov_b32 s34, 0x200000")
    a("s_mov_b32 s35, 0x00020000")
    a("s_mov_b32 s86, 0x400")
    a("s_mov_b32 s87, 0x00020000")
    a("s_lshl_b32 s52, s22, 10")
    a("s_lshl_b32 s53, s22, 8")
    a("s_lshl_b32 s55, s3, 14")
    a("s_add_u32 s55, s55, %d" % L_K)
    a("s_waitcnt lgkmcnt(0)")
    stamp(1)
    a("s_add_u32 s24, s6, s54")
    a("s_addc_u32 s25, s7, 0")
    a("s_and_b32 s25, s25, 0xffff")
    a("s_add_u32 s84, s4, s52")
    a("s_addc_u32 s85, s5, 0")
    a("s_and_b32 s85, s85, 0xffff")
    a("s_or_b32 s56, s3, s23")
    a("s_cmp_eq_u32 s56, 0")
    a("s_cbranch_scc0 L_nokt")
    a("v_lshlrev_b32 v%d, 4, v4" % vKToff)
    a("v_add_u32 v%d, s53, v%d" % (vKToff, vKToff))
    for j in range(4):
        a("global_load_dwordx4 %s, v%d, s[10:11] offset:%d" % (vq(KT + 4 * j), vKToff, j * 64))
    a.label("L_nokt")
    def qdma():
        a("s_mov_b32 m0, %d" % L_Q)
        a("s_nop 0")
        a("buffer_load_dwordx4 v%d, s[84:87], 0 offen lds" % vQr)
    if kslim:
        assert qpos == 4
        for t in range(4):
            if t == 1: qdma()
            a("s_add_u32 m0, s55, %d" % (t * 4096))
            if t == 0: a("s_nop 0")
            else: a("s_nop 0")
            for r in range(4):
                a("buffer_load_dwordx4 v%d, s[24:27], %s offen offset:%d %s lds" % (KD + r, ["0", "s44", "s45", "s46"][t], r * 1024, ld))
    else:
        a("s_mov_b32 s58, 0")
        for i in range(16):
            if i == qpos: qdma()
            if i == 0 or i == qpos:
                a("s_add_u32 m0, s55, %d" % (i * 1024))
                a("s_nop 0")
            a("buffer_load_dwordx4 v%d, s[24:27], s58 offen %s lds" % (KD + (i & 3), ld))
            if i < 15:
                if i + 1 != qpos: a("s_add_u32 m0, m0, 1024")
                a("s_add_u32 s58, s58, 0x2000")
    a("s_add_u32 s28, s8, s54")
    a("s_addc_u32 s29, s9, 0")
    a("s_and_b32 s29, s29, 0xffff")
    a("s_mov_b32 s32, s20")
    a("s_and_b32 s33, s21, 0xffff")
    a("s_load_dword s62, s[14:15], 0")
    if vwarm == 1:
        a("buffer_load_dword v%d, off, s[28:31], 0 nt" % (T + 15))
    if vwarm == 2:
        a("s_cmp_eq_u32 s3, 0")
        a("s_cbranch_scc0 L_novw")
        a("v_and_b32 v%d, 15, v0" % (T + 14))
        a("v_lshlrev_b32 v%d, 13, v%d" % (T + 14, T + 14))
        a("s_mov_b64 exec, 0xffff")
        a("buffer_load_dword v%d, v%d, s[28:31], 0 offen nt" % (T + 15, T + 14))
        a("s_mov_b64 exec, -1")
        a.label("L_novw")
    a("s_lshl_b32 s58, s22, 7")
    a("s_add_u32 s60, s58, 0x%x" % WS_W)
    a("buffer_load_dword v%d, off, s[32:35], s60 %s" % (vNonce, hs))
    if mlwarm:
        a("s_lshl_b32 s58, s51, 6")
        a("s_add_u32 s58, s58, 0x%x" % WS_ML)
        a("buffer_load_dword v%d, off, s[32:35], s58 %s" % (T + 15, hs))
    if early_small:
        a("v_lshlrev_b32 v%d, 1, v3" % vVT)
        a("v_lshl_add_u32 v%d, v2, 5, v%d" % (vVT, vVT))
        a("v_add_u32 v%d, s53, v%d" % (vVT, vVT))
        a("global_load_ushort v%d, v%d, s[12:13]" % (vVT, vVT))
        if owarm:
            a("v_mov_b32 v%d, s52" % (T + 14))
            a("global_load_ushort v%d, v%d, s[16:17]" % (T + 15, T + 14))
    if ibar == 1: a("s_barrier")
    def vloads(i0, i1):
        a("s_add_u32 m0, s55, %d" % (i0 * 1024))
        a("s_mov_b32 s58, 0x%x" % (i0 * 0x2000))
        for i in range(i0, i1):
            a("buffer_load_dwordx4 v%d, s[28:31], s58 offen %s lds" % (VD + (i & 1), ld))
            if i < i1 - 1:
                a("s_add_u32 m0, m0, 1024")
                a("s_add_u32 s58, s58, 0x2000")
    a("v_lshlrev_b32 v%d, 8, v2" % vOoff)
    a("v_lshl_add_u32 v%d, v1, 2, v%d" % (vOoff, vOoff))
    a("v_and_b32 v%d, 1, v4" % (T + 8))
    a("v_lshlrev_b32 v%d, 1, v%d" % (T + 9, T + 8))
    a("v_lshrrev_b32 v%d, 1, v4" % (T + 10))
    a("v_or_b32 v%d, v%d, v%d" % (vHead, T + 9, T + 10))
    if not early_small:
        a("v_lshlrev_b32 v%d, 1, v3" % vVT)
        a("v_lshl_add_u32 v%d, v2, 5, v%d" % (vVT, vVT))
        a("v_add_u32 v%d, s53, v%d" % (vVT, vVT))
    a("v_and_b32 v%d, 1, v2" % (T + 9))
    a("v_lshlrev_b32 v%d, 2, v%d" % (T + 9, T + 9))
    a("v_lshl_add_u32 v%d, v%d, 3, v%d" % (T + 9, T + 8, T + 9))
    a("v_xor_b32 v%d, v3, v%d" % (T + 9, T + 9))
    a("v_lshlrev_b32 v%d, 10, v2" % (T + 10))
    a("v_lshl_add_u32 v%d, v4, 8, v%d" % (T + 10, T + 10))
    a("v_lshl_add_u32 v%d, v%d, 4, v%d" % (VD, T + 9, T + 10))
    a("v_xor_b32 v%d, 2, v%d" % (T + 9, T + 9))
    a("v_lshl_add_u32 v%d, v%d, 4, v%d" % (VD + 1, T + 9, T + 10))
    a("v_lshrrev_b32 v%d, 2, v3" % (T + 9))
    a("v_lshlrev_b32 v%d, 1, v%d" % (T + 10, T + 9))
    a("v_lshl_add_u32 v%d, v%d, 3, v%d" % (T + 10, T + 8, T + 10))
    a("v_bfe_u32 v%d, v3, 1, 1" % (T + 11))
    a("v_lshl_add_u32 v%d, v2, 1, v%d" % (T + 11, T + 11))
    a("v_xor_b32 v%d, v%d, v%d" % (T + 10, T + 10, T + 11))
    a("v_lshlrev_b32 v%d, 4, v%d" % (vTR0, T + 10))
    a("v_and_b32 v%d, 1, v3" % (T + 11))
    a("v_lshl_add_u32 v%d, v%d, 3, v%d" % (vTR0, T + 11, vTR0))
    a("v_lshl_add_u32 v%d, v4, 8, v%d" % (vTR0, vTR0))
    a("v_and_b32 v%d, 1, v%d" % (T + 11, T + 9))
    a("v_lshl_add_u32 v%d, v%d, 10, v%d" % (vTR0, T + 11, vTR0))
    a("v_lshrrev_b32 v%d, 1, v%d" % (T + 11, T + 9))
    a("v_lshl_add_u32 v%d, v%d, 14, v%d" % (vTR0, T + 11, vTR0))
    a("v_add_u32 v%d, 0x10000, v%d" % (vTR1, vTR0))
    a("v_lshlrev_b32 v%d, 6, v4" % vPR)
    a("v_lshl_add_u32 v%d, v3, 4, v%d" % (vPW, vPR))
    a("v_lshl_add_u32 v%d, v%d, 4, v%d" % (vPR, T + 9, vPR))
    a("s_lshr_b32 s36, s3, 2")
    a("s_lshl_b32 s36, s36, 8")
    a("s_and_b32 s37, s3, 3")
    a("s_lshl_b32 s37, s37, 2")
    a("s_add_u32 s36, s36, s37")
    a("v_add_u32 v%d, s36, v%d" % (vPW, vPW))
    a("v_lshrrev_b32 v%d, 3, v1" % (T + 8))
    a("v_and_b32 v%d, 7, v1" % (T + 9))
    a("s_mul_i32 s36, s22, %d" % (16 * SSTR))
    a("s_lshl_b32 s37, s23, 7")
    a("s_add_u32 s36, s36, s37")
    a("v_mul_u32_u24 v%d, %d, v%d" % (vFO, SSTR, T + 8))
    a("v_lshl_add_u32 v%d, v%d, 4, v%d" % (vFO, T + 9, vFO))
    a("v_add_u32 v%d, s36, v%d" % (vFO, vFO))
    a("v_lshrrev_b32 v%d, 2, v%d" % (vFH, T + 9))
    a("s_and_b32 s37, s23, 1")
    a("s_lshl_b32 s37, s37, 1")
    a("v_add_u32 v%d, s37, v%d" % (vFH, vFH))
    a("v_lshlrev_b32 v%d, 6, v%d" % (vFM, T + 8))
    a("v_lshl_add_u32 v%d, v%d, 4, v%d" % (vFM, vFH, vFM))
    a("s_lshl_b32 s37, s22, 10")
    a("s_add_u32 s37, s37, 0x%x" % WS_ML)
    a("v_add_u32 v%d, s37, v%d" % (vFM, vFM))
    a("v_and_b32 v%d, 3, v%d" % (T + 9, T + 9))
    a("v_lshl_add_u32 v%d, v%d, 2, v%d" % (T + 9, T + 9, vHead))
    a("v_lshlrev_b32 v%d, 1, v%d" % (T + 9, T + 9))
    a("v_lshl_add_u32 v%d, v%d, 8, v%d" % (vFA, vFH, T + 9))
    a("s_lshr_b32 s37, s23, 1")
    a("s_lshl_b32 s37, s37, 5")
    a("s_add_u32 s37, s37, s52")
    a("v_add_u32 v%d, s37, v%d" % (vFA, vFA))
    a("s_mov_b32 s38, %d" % (8 * SSTR))
    a("v_and_b32 v%d, 3, v3" % (T + 1))
    a("v_lshlrev_b32 v%d, 14, v2" % (T + 3))
    a("v_lshl_add_u32 v%d, v%d, 10, v%d" % (T + 3, T + 1, T + 3))
    a("v_lshrrev_b32 v%d, 2, v3" % (T + 2))
    a("v_lshl_add_u32 v%d, v%d, 8, v%d" % (T + 3, T + 2, T + 3))
    a("v_xor_b32 v%d, v4, v3" % (T + 2))
    for j in range(4):
        a("v_xor_b32 v%d, %d, v%d" % (KR + j, 4 * j, T + 2))
        a("v_lshl_add_u32 v%d, v%d, 4, v%d" % (KR + j, KR + j, T + 3))
    a("v_lshlrev_b32 v%d, 8, v%d" % (vQr, T + 1))
    a("v_lshl_add_u32 v%d, v4, 4, v%d" % (vQr, vQr))
    if ibar == 2: a("s_barrier")
    for _ in range(vdelay): a("s_nop 15")
    def kwait(t):
        last = 4 * t + 3
        younger = 15 - last
        if qpos > last:
            younger = 15 - (qpos - 1) if False else 15 - max(last, qpos - 1)
            younger = (15 - (qpos - 1))
        return younger + 1 + (1 if mlwarm else 0) + (1 if vwarm == 1 else 0) + ((1 + (1 if owarm else 0)) if early_small else 0)
    for t in range(4):
        a("s_waitcnt vmcnt(%d)" % kwait(t))
        if t == 0: stamp(13)
        kb = K + (t & 1) * 16
        if t == 0:
            for j in range(4):
                a("ds_read_b128 %s, v%d offset:%d" % (vq(Q + 4 * j), vQr, L_Q + j * 64))
        for j in range(4):
            a("ds_read_b128 %s, v%d offset:%d" % (vq(kb + 4 * j), KR + j, L_K + t * 4096))
        for j in range(4):
            a("s_waitcnt lgkmcnt(%d)" % (3 - j))
            a("v_mfma_f32_16x16x32_bf16 %s, %s, %s, %s" % (vq(S + 4 * t), vq(kb + 4 * j), vq(Q + 4 * j), "0" if j == 0 else vq(S + 4 * t)))
    vloads(0, 8)
    stamp(2)
    a("s_cmp_eq_u32 s3, 0")
    a("s_cbranch_scc0 L_notree")
    a("v_mov_b32 v%d, %s" % (T + 8, f32hex(-3.0e38)))
    a("s_cmp_eq_u32 s23, 0")
    a("s_cbranch_scc0 L_tree1")
    for j in range(4):
        a("v_mfma_f32_16x16x32_bf16 %s, %s, %s, %s" % (vq(ST), vq(KT + 4 * j), vq(Q + 4 * j), "0" if j == 0 else vq(ST)))
    a("s_waitcnt lgkmcnt(0)")
    a("s_lshr_b32 s58, s22, 3")
    a("s_lshl_b32 s58, s58, 4")
    a("s_lshr_b32 s58, s62, s58")
    a("s_lshl_b32 s58, s58, 16")
    a("v_mov_b32 v%d, s58" % (T + 8))
    a("v_sub_f32 v%d, 1.0, v%d" % (T + 8, T + 8))
    a("s_mov_b32 s58, %s" % f32hex(-1e9 / SCALE))
    a("s_nop 3")
    a("v_fma_f32 v%d, v%d, s58, v%d" % (T + 8, T + 8, ST))
    a.label("L_tree1")
    a("v_lshlrev_b32 v%d, 2, v3" % (T + 9))
    a("s_mov_b64 exec, 0xf")
    a("ds_write_b32 v%d, v%d offset:%d" % (T + 9, T + 8, L_ST))
    a("s_mov_b64 exec, -1")
    a.label("L_notree")
    a("v_max3_f32 v%d, v%d, v%d, v%d" % (T, S + 0, S + 1, S + 2))
    a("v_max3_f32 v%d, v%d, v%d, v%d" % (T + 1, S + 3, S + 4, S + 5))
    a("v_max3_f32 v%d, v%d, v%d, v%d" % (T + 2, S + 6, S + 7, S + 8))
    a("v_max3_f32 v%d, v%d, v%d, v%d" % (T + 3, S + 9, S + 10, S + 11))
    a("s_nop 4")
    a("v_max3_f32 v%d, v%d, v%d, v%d" % (T, T, S + 12, S + 13))
    a("v_max3_f32 v%d, v%d, v%d, v%d" % (T + 1, T + 1, S + 14, S + 15))
    a("v_max3_f32 v%d, v%d, v%d, v%d" % (T, T, T + 1, T + 2))
    a("v_max_f32 v%d, v%d, v%d" % (T, T, T + 3))
    def xlane(op, r, t):
        a("v_mov_b32 v%d, v%d" % (t, r))
        a("s_nop 1")
        a("v_permlane32_swap_b32 v%d, v%d" % (r, t))
        a("%s v%d, v%d, v%d" % (op, r, r, t))
        a("v_mov_b32 v%d, v%d" % (t, r))
        a("s_nop 1")
        a("v_permlane16_swap_b32 v%d, v%d" % (r, t))
        a("%s v%d, v%d, v%d" % (op, r, r, t))
    xlane("v_max_f32", T, T + 1)
    a("v_and_b32 v%d, 3, v3" % (T + 10))
    a("v_lshlrev_b32 v%d, 5, v%d" % (T + 2, T + 10))
    a("s_lshl_b32 s58, s3, 2")
    a("v_add_u32 v%d, s58, v%d" % (T + 3, T + 2))
    a("v_lshlrev_b32 v%d, 2, v%d" % (T + 10, T + 10))
    a("s_mov_b64 exec, 0xf")
    a("ds_write_b32 v%d, v%d offset:%d" % (T + 3, T, L_M))
    a("s_mov_b64 exec, -1")
    a("s_waitcnt lgkmcnt(0)")
    a("s_barrier")
    stamp(3)
    if not early_small:
        a("global_load_ushort v%d, v%d, s[12:13]" % (vVT, vVT))
        if owarm:
            a("global_load_ushort v%d, v%d, s[16:17]" % (T + 15, vFA))
    if gwarm:
        a("buffer_load_dword v%d, v%d, s[32:35], 0 offen %s" % (T + 15, vFO, hl))
        a("buffer_load_dword v%d, v%d, s[32:35], s38 offen %s" % (T + 15, vFO, hl))
    a("s_mul_i32 s57, s51, %d" % SSTR)
    a("buffer_load_dword v%d, v%d, s[32:35], s57 offen %s" % (T + 15, vOoff, hs))
    vloads(8, 12)
    a("ds_read_b128 %s, v%d offset:%d" % (vq(T + 4), T + 2, L_M))
    a("ds_read_b128 %s, v%d offset:%d" % (vq(K), T + 2, L_M + 16))
    a("ds_read_b32 v%d, v%d offset:%d" % (T + 8, T + 10, L_ST))
    a("s_mov_b32 s63, %s" % f32hex(C))
    a("s_waitcnt vmcnt(%d)" % (13 + (0 if early_small else 1 + (1 if owarm else 0)) + (2 if gwarm else 0)))
    a("v_add_u32 v%d, 1, v%d" % (vNonce, vNonce))
    a("v_and_b32 v%d, 3, v3" % (T + 11))
    a("v_lshlrev_b32 v%d, 3, v%d" % (T + 11, T + 11))
    a("v_lshrrev_b32 v%d, v%d, v%d" % (vTagO, T + 11, vNonce))
    a("v_and_b32 v%d, 0xff, v%d" % (vTagO, vTagO))
    a("v_readfirstlane_b32 s39, v%d" % vNonce)
    a("v_xor_b32 v%d, 0xff, v%d" % (T + 11, vTagO))
    a("v_lshlrev_b32 v%d, 2, v1" % (T + 9))
    a("ds_write_b32 v%d, v%d offset:%d" % (T + 9, T + 11, L_X))
    a("s_waitcnt lgkmcnt(0)")
    a("v_max3_f32 v%d, v%d, v%d, v%d" % (T, T + 4, T + 5, T + 6))
    a("v_max3_f32 v%d, v%d, v%d, v%d" % (T + 1, T + 7, K, K + 1))
    a("v_max3_f32 v%d, v%d, v%d, v%d" % (T, T, K + 2, K + 3))
    a("v_max3_f32 v%d, v%d, v%d, v%d" % (T, T, T + 1, T + 8))
    for r in range(16):
        a("v_sub_f32 v%d, v%d, v%d" % (S + r, S + r, T))
    a("v_sub_f32 v%d, v%d, v%d" % (T + 8, T + 8, T))
    for r in range(16):
        a("v_mul_f32 v%d, s63, v%d" % (S + r, S + r))
    a("v_mul_f32 v%d, s63, v%d" % (T + 8, T + 8))
    for r in range(16):
        a("v_exp_f32 v%d, v%d" % (S + r, S + r))
    a("v_exp_f32 v%d, v%d" % (T + 8, T + 8))
    a("v_mul_f32 v%d, s63, v%d" % (T, T))
    a("v_add_f32 v%d, v%d, v%d" % (T + 1, S + 0, S + 1))
    a("v_add_f32 v%d, v%d, v%d" % (T + 4, S + 2, S + 3))
    for r in range(4, 16, 2):
        a("v_add_f32 v%d, v%d, v%d" % (T + 1, T + 1, S + r))
        a("v_add_f32 v%d, v%d, v%d" % (T + 4, T + 4, S + r + 1))
    a("v_add_f32 v%d, v%d, v%d" % (T + 1, T + 1, T + 4))
    for u in range(2):
        for hq in range(2):
            t = 2 * u + hq
            a("v_cvt_pk_bf16_f32 v%d, v%d, v%d" % (PR + 4 * u + 2 * hq, S + 4 * t, S + 4 * t + 1))
            a("v_cvt_pk_bf16_f32 v%d, v%d, v%d" % (PR + 4 * u + 2 * hq + 1, S + 4 * t + 2, S + 4 * t + 3))
    xlane("v_add_f32", T + 1, T + 4)
    a("s_mov_b64 exec, 0xf")
    a("ds_write_b32 v%d, v%d offset:%d" % (T + 3, T + 1, L_L))
    a("s_cmp_eq_u32 s3, 0")
    a("s_cbranch_scc0 L_nomq")
    a("ds_write_b32 v%d, v%d offset:%d" % (T + 10, T + 8, L_PT))
    a.label("L_nomq")
    a("s_mov_b64 exec, -1")
    a("s_mov_b32 exec_lo, 0x000f000f")
    a("s_mov_b32 exec_hi, 0x000f000f")
    for c in range(8):
        a("ds_write_b32 v%d, v%d offset:%d" % (vPW, PR + c, L_P + c * 512))
    a("s_mov_b64 exec, -1")
    a("s_waitcnt lgkmcnt(0)")
    a("s_barrier")
    a("v_lshlrev_b32 v%d, 2, v4" % (T + 9))
    a("ds_read_b32 v%d, v%d offset:%d" % (vPT, T + 9, L_PT))
    a("s_cmp_eq_u32 s3, 0")
    a("s_cbranch_scc0 L_noml")
    a("ds_read_b128 %s, v%d offset:%d" % (vq(K), T + 2, L_L))
    a("ds_read_b128 %s, v%d offset:%d" % (vq(K + 4), T + 2, L_L + 16))
    a("s_lshl_b32 s61, s51, 6")
    a("s_add_u32 s61, s61, 0x%x" % WS_ML)
    a("s_add_u32 s56, s61, 0x%x" % WS_B)
    a("v_lshlrev_b32 v%d, 4, v3" % (K + 12))
    a("s_waitcnt lgkmcnt(0)")
    a("v_add_f32 v%d, v%d, v%d" % (K, K, K + 1))
    a("v_add_f32 v%d, v%d, v%d" % (K + 2, K + 2, K + 3))
    a("v_add_f32 v%d, v%d, v%d" % (K + 4, K + 4, K + 5))
    a("v_add_f32 v%d, v%d, v%d" % (K + 6, K + 6, K + 7))
    a("v_add_f32 v%d, v%d, v%d" % (K, K, K + 2))
    a("v_add_f32 v%d, v%d, v%d" % (K + 4, K + 4, K + 6))
    a("v_add_f32 v%d, v%d, v%d" % (K, K, K + 4))
    a("v_mov_b32 v%d, v%d" % (K + 8, T))
    a("v_add_f32 v%d, v%d, v%d" % (K + 9, K, T + 8))
    a("v_mov_b32 v%d, v%d" % (K + 10, vNonce))
    a("v_mov_b32 v%d, v%d" % (K + 11, vNonce))
    a("s_mov_b64 exec, 0xf")
    a("buffer_store_dwordx4 %s, v%d, s[32:35], s61 offen" % (vq(K + 8), K + 12))
    a("buffer_store_dwordx4 %s, v%d, s[32:35], s56 offen %s" % (vq(K + 8), K + 12, hs))
    a("s_mov_b64 exec, -1")
    a.label("L_noml")
    vloads(12, 16)
    for c in range(8):
        if c == 5: a("s_waitcnt lgkmcnt(4)")
        for bq in range(2):
            a("ds_read_b128 %s, v%d offset:%d" % (vq(PF + (c * 2 + bq) * 4), vPR, L_P + c * 512 + bq * 256))
    def tr_reads(c, bq, q):
        base = vTR0 if bq == 0 else vTR1
        a("ds_read_b64_tr_b16 %s, v%d offset:%d" % (vq(VF + 4 * q, 2), base, L_K + c * 2048))
        a("ds_read_b64_tr_b16 %s, v%d offset:%d" % (vq(VF + 4 * q + 2, 2), base, L_K + c * 2048 + 32768))
    def pv_mfma(c, bq, q):
        d = D0 if bq == 0 else D1
        a("v_mfma_f32_16x16x32_bf16 %s, %s, %s, %s" % (vq(d), vq(PF + (c * 2 + bq) * 4), vq(VF + 4 * q), "0" if c == 0 else vq(d)))
    def pv_group(chunks):
        blocks = [(c, bq) for c in chunks for bq in range(2)]
        for b0 in range(0, len(blocks), 4):
            batch = blocks[b0:b0 + 4]
            for q, (c, bq) in enumerate(batch): tr_reads(c, bq, q + 4 * ((b0 // 4) & 1))
            for q, (c, bq) in enumerate(batch):
                a("s_waitcnt lgkmcnt(%d)" % (2 * (len(batch) - 1 - q)))
                pv_mfma(c, bq, q + 4 * ((b0 // 4) & 1))
    X0, X1, M0, M1 = 52, 56, 60, 64
    B1, B2, F0, F1, LS, TT = 68, 69, 70, 71, 72, 73
    AC = 76
    a("s_waitcnt vmcnt(%d) lgkmcnt(0)" % (9 + (0 if early_small else 1 + (1 if owarm else 0)) + (2 if gwarm else 0)))
    a("s_barrier")
    pv_group([0, 1, 2, 3])
    a("s_waitcnt vmcnt(4)")
    a("v_lshlrev_b32 v%d, 16, v%d" % (vVT, vVT))
    a("v_mul_f32 v%d, v%d, v%d" % (vPT, vPT, vVT))
    a("s_barrier")
    pv_group([4, 5])
    a("s_waitcnt vmcnt(2)")
    a("s_barrier")
    pv_group([6])
    a("s_add_u32 s59, s57, 0x%x" % WS_B)
    a("s_mov_b32 s58, 0xffffff00")
    a("s_waitcnt vmcnt(0)")
    stamp(4)
    a("s_cmp_eq_u32 s3, %d" % fw)
    a("s_cbranch_scc0 L_nomlphase")
    a("buffer_load_dwordx4 %s, v%d, s[32:35], 0 offen %s" % (vq(M0), vFM, hl))
    a("buffer_load_dwordx4 %s, v%d, s[32:35], 0 offen offset:512 %s" % (vq(M1), vFM, hl))
    a.label("L_nomlphase")
    a("s_barrier")
    stamp(5)
    pv_group([7])
    A = K
    a("v_lshlrev_b32 v%d, 2, v1" % (A + 2))
    a("s_nop 6")
    a("v_add_f32 v%d, v%d, v%d" % (A, D0, D1))
    a("v_add_f32 v%d, v%d, v%d" % (A, A, vPT))
    a("v_and_or_b32 v%d, v%d, s58, v%d" % (A + 1, A, vTagO))
    a("buffer_store_dword v%d, v%d, s[32:35], s57 offen" % (A + 1, vOoff))
    a("s_cmp_eq_u32 s3, %d" % fw)
    a("s_cbranch_scc1 L_final")
    a("buffer_store_dword v%d, v%d, s[32:35], s59 offen %s" % (A + 1, vOoff, hs))
    a("s_cmp_eq_u32 s3, 0")
    a("s_cbranch_scc0 L_pubdone")
    a("s_mov_b32 s54, 0")
    a.label("L_bpoll")
    a("ds_read_b32 v%d, v%d offset:%d" % (A + 3, A + 2, L_X))
    a("s_waitcnt lgkmcnt(0)")
    a("v_xor_b32 v%d, v%d, v%d" % (A + 4, A + 3, vTagO))
    a("v_and_b32 v%d, 0xff, v%d" % (A + 4, A + 4))
    a("v_cmp_ne_u32 vcc, 0, v%d" % (A + 4))
    a("s_cbranch_vccz L_bgo")
    a("s_add_u32 s54, s54, 1")
    a("s_cmp_lt_u32 s54, 0x400000")
    a("s_cbranch_scc1 L_bpoll")
    a.label("L_bgo")
    a("v_add_u32 v%d, %d, v%d" % (A + 5, fw * 256, vOoff))
    a("buffer_store_dword v%d, v%d, s[32:35], s59 offen %s" % (A + 3, A + 5, hs))
    a.label("L_pubdone")
    stamp(6)
    stamp_flush(7)
    a("s_branch L_end")
    a.label("L_final")
    stamp(6)
    a("ds_write_b32 v%d, v%d offset:%d" % (A + 2, A + 1, L_X))
    a("s_and_b32 s40, s39, 0xff")
    a("s_bfe_u32 s41, s39, 0x80008")
    a("s_bfe_u32 s42, s39, 0x80010")
    a("s_lshr_b32 s43, s39, 24")
    a("s_mov_b32 s54, 0")
    if npipe and early0:
        a("buffer_load_dwordx4 %s, v%d, s[32:35], 0 offen %s" % (vq(PF), vFO, hl))
        a("buffer_load_dwordx4 %s, v%d, s[32:35], s38 offen %s" % (vq(PF + 4), vFO, hl))
        a("s_waitcnt vmcnt(3)")
    else:
        a("s_waitcnt vmcnt(1)")
    a("s_branch L_mlchk")
    a.label("L_mlpoll")
    a("buffer_load_dwordx4 %s, v%d, s[32:35], 0 offen %s" % (vq(M0), vFM, hl))
    a("buffer_load_dwordx4 %s, v%d, s[32:35], 0 offen offset:512 %s" % (vq(M1), vFM, hl))
    a("s_waitcnt vmcnt(0)")
    a.label("L_mlchk")
    a("v_xor_b32 v%d, s39, v%d" % (B1, M0 + 2))
    a("v_bitop3_b32 v%d, v%d, s39, v%d bitop3:0xbe" % (B1, M1 + 2, B1))
    a("v_bitop3_b32 v%d, v%d, s39, v%d bitop3:0xbe" % (B1, M0 + 3, B1))
    a("v_bitop3_b32 v%d, v%d, s39, v%d bitop3:0xbe" % (B1, M1 + 3, B1))
    a("v_cmp_ne_u32 vcc, 0, v%d" % B1)
    a("s_cbranch_vccz L_mlok")
    a("s_add_u32 s54, s54, 1")
    a("s_cmp_lt_u32 s54, 0x40000")
    a("s_cbranch_scc0 L_mlok")
    a("s_cmp_lt_u32 s54, %d" % na)
    a("s_cbranch_scc1 L_mlpoll")
    a("v_xor_b32 v%d, 0x%x, v%d" % (vFM, WS_B, vFM))
    a("s_branch L_mlpoll")
    a.label("L_mlok")
    stamp(7)
    Y0, Y1 = 100, 104
    def o_loads2(x0, x1):
        a("buffer_load_dwordx4 %s, v%d, s[32:35], 0 offen %s" % (vq(x0), vFO, hl))
        a("buffer_load_dwordx4 %s, v%d, s[32:35], s38 offen %s" % (vq(x1), vFO, hl))
    def o_check(x0, x1):
        a("v_xor_b32 v%d, s40, v%d" % (B1, x0))
        a("v_xor_b32 v%d, s41, v%d" % (B2, x0 + 1))
        a("v_bitop3_b32 v%d, v%d, s42, v%d bitop3:0xbe" % (B1, x0 + 2, B1))
        a("v_bitop3_b32 v%d, v%d, s43, v%d bitop3:0xbe" % (B2, x0 + 3, B2))
        a("v_bitop3_b32 v%d, v%d, s40, v%d bitop3:0xbe" % (B1, x1, B1))
        a("v_bitop3_b32 v%d, v%d, s41, v%d bitop3:0xbe" % (B2, x1 + 1, B2))
        a("v_bitop3_b32 v%d, v%d, s42, v%d bitop3:0xbe" % (B1, x1 + 2, B1))
        a("v_bitop3_b32 v%d, v%d, s43, v%d bitop3:0xbe" % (B2, x1 + 3, B2))
        a("v_or_b32 v%d, v%d, v%d" % (B1, B1, B2))
        a("v_and_b32 v%d, 0xff, v%d" % (B1, B1))
        a("v_cmp_ne_u32 vcc, 0, v%d" % B1)
    a("v_max_f32 v%d, v%d, v%d" % (F0, M0, M1))
    a("s_mov_b32 s54, 0")
    a("s_nop 0")
    a("v_max_f32_dpp v%d, v%d, v%d row_ror:8 row_mask:0xf bank_mask:0xf" % (F0, F0, F0))
    xlane("v_max_f32", F0, F1)
    a("v_sub_f32 v%d, v%d, v%d" % (F1, M1, F0))
    a("v_sub_f32 v%d, v%d, v%d" % (F0, M0, F0))
    a("v_exp_f32 v%d, v%d" % (F1, F1))
    a("v_exp_f32 v%d, v%d" % (F0, F0))
    issued = [0]
    if npipe and early0:
        issued[0] = 1
        if npipe >= 2:
            o_loads2(PF + 8, PF + 12); issued[0] = 2
    elif npipe:
        o_loads2(PF, PF + 4); issued[0] = 1
    elif xpos == 0: o_loads2(X0, X1)
    a("s_nop 0")
    a("v_mul_f32 v%d, v%d, v%d" % (LS, F1, M1 + 1))
    a("v_fmac_f32 v%d, v%d, v%d" % (LS, F0, M0 + 1))
    a("s_nop 1")
    a("v_add_f32_dpp v%d, v%d, v%d row_ror:8 row_mask:0xf bank_mask:0xf" % (LS, LS, LS))
    if npipe > issued[0] and npipe >= 2:
        k_ = issued[0]
        o_loads2(PF + 8 * k_, PF + 8 * k_ + 4); issued[0] = k_ + 1
    xlane("v_add_f32", LS, TT)
    a("v_rcp_f32 v%d, v%d" % (LS, LS))
    if xpos == 1 and not npipe: o_loads2(X0, X1)
    def final_math(x0, x1):
        for c in range(4):
            a("v_and_b32 v%d, s58, v%d" % (x0 + c, x0 + c))
        for c in range(4):
            a("v_and_b32 v%d, s58, v%d" % (x1 + c, x1 + c))
        for c in range(4):
            a("v_mul_f32 v%d, v%d, v%d" % (AC + c, F0, x0 + c))
        for c in range(4):
            a("v_fmac_f32 v%d, v%d, v%d" % (AC + c, F1, x1 + c))
    if npipe:
        sets = [(PF + 8 * i, PF + 8 * i + 4) for i in range(npipe)]
        for i in range(issued[0], npipe): o_loads2(*sets[i])
        a.label("L_owait")
        for i in range(npipe):
            a("s_waitcnt vmcnt(%d)" % (2 * (npipe - 1)))
            o_check(*sets[i])
            a("s_cbranch_vccz L_ok%d" % i)
            if i == npipe - 1:
                a("s_add_u32 s54, s54, 1")
                a("s_cmp_lt_u32 s54, 0x40000")
                a("s_cbranch_scc0 L_ok%d" % i)
                a("s_cmp_lt_u32 s54, %d" % na)
                a("s_cbranch_scc1 L_otog")
                a("v_xor_b32 v%d, 0x%x, v%d" % (vFO, WS_B, vFO))
                a.label("L_otog")
            o_loads2(*sets[i])
        a("s_branch L_owait")
        for i in range(npipe):
            a.label("L_ok%d" % i)
            stamp(10)
            final_math(*sets[i])
            if i < npipe - 1: a("s_branch L_ook")
    else:
        a.label("L_owait")
        a("s_waitcnt vmcnt(0)")
        o_check(X0, X1)
        a("s_cbranch_vccz L_xok")
        a("s_add_u32 s54, s54, 1")
        a("s_cmp_lt_u32 s54, 0x40000")
        a("s_cbranch_scc0 L_xok")
        a("s_cmp_lt_u32 s54, %d" % na)
        a("s_cbranch_scc1 L_otog")
        a("v_xor_b32 v%d, 0x%x, v%d" % (vFO, WS_B, vFO))
        a.label("L_otog")
        o_loads2(X0, X1)
        a("s_branch L_owait")
        a.label("L_xok")
        stamp(10)
        final_math(X0, X1)
    a.label("L_ook")
    for c in range(4):
        a("v_add_f32_dpp v%d, v%d, v%d row_ror:8 row_mask:0xf bank_mask:0xf" % (AC + c, AC + c, AC + c))
    a("s_nop 0")
    a("v_permlane32_swap_b32 v%d, v%d" % (AC, AC + 1))
    a("v_permlane32_swap_b32 v%d, v%d" % (AC + 2, AC + 3))
    a("v_add_f32 v%d, v%d, v%d" % (AC, AC, AC + 1))
    a("v_add_f32 v%d, v%d, v%d" % (AC + 2, AC + 2, AC + 3))
    a("s_nop 1")
    a("v_permlane16_swap_b32 v%d, v%d" % (AC, AC + 2))
    a("v_add_f32 v%d, v%d, v%d" % (AC, AC, AC + 2))
    a("v_mul_f32 v%d, v%d, v%d" % (AC, AC, LS))
    a("v_cvt_pk_bf16_f32 v%d, v%d, v%d" % (AC, AC, AC))
    a("s_mov_b32 exec_lo, 0x00ff00ff")
    a("s_mov_b32 exec_hi, 0x00ff00ff")
    a("global_store_short v%d, v%d, s[16:17]" % (vFA, AC))
    a("s_cmp_eq_u32 s23, 15")
    a("s_cbranch_scc0 L_now")
    a("s_mov_b64 exec, 1")
    a("buffer_store_dword v%d, off, s[32:35], s60" % vNonce)
    a.label("L_now")
    a("s_mov_b64 exec, -1")
    if stamps:
        stamp(11)
        a("s_waitcnt vmcnt(0)")
    stamp(12)
    if stamps:
        a("s_mov_b32 s82, s54")
        a("s_mov_b32 s83, 0")
    stamp_flush(14)
    a.label("L_end")
    if spin:
        a("s_waitcnt vmcnt(0) lgkmcnt(0)")
        a.label("L_spin")
        a("s_memrealtime s[92:93]")
        a("s_waitcnt lgkmcnt(0)")
        a("s_sub_u32 s94, s92, s90")
        if spinref is not None:
            a("s_sub_u32 s95, s96, s90")
            a("s_sub_u32 s94, s94, s95")
        a("s_cmp_lt_u32 s94, %d" % spin)
        a("s_cbranch_scc1 L_spin")
    a("s_endpgm")
    out = HEADER + "; @launch grid=(256,1,1) block=(512,1,1) lds=%d\n" % LDS
    out += '.amdgcn_target "amdgcn-amd-amdhsa--gfx950"\n.text\n.globl %s_kernel\n.p2align 8\n.type %s_kernel,@function\n%s_kernel:\n' % (NAME, NAME, NAME)
    out += a.text()
    out += """.section .rodata,"a"
.p2align 6
.amdhsa_kernel %s_kernel
  .amdhsa_next_free_vgpr 256
  .amdhsa_next_free_sgpr 100
  .amdhsa_accum_offset 256
  .amdhsa_group_segment_fixed_size 0
  .amdhsa_kernarg_size 72
  .amdhsa_user_sgpr_count 2
  .amdhsa_user_sgpr_kernarg_segment_ptr 1
  .amdhsa_system_sgpr_workgroup_id_x 1
  .amdhsa_float_denorm_mode_32 3
.end_amdhsa_kernel
""" % NAME
    return out

if __name__ == "__main__":
    import argparse
    p = argparse.ArgumentParser()
    p.add_argument("-o", default="cdna_kernels/%s.s" % NAME)
    p.add_argument("--ld", default="nt")
    p.add_argument("--hs", default="sc1")
    p.add_argument("--stamps", action="store_true")
    p.add_argument("--spin", type=int, default=0)
    p.add_argument("--spinref", type=int, default=None)
    p.add_argument("--ibar", type=int, default=1)
    p.add_argument("--vsplit", type=int, default=8)
    p.add_argument("--cons", type=int, default=15)
    p.add_argument("--nonlocal", dest="nonlocal_", action="store_true")
    p.add_argument("--na", type=int, default=8)
    p.add_argument("--swave", type=int, default=0)
    p.add_argument("--skew", type=int, default=0)
    p.add_argument("--qpos", type=int, default=4)
    p.add_argument("--fw", type=int, default=1)
    p.add_argument("--dpoll", type=int, default=0)
    p.add_argument("--xpos", type=int, default=1)
    p.add_argument("--nomlwarm", action="store_true")
    p.add_argument("--hl", default="sc1")
    p.add_argument("--sstr", type=int, default=2048)
    p.add_argument("--nokslim", action="store_true")
    p.add_argument("--vdelay", type=int, default=0)
    p.add_argument("--vwarm", type=int, default=1)
    p.add_argument("--noowarm", action="store_true")
    p.add_argument("--gwarm", action="store_true")
    p.add_argument("--late_small", action="store_true")
    p.add_argument("--npipe", type=int, default=3)
    p.add_argument("--noearly0", action="store_true")
    p.add_argument("--v2a", type=int, default=4)
    x = p.parse_args()
    open(x.o, "w").write(gen(x.ld, x.hs, x.stamps, x.spin, x.spinref, x.ibar, x.vsplit, x.cons, not x.nonlocal_, x.na, x.skew, x.swave, x.qpos, x.fw, x.dpoll, x.xpos, not x.nomlwarm, x.hl, x.v2a, x.sstr, not x.nokslim, x.vdelay, x.vwarm, x.npipe, not x.noearly0, not x.noowarm, x.gwarm, not x.late_small))
```

```python
import sys, math, struct
NAME = "standalone__tree_speculative_verify_tree_attention_over_candidate_token_tree__decode"
HEADER = """; Kernarg layout for this problem (72 bytes, ptrs only, base s[0:1]):
"""
def f32hex(x):
    return "0x%08x" % struct.unpack("<I", struct.pack("<f", x))[0]
class Asm:
    def __init__(self): self.lines = []
    def __call__(self, s): self.lines.append("    " + s)
    def label(self, s): self.lines.append(s + ":")
    def c(self, s): self.lines.append("    ; " + s)
    def text(self): return "\n".join(self.lines) + "\n"
def vq(base, n=4): return "v[%d:%d]" % (base, base + n - 1)

def gen(ld="nt", hs="sc1", stamps=False, spin=0, spinref=None, ibar=1, vsplit=8, cons=15, local=True, na=8,
        skew=0, swave=0, qpos=4, fw=1, dpoll=0, xpos=1, mlwarm=True, hl="sc1", v2a=4, sstr=2048, kslim=True, vdelay=0, vwarm=1, npipe=3, early0=True, owarm=True, gwarm=False, early_small=True, wswarm=False):
    a = Asm()
    LOG2E = 1.4426950408889634
    SCALE = 128 ** -0.5
    C = SCALE * LOG2E
    Q, KT, K = 12, 28, 44
    PR = 28
    KD, KR = 76, 80
    VD, vTR0, vTR1, vPW, vPR = 84, 86, 87, 88, 89
    S, ST = 92, 108
    PF = 112
    VF = 176
    D0, D1 = 208, 212
    T = 232
    vQr, vKToff, vVT, vOoff = 7, 8, 9, 10
    vTagO, vHead, vNonce = 248, 250, 251
    vFO, vFM, vFH, vFA = 11, 5, 246, 245
    vPT = 244
    L_M, L_L, L_ST, L_PT, L_Q, L_P, L_K = 0, 128, 256, 288, 512, 1536, 5632
    L_X = L_Q
    LDS = L_K + 8 * 16384
    WS_ML, WS_W, WS_B = 0xa0000, 0xb0000, 0x100000
    SSTR = sstr
    def stamp(i):
        if spinref == i: a("s_memrealtime s[96:97]")
        if stamps: a("s_memrealtime s[%d:%d]" % (64 + 2 * i, 65 + 2 * i))
    nfl = [0]
    def stamp_flush(n):
        if stamps:
            nfl[0] += 1
            a("s_waitcnt lgkmcnt(0)")
            a("s_cmp_eq_u32 s3, %d" % swave)
            a("s_cbranch_scc0 L_nostamp%d" % nfl[0])
            a("s_lshl_b32 s58, s2, 7")
            a("s_add_u32 s58, s58, 0x1000000")
            a("v_mov_b32 v252, s58")
            a("s_mov_b64 exec, 1")
            for i in range(n):
                a("v_mov_b32 v254, s%d" % (64 + 2 * i))
                a("v_mov_b32 v255, s%d" % (65 + 2 * i))
                a("global_store_dwordx2 v252, v[254:255], s[20:21] offset:%d" % (8 * i))
                a("s_nop 1")
            a("s_mov_b64 exec, -1")
            a.label("L_nostamp%d" % nfl[0])
    stamp(0)
    if spin: a("s_memrealtime s[90:91]")
    a("s_load_dwordx16 s[4:19], s[0:1], 0")
    a("s_load_dwordx2 s[20:21], s[0:1], 64")
    a("s_cmp_ge_u32 s2, 256")
    a("s_cbranch_scc1 L_end")
    if skew:
        a("s_mul_i32 s58, s2, 0x9E3779B1")
        a("s_lshr_b32 s58, s58, 29")
        a("s_mul_i32 s58, s58, %d" % skew)
        a("s_memrealtime s[90:91]")
        a("s_waitcnt lgkmcnt(0)")
        a.label("L_skew")
        a("s_memrealtime s[92:93]")
        a("s_waitcnt lgkmcnt(0)")
        a("s_sub_u32 s94, s92, s90")
        a("s_cmp_lt_u32 s94, s58")
        a("s_cbranch_scc1 L_skew")
    a("v_and_b32 v1, 63, v0")
    a("v_lshrrev_b32 v2, 6, v0")
    a("v_and_b32 v3, 15, v0")
    a("v_bfe_u32 v4, v0, 4, 2")
    a("v_readfirstlane_b32 s3, v2")
    if local:
        a("s_and_b32 s22, s2, 15")
        a("s_lshr_b32 s23, s2, 4")
    else:
        a("s_lshr_b32 s22, s2, 4")
        a("s_and_b32 s23, s2, 15")
    a("s_lshl_b32 s51, s22, 4")
    a("s_add_u32 s51, s51, s23")
    a("s_lshl_b32 s54, s51, 17")
    a("v_lshlrev_b32 v%d, 10, v2" % T)
    a("v_lshlrev_b32 v%d, 2, v4" % (T + 2))
    a("v_xor_b32 v%d, v3, v%d" % (T + 2, T + 2))
    a("v_lshl_add_u32 v%d, v4, 8, v%d" % (T + 3, T))
    for r in range(4):
        a("v_xor_b32 v%d, %d, v%d" % (KD + r, r, T + 2))
        a("v_lshl_add_u32 v%d, v%d, 4, v%d" % (KD + r, KD + r, T + 3))
        if kslim and r: a("v_add_u32 v%d, %d, v%d" % (KD + r, r * 7168, KD + r))
    if kslim:
        a("s_mov_b32 s44, 0x8000")
        a("s_mov_b32 s45, 0x10000")
        a("s_mov_b32 s46, 0x18000")
    a("v_lshlrev_b32 v%d, 4, v1" % vQr)
    a("s_mov_b32 s26, 0x20000")
    a("s_mov_b32 s27, 0x00020000")
    a("s_mov_b32 s30, 0x20000")
    a("s_mov_b32 s31, 0x00020000")
    a("s_mov_b32 s34, 0x200000")
    a("s_mov_b32 s35, 0x00020000")
    a("s_mov_b32 s86, 0x400")
    a("s_mov_b32 s87, 0x00020000")
    a("s_lshl_b32 s52, s22, 10")
    a("s_lshl_b32 s53, s22, 8")
    a("s_lshl_b32 s55, s3, 14")
    a("s_add_u32 s55, s55, %d" % L_K)
    a("s_waitcnt lgkmcnt(0)")
    stamp(1)
    a("s_add_u32 s24, s6, s54")
    a("s_addc_u32 s25, s7, 0")
    a("s_and_b32 s25, s25, 0xffff")
    a("s_add_u32 s84, s4, s52")
    a("s_addc_u32 s85, s5, 0")
    a("s_and_b32 s85, s85, 0xffff")
    a("s_or_b32 s56, s3, s23")
    a("s_cmp_eq_u32 s56, 0")
    a("s_cbranch_scc0 L_nokt")
    a("v_lshlrev_b32 v%d, 4, v4" % vKToff)
    a("v_add_u32 v%d, s53, v%d" % (vKToff, vKToff))
    for j in range(4):
        a("global_load_dwordx4 %s, v%d, s[10:11] offset:%d" % (vq(KT + 4 * j), vKToff, j * 64))
    a.label("L_nokt")
    def qdma():
        a("s_mov_b32 m0, %d" % L_Q)
        a("s_nop 0")
        a("buffer_load_dwordx4 v%d, s[84:87], 0 offen lds" % vQr)
    if kslim:
        assert qpos == 4
        for t in range(4):
            if t == 1: qdma()
            a("s_add_u32 m0, s55, %d" % (t * 4096))
            if t == 0: a("s_nop 0")
            else: a("s_nop 0")
            for r in range(4):
                a("buffer_load_dwordx4 v%d, s[24:27], %s offen offset:%d %s lds" % (KD + r, ["0", "s44", "s45", "s46"][t], r * 1024, ld))
    else:
        a("s_mov_b32 s58, 0")
        for i in range(16):
            if i == qpos: qdma()
            if i == 0 or i == qpos:
                a("s_add_u32 m0, s55, %d" % (i * 1024))
                a("s_nop 0")
            a("buffer_load_dwordx4 v%d, s[24:27], s58 offen %s lds" % (KD + (i & 3), ld))
            if i < 15:
                if i + 1 != qpos: a("s_add_u32 m0, m0, 1024")
                a("s_add_u32 s58, s58, 0x2000")
    a("s_add_u32 s28, s8, s54")
    a("s_addc_u32 s29, s9, 0")
    a("s_and_b32 s29, s29, 0xffff")
    a("s_mov_b32 s32, s20")
    a("s_and_b32 s33, s21, 0xffff")
    a("s_load_dword s62, s[14:15], 0")
    if vwarm == 1:
        a("buffer_load_dword v%d, off, s[28:31], 0 nt" % (T + 15))
    if vwarm == 2:
        a("s_cmp_eq_u32 s3, 0")
        a("s_cbranch_scc0 L_novw")
        a("v_and_b32 v%d, 15, v0" % (T + 14))
        a("v_lshlrev_b32 v%d, 13, v%d" % (T + 14, T + 14))
        a("s_mov_b64 exec, 0xffff")
        a("buffer_load_dword v%d, v%d, s[28:31], 0 offen nt" % (T + 15, T + 14))
        a("s_mov_b64 exec, -1")
        a.label("L_novw")
    a("s_lshl_b32 s58, s22, 7")
    a("s_add_u32 s60, s58, 0x%x" % WS_W)
    a("buffer_load_dword v%d, off, s[32:35], s60 %s" % (vNonce, hs))
    if mlwarm:
        a("s_lshl_b32 s58, s51, 6")
        a("s_add_u32 s58, s58, 0x%x" % WS_ML)
        a("buffer_load_dword v%d, off, s[32:35], s58 %s" % (T + 15, hs))
    if early_small:
        a("v_lshlrev_b32 v%d, 1, v3" % vVT)
        a("v_lshl_add_u32 v%d, v2, 5, v%d" % (vVT, vVT))
        a("v_add_u32 v%d, s53, v%d" % (vVT, vVT))
        a("global_load_ushort v%d, v%d, s[12:13]" % (vVT, vVT))
        if owarm:
            a("v_mov_b32 v%d, s52" % (T + 14))
            a("global_load_ushort v%d, v%d, s[16:17]" % (T + 15, T + 14))
    if wswarm:
        a("s_cmp_eq_u32 s3, 2")
        a("s_cbranch_scc0 L_nowsw")
        a("s_mul_i32 s58, s22, %d" % (16 * SSTR))
        a("v_lshlrev_b32 v%d, 9, v1" % (T + 14))
        a("buffer_load_dword v%d, v%d, s[32:35], s58 offen %s" % (T + 15, T + 14, hs))
        a("s_add_u32 s58, s58, 0x%x" % WS_B)
        a("buffer_load_dword v%d, v%d, s[32:35], s58 offen %s" % (T + 15, T + 14, hs))
        a.label("L_nowsw")
    if ibar == 1: a("s_barrier")
    def vloads(i0, i1):
        a("s_add_u32 m0, s55, %d" % (i0 * 1024))
        a("s_mov_b32 s58, 0x%x" % (i0 * 0x2000))
        for i in range(i0, i1):
            a("buffer_load_dwordx4 v%d, s[28:31], s58 offen %s lds" % (VD + (i & 1), ld))
            if i < i1 - 1:
                a("s_add_u32 m0, m0, 1024")
                a("s_add_u32 s58, s58, 0x2000")
    a("v_lshlrev_b32 v%d, 8, v2" % vOoff)
    a("v_lshl_add_u32 v%d, v1, 2, v%d" % (vOoff, vOoff))
    a("v_and_b32 v%d, 1, v4" % (T + 8))
    a("v_lshlrev_b32 v%d, 1, v%d" % (T + 9, T + 8))
    a("v_lshrrev_b32 v%d, 1, v4" % (T + 10))
    a("v_or_b32 v%d, v%d, v%d" % (vHead, T + 9, T + 10))
    if not early_small:
        a("v_lshlrev_b32 v%d, 1, v3" % vVT)
        a("v_lshl_add_u32 v%d, v2, 5, v%d" % (vVT, vVT))
        a("v_add_u32 v%d, s53, v%d" % (vVT, vVT))
    a("v_and_b32 v%d, 1, v2" % (T + 9))
    a("v_lshlrev_b32 v%d, 2, v%d" % (T + 9, T + 9))
    a("v_lshl_add_u32 v%d, v%d, 3, v%d" % (T + 9, T + 8, T + 9))
    a("v_xor_b32 v%d, v3, v%d" % (T + 9, T + 9))
    a("v_lshlrev_b32 v%d, 10, v2" % (T + 10))
    a("v_lshl_add_u32 v%d, v4, 8, v%d" % (T + 10, T + 10))
    a("v_lshl_add_u32 v%d, v%d, 4, v%d" % (VD, T + 9, T + 10))
    a("v_xor_b32 v%d, 2, v%d" % (T + 9, T + 9))
    a("v_lshl_add_u32 v%d, v%d, 4, v%d" % (VD + 1, T + 9, T + 10))
    a("v_lshrrev_b32 v%d, 2, v3" % (T + 9))
    a("v_lshlrev_b32 v%d, 1, v%d" % (T + 10, T + 9))
    a("v_lshl_add_u32 v%d, v%d, 3, v%d" % (T + 10, T + 8, T + 10))
    a("v_bfe_u32 v%d, v3, 1, 1" % (T + 11))
    a("v_lshl_add_u32 v%d, v2, 1, v%d" % (T + 11, T + 11))
    a("v_xor_b32 v%d, v%d, v%d" % (T + 10, T + 10, T + 11))
    a("v_lshlrev_b32 v%d, 4, v%d" % (vTR0, T + 10))
    a("v_and_b32 v%d, 1, v3" % (T + 11))
    a("v_lshl_add_u32 v%d, v%d, 3, v%d" % (vTR0, T + 11, vTR0))
    a("v_lshl_add_u32 v%d, v4, 8, v%d" % (vTR0, vTR0))
    a("v_and_b32 v%d, 1, v%d" % (T + 11, T + 9))
    a("v_lshl_add_u32 v%d, v%d, 10, v%d" % (vTR0, T + 11, vTR0))
    a("v_lshrrev_b32 v%d, 1, v%d" % (T + 11, T + 9))
    a("v_lshl_add_u32 v%d, v%d, 14, v%d" % (vTR0, T + 11, vTR0))
    a("v_add_u32 v%d, 0x10000, v%d" % (vTR1, vTR0))
    a("v_lshlrev_b32 v%d, 6, v4" % vPR)
    a("v_lshl_add_u32 v%d, v3, 4, v%d" % (vPW, vPR))
    a("v_lshl_add_u32 v%d, v%d, 4, v%d" % (vPR, T + 9, vPR))
    a("s_lshr_b32 s36, s3, 2")
    a("s_lshl_b32 s36, s36, 8")
    a("s_and_b32 s37, s3, 3")
    a("s_lshl_b32 s37, s37, 2")
    a("s_add_u32 s36, s36, s37")
    a("v_add_u32 v%d, s36, v%d" % (vPW, vPW))
    a("v_lshrrev_b32 v%d, 3, v1" % (T + 8))
    a("v_and_b32 v%d, 7, v1" % (T + 9))
    a("s_mul_i32 s36, s22, %d" % (16 * SSTR))
    a("s_lshl_b32 s37, s23, 7")
    a("s_add_u32 s36, s36, s37")
    a("v_mul_u32_u24 v%d, %d, v%d" % (vFO, SSTR, T + 8))
    a("v_lshl_add_u32 v%d, v%d, 4, v%d" % (vFO, T + 9, vFO))
    a("v_add_u32 v%d, s36, v%d" % (vFO, vFO))
    a("v_lshrrev_b32 v%d, 2, v%d" % (vFH, T + 9))
    a("s_and_b32 s37, s23, 1")
    a("s_lshl_b32 s37, s37, 1")
    a("v_add_u32 v%d, s37, v%d" % (vFH, vFH))
    a("v_lshlrev_b32 v%d, 6, v%d" % (vFM, T + 8))
    a("v_lshl_add_u32 v%d, v%d, 4, v%d" % (vFM, vFH, vFM))
    a("s_lshl_b32 s37, s22, 10")
    a("s_add_u32 s37, s37, 0x%x" % WS_ML)
    a("v_add_u32 v%d, s37, v%d" % (vFM, vFM))
    a("v_and_b32 v%d, 3, v%d" % (T + 9, T + 9))
    a("v_lshl_add_u32 v%d, v%d, 2, v%d" % (T + 9, T + 9, vHead))
    a("v_lshlrev_b32 v%d, 1, v%d" % (T + 9, T + 9))
    a("v_lshl_add_u32 v%d, v%d, 8, v%d" % (vFA, vFH, T + 9))
    a("s_lshr_b32 s37, s23, 1")
    a("s_lshl_b32 s37, s37, 5")
    a("s_add_u32 s37, s37, s52")
    a("v_add_u32 v%d, s37, v%d" % (vFA, vFA))
    a("s_mov_b32 s38, %d" % (8 * SSTR))
    a("v_and_b32 v%d, 3, v3" % (T + 1))
    a("v_lshlrev_b32 v%d, 14, v2" % (T + 3))
    a("v_lshl_add_u32 v%d, v%d, 10, v%d" % (T + 3, T + 1, T + 3))
    a("v_lshrrev_b32 v%d, 2, v3" % (T + 2))
    a("v_lshl_add_u32 v%d, v%d, 8, v%d" % (T + 3, T + 2, T + 3))
    a("v_xor_b32 v%d, v4, v3" % (T + 2))
    for j in range(4):
        a("v_xor_b32 v%d, %d, v%d" % (KR + j, 4 * j, T + 2))
        a("v_lshl_add_u32 v%d, v%d, 4, v%d" % (KR + j, KR + j, T + 3))
    a("v_lshlrev_b32 v%d, 8, v%d" % (vQr, T + 1))
    a("v_lshl_add_u32 v%d, v4, 4, v%d" % (vQr, vQr))
    if ibar == 2: a("s_barrier")
    for _ in range(vdelay): a("s_nop 15")
    def kwait(t):
        last = 4 * t + 3
        younger = 15 - last
        if qpos > last:
            younger = 15 - (qpos - 1) if False else 15 - max(last, qpos - 1)
            younger = (15 - (qpos - 1))
        return younger + 1 + (1 if mlwarm else 0) + (1 if vwarm == 1 else 0) + ((1 + (1 if owarm else 0)) if early_small else 0)
    for t in range(4):
        a("s_waitcnt vmcnt(%d)" % kwait(t))
        if t == 0: stamp(13)
        kb = K + (t & 1) * 16
        if t == 0:
            for j in range(4):
                a("ds_read_b128 %s, v%d offset:%d" % (vq(Q + 4 * j), vQr, L_Q + j * 64))
        for j in range(4):
            a("ds_read_b128 %s, v%d offset:%d" % (vq(kb + 4 * j), KR + j, L_K + t * 4096))
        for j in range(4):
            a("s_waitcnt lgkmcnt(%d)" % (3 - j))
            a("v_mfma_f32_16x16x32_bf16 %s, %s, %s, %s" % (vq(S + 4 * t), vq(kb + 4 * j), vq(Q + 4 * j), "0" if j == 0 else vq(S + 4 * t)))
    vloads(0, 8)
    stamp(2)
    a("s_cmp_eq_u32 s3, 0")
    a("s_cbranch_scc0 L_notree")
    a("v_mov_b32 v%d, %s" % (T + 8, f32hex(-3.0e38)))
    a("s_cmp_eq_u32 s23, 0")
    a("s_cbranch_scc0 L_tree1")
    for j in range(4):
        a("v_mfma_f32_16x16x32_bf16 %s, %s, %s, %s" % (vq(ST), vq(KT + 4 * j), vq(Q + 4 * j), "0" if j == 0 else vq(ST)))
    a("s_waitcnt lgkmcnt(0)")
    a("s_lshr_b32 s58, s22, 3")
    a("s_lshl_b32 s58, s58, 4")
    a("s_lshr_b32 s58, s62, s58")
    a("s_lshl_b32 s58, s58, 16")
    a("v_mov_b32 v%d, s58" % (T + 8))
    a("v_sub_f32 v%d, 1.0, v%d" % (T + 8, T + 8))
    a("s_mov_b32 s58, %s" % f32hex(-1e9 / SCALE))
    a("s_nop 3")
    a("v_fma_f32 v%d, v%d, s58, v%d" % (T + 8, T + 8, ST))
    a.label("L_tree1")
    a("v_lshlrev_b32 v%d, 2, v3" % (T + 9))
    a("s_mov_b64 exec, 0xf")
    a("ds_write_b32 v%d, v%d offset:%d" % (T + 9, T + 8, L_ST))
    a("s_mov_b64 exec, -1")
    a.label("L_notree")
    a("v_max3_f32 v%d, v%d, v%d, v%d" % (T, S + 0, S + 1, S + 2))
    a("v_max3_f32 v%d, v%d, v%d, v%d" % (T + 1, S + 3, S + 4, S + 5))
    a("v_max3_f32 v%d, v%d, v%d, v%d" % (T + 2, S + 6, S + 7, S + 8))
    a("v_max3_f32 v%d, v%d, v%d, v%d" % (T + 3, S + 9, S + 10, S + 11))
    a("s_nop 4")
    a("v_max3_f32 v%d, v%d, v%d, v%d" % (T, T, S + 12, S + 13))
    a("v_max3_f32 v%d, v%d, v%d, v%d" % (T + 1, T + 1, S + 14, S + 15))
    a("v_max3_f32 v%d, v%d, v%d, v%d" % (T, T, T + 1, T + 2))
    a("v_max_f32 v%d, v%d, v%d" % (T, T, T + 3))
    def xlane(op, r, t):
        a("v_mov_b32 v%d, v%d" % (t, r))
        a("s_nop 1")
        a("v_permlane32_swap_b32 v%d, v%d" % (r, t))
        a("%s v%d, v%d, v%d" % (op, r, r, t))
        a("v_mov_b32 v%d, v%d" % (t, r))
        a("s_nop 1")
        a("v_permlane16_swap_b32 v%d, v%d" % (r, t))
        a("%s v%d, v%d, v%d" % (op, r, r, t))
    xlane("v_max_f32", T, T + 1)
    a("v_and_b32 v%d, 3, v3" % (T + 10))
    a("v_lshlrev_b32 v%d, 5, v%d" % (T + 2, T + 10))
    a("s_lshl_b32 s58, s3, 2")
    a("v_add_u32 v%d, s58, v%d" % (T + 3, T + 2))
    a("v_lshlrev_b32 v%d, 2, v%d" % (T + 10, T + 10))
    a("s_mov_b64 exec, 0xf")
    a("ds_write_b32 v%d, v%d offset:%d" % (T + 3, T, L_M))
    a("s_mov_b64 exec, -1")
    a("s_waitcnt lgkmcnt(0)")
    a("s_barrier")
    stamp(3)
    if not early_small:
        a("global_load_ushort v%d, v%d, s[12:13]" % (vVT, vVT))
        if owarm:
            a("global_load_ushort v%d, v%d, s[16:17]" % (T + 15, vFA))
    if gwarm:
        a("buffer_load_dword v%d, v%d, s[32:35], 0 offen %s" % (T + 15, vFO, hl))
        a("buffer_load_dword v%d, v%d, s[32:35], s38 offen %s" % (T + 15, vFO, hl))
    a("s_mul_i32 s57, s51, %d" % SSTR)
    a("buffer_load_dword v%d, v%d, s[32:35], s57 offen %s" % (T + 15, vOoff, hs))
    vloads(8, 12)
    a("ds_read_b128 %s, v%d offset:%d" % (vq(T + 4), T + 2, L_M))
    a("ds_read_b128 %s, v%d offset:%d" % (vq(K), T + 2, L_M + 16))
    a("ds_read_b32 v%d, v%d offset:%d" % (T + 8, T + 10, L_ST))
    a("s_mov_b32 s63, %s" % f32hex(C))
    a("s_waitcnt vmcnt(%d)" % (13 + (0 if early_small else 1 + (1 if owarm else 0)) + (2 if gwarm else 0)))
    a("v_add_u32 v%d, 1, v%d" % (vNonce, vNonce))
    a("v_and_b32 v%d, 3, v3" % (T + 11))
    a("v_lshlrev_b32 v%d, 3, v%d" % (T + 11, T + 11))
    a("v_lshrrev_b32 v%d, v%d, v%d" % (vTagO, T + 11, vNonce))
    a("v_and_b32 v%d, 0xff, v%d" % (vTagO, vTagO))
    a("v_readfirstlane_b32 s39, v%d" % vNonce)
    a("v_xor_b32 v%d, 0xff, v%d" % (T + 11, vTagO))
    a("v_lshlrev_b32 v%d, 2, v1" % (T + 9))
    a("ds_write_b32 v%d, v%d offset:%d" % (T + 9, T + 11, L_X))
    a("s_waitcnt lgkmcnt(0)")
    a("v_max3_f32 v%d, v%d, v%d, v%d" % (T, T + 4, T + 5, T + 6))
    a("v_max3_f32 v%d, v%d, v%d, v%d" % (T + 1, T + 7, K, K + 1))
    a("v_max3_f32 v%d, v%d, v%d, v%d" % (T, T, K + 2, K + 3))
    a("v_max3_f32 v%d, v%d, v%d, v%d" % (T, T, T + 1, T + 8))
    for r in range(16):
        a("v_sub_f32 v%d, v%d, v%d" % (S + r, S + r, T))
    a("v_sub_f32 v%d, v%d, v%d" % (T + 8, T + 8, T))
    for r in range(16):
        a("v_mul_f32 v%d, s63, v%d" % (S + r, S + r))
    a("v_mul_f32 v%d, s63, v%d" % (T + 8, T + 8))
    for r in range(16):
        a("v_exp_f32 v%d, v%d" % (S + r, S + r))
    a("v_exp_f32 v%d, v%d" % (T + 8, T + 8))
    a("v_mul_f32 v%d, s63, v%d" % (T, T))
    a("v_add_f32 v%d, v%d, v%d" % (T + 1, S + 0, S + 1))
    a("v_add_f32 v%d, v%d, v%d" % (T + 4, S + 2, S + 3))
    for r in range(4, 16, 2):
        a("v_add_f32 v%d, v%d, v%d" % (T + 1, T + 1, S + r))
        a("v_add_f32 v%d, v%d, v%d" % (T + 4, T + 4, S + r + 1))
    a("v_add_f32 v%d, v%d, v%d" % (T + 1, T + 1, T + 4))
    for u in range(2):
        for hq in range(2):
            t = 2 * u + hq
            a("v_cvt_pk_bf16_f32 v%d, v%d, v%d" % (PR + 4 * u + 2 * hq, S + 4 * t, S + 4 * t + 1))
            a("v_cvt_pk_bf16_f32 v%d, v%d, v%d" % (PR + 4 * u + 2 * hq + 1, S + 4 * t + 2, S + 4 * t + 3))
    xlane("v_add_f32", T + 1, T + 4)
    a("s_mov_b64 exec, 0xf")
    a("ds_write_b32 v%d, v%d offset:%d" % (T + 3, T + 1, L_L))
    a("s_cmp_eq_u32 s3, 0")
    a("s_cbranch_scc0 L_nomq")
    a("ds_write_b32 v%d, v%d offset:%d" % (T + 10, T + 8, L_PT))
    a.label("L_nomq")
    a("s_mov_b64 exec, -1")
    a("s_mov_b32 exec_lo, 0x000f000f")
    a("s_mov_b32 exec_hi, 0x000f000f")
    for c in range(8):
        a("ds_write_b32 v%d, v%d offset:%d" % (vPW, PR + c, L_P + c * 512))
    a("s_mov_b64 exec, -1")
    a("s_waitcnt lgkmcnt(0)")
    a("s_barrier")
    a("v_lshlrev_b32 v%d, 2, v4" % (T + 9))
    a("ds_read_b32 v%d, v%d offset:%d" % (vPT, T + 9, L_PT))
    a("s_cmp_eq_u32 s3, 0")
    a("s_cbranch_scc0 L_noml")
    a("ds_read_b128 %s, v%d offset:%d" % (vq(K), T + 2, L_L))
    a("ds_read_b128 %s, v%d offset:%d" % (vq(K + 4), T + 2, L_L + 16))
    a("s_lshl_b32 s61, s51, 6")
    a("s_add_u32 s61, s61, 0x%x" % WS_ML)
    a("s_add_u32 s56, s61, 0x%x" % WS_B)
    a("v_lshlrev_b32 v%d, 4, v3" % (K + 12))
    a("s_waitcnt lgkmcnt(0)")
    a("v_add_f32 v%d, v%d, v%d" % (K, K, K + 1))
    a("v_add_f32 v%d, v%d, v%d" % (K + 2, K + 2, K + 3))
    a("v_add_f32 v%d, v%d, v%d" % (K + 4, K + 4, K + 5))
    a("v_add_f32 v%d, v%d, v%d" % (K + 6, K + 6, K + 7))
    a("v_add_f32 v%d, v%d, v%d" % (K, K, K + 2))
    a("v_add_f32 v%d, v%d, v%d" % (K + 4, K + 4, K + 6))
    a("v_add_f32 v%d, v%d, v%d" % (K, K, K + 4))
    a("v_mov_b32 v%d, v%d" % (K + 8, T))
    a("v_add_f32 v%d, v%d, v%d" % (K + 9, K, T + 8))
    a("v_mov_b32 v%d, v%d" % (K + 10, vNonce))
    a("v_mov_b32 v%d, v%d" % (K + 11, vNonce))
    a("s_mov_b64 exec, 0xf")
    a("buffer_store_dwordx4 %s, v%d, s[32:35], s61 offen" % (vq(K + 8), K + 12))
    a("buffer_store_dwordx4 %s, v%d, s[32:35], s56 offen %s" % (vq(K + 8), K + 12, hs))
    a("s_mov_b64 exec, -1")
    a.label("L_noml")
    vloads(12, 16)
    for c in range(8):
        if c == 5: a("s_waitcnt lgkmcnt(4)")
        for bq in range(2):
            a("ds_read_b128 %s, v%d offset:%d" % (vq(PF + (c * 2 + bq) * 4), vPR, L_P + c * 512 + bq * 256))
    def tr_reads(c, bq, q):
        base = vTR0 if bq == 0 else vTR1
        a("ds_read_b64_tr_b16 %s, v%d offset:%d" % (vq(VF + 4 * q, 2), base, L_K + c * 2048))
        a("ds_read_b64_tr_b16 %s, v%d offset:%d" % (vq(VF + 4 * q + 2, 2), base, L_K + c * 2048 + 32768))
    def pv_mfma(c, bq, q):
        d = D0 if bq == 0 else D1
        a("v_mfma_f32_16x16x32_bf16 %s, %s, %s, %s" % (vq(d), vq(PF + (c * 2 + bq) * 4), vq(VF + 4 * q), "0" if c == 0 else vq(d)))
    def pv_group(chunks):
        blocks = [(c, bq) for c in chunks for bq in range(2)]
        for b0 in range(0, len(blocks), 4):
            batch = blocks[b0:b0 + 4]
            for q, (c, bq) in enumerate(batch): tr_reads(c, bq, q + 4 * ((b0 // 4) & 1))
            for q, (c, bq) in enumerate(batch):
                a("s_waitcnt lgkmcnt(%d)" % (2 * (len(batch) - 1 - q)))
                pv_mfma(c, bq, q + 4 * ((b0 // 4) & 1))
    X0, X1, M0, M1 = 52, 56, 60, 64
    B1, B2, F0, F1, LS, TT = 68, 69, 70, 71, 72, 73
    AC = 76
    a("s_waitcnt vmcnt(%d) lgkmcnt(0)" % (9 + (0 if early_small else 1 + (1 if owarm else 0)) + (2 if gwarm else 0)))
    a("s_barrier")
    pv_group([0, 1, 2, 3])
    a("s_waitcnt vmcnt(4)")
    a("v_lshlrev_b32 v%d, 16, v%d" % (vVT, vVT))
    a("v_mul_f32 v%d, v%d, v%d" % (vPT, vPT, vVT))
    a("s_barrier")
    pv_group([4, 5])
    a("s_waitcnt vmcnt(2)")
    a("s_barrier")
    pv_group([6])
    a("s_add_u32 s59, s57, 0x%x" % WS_B)
    a("s_mov_b32 s58, 0xffffff00")
    a("s_waitcnt vmcnt(0)")
    stamp(4)
    a("s_cmp_eq_u32 s3, %d" % fw)
    a("s_cbranch_scc0 L_nomlphase")
    a("buffer_load_dwordx4 %s, v%d, s[32:35], 0 offen %s" % (vq(M0), vFM, hl))
    a("buffer_load_dwordx4 %s, v%d, s[32:35], 0 offen offset:512 %s" % (vq(M1), vFM, hl))
    a.label("L_nomlphase")
    a("s_barrier")
    stamp(5)
    pv_group([7])
    A = K
    a("v_lshlrev_b32 v%d, 2, v1" % (A + 2))
    a("s_nop 6")
    a("v_add_f32 v%d, v%d, v%d" % (A, D0, D1))
    a("v_add_f32 v%d, v%d, v%d" % (A, A, vPT))
    a("v_and_or_b32 v%d, v%d, s58, v%d" % (A + 1, A, vTagO))
    a("buffer_store_dword v%d, v%d, s[32:35], s57 offen" % (A + 1, vOoff))
    a("s_cmp_eq_u32 s3, %d" % fw)
    a("s_cbranch_scc1 L_final")
    a("buffer_store_dword v%d, v%d, s[32:35], s59 offen %s" % (A + 1, vOoff, hs))
    a("s_cmp_eq_u32 s3, 0")
    a("s_cbranch_scc0 L_pubdone")
    a("s_mov_b32 s54, 0")
    a.label("L_bpoll")
    a("ds_read_b32 v%d, v%d offset:%d" % (A + 3, A + 2, L_X))
    a("s_waitcnt lgkmcnt(0)")
    a("v_xor_b32 v%d, v%d, v%d" % (A + 4, A + 3, vTagO))
    a("v_and_b32 v%d, 0xff, v%d" % (A + 4, A + 4))
    a("v_cmp_ne_u32 vcc, 0, v%d" % (A + 4))
    a("s_cbranch_vccz L_bgo")
    a("s_add_u32 s54, s54, 1")
    a("s_cmp_lt_u32 s54, 0x400000")
    a("s_cbranch_scc1 L_bpoll")
    a.label("L_bgo")
    a("v_add_u32 v%d, %d, v%d" % (A + 5, fw * 256, vOoff))
    a("buffer_store_dword v%d, v%d, s[32:35], s59 offen %s" % (A + 3, A + 5, hs))
    a.label("L_pubdone")
    stamp(6)
    stamp_flush(7)
    a("s_branch L_end")
    a.label("L_final")
    stamp(6)
    a("ds_write_b32 v%d, v%d offset:%d" % (A + 2, A + 1, L_X))
    a("s_and_b32 s40, s39, 0xff")
    a("s_bfe_u32 s41, s39, 0x80008")
    a("s_bfe_u32 s42, s39, 0x80010")
    a("s_lshr_b32 s43, s39, 24")
    a("s_mov_b32 s54, 0")
    if npipe and early0:
        a("buffer_load_dwordx4 %s, v%d, s[32:35], 0 offen %s" % (vq(PF), vFO, hl))
        a("buffer_load_dwordx4 %s, v%d, s[32:35], s38 offen %s" % (vq(PF + 4), vFO, hl))
        a("s_waitcnt vmcnt(3)")
    else:
        a("s_waitcnt vmcnt(1)")
    a("s_branch L_mlchk")
    a.label("L_mlpoll")
    a("buffer_load_dwordx4 %s, v%d, s[32:35], 0 offen %s" % (vq(M0), vFM, hl))
    a("buffer_load_dwordx4 %s, v%d, s[32:35], 0 offen offset:512 %s" % (vq(M1), vFM, hl))
    a("s_waitcnt vmcnt(0)")
    a.label("L_mlchk")
    a("v_xor_b32 v%d, s39, v%d" % (B1, M0 + 2))
    a("v_bitop3_b32 v%d, v%d, s39, v%d bitop3:0xbe" % (B1, M1 + 2, B1))
    a("v_bitop3_b32 v%d, v%d, s39, v%d bitop3:0xbe" % (B1, M0 + 3, B1))
    a("v_bitop3_b32 v%d, v%d, s39, v%d bitop3:0xbe" % (B1, M1 + 3, B1))
    a("v_cmp_ne_u32 vcc, 0, v%d" % B1)
    a("s_cbranch_vccz L_mlok")
    a("s_add_u32 s54, s54, 1")
    a("s_cmp_lt_u32 s54, 0x40000")
    a("s_cbranch_scc0 L_mlok")
    a("s_cmp_lt_u32 s54, %d" % na)
    a("s_cbranch_scc1 L_mlpoll")
    a("v_xor_b32 v%d, 0x%x, v%d" % (vFM, WS_B, vFM))
    a("s_branch L_mlpoll")
    a.label("L_mlok")
    stamp(7)
    Y0, Y1 = 100, 104
    def o_loads2(x0, x1):
        a("buffer_load_dwordx4 %s, v%d, s[32:35], 0 offen %s" % (vq(x0), vFO, hl))
        a("buffer_load_dwordx4 %s, v%d, s[32:35], s38 offen %s" % (vq(x1), vFO, hl))
    def o_check(x0, x1):
        a("v_xor_b32 v%d, s40, v%d" % (B1, x0))
        a("v_xor_b32 v%d, s41, v%d" % (B2, x0 + 1))
        a("v_bitop3_b32 v%d, v%d, s42, v%d bitop3:0xbe" % (B1, x0 + 2, B1))
        a("v_bitop3_b32 v%d, v%d, s43, v%d bitop3:0xbe" % (B2, x0 + 3, B2))
        a("v_bitop3_b32 v%d, v%d, s40, v%d bitop3:0xbe" % (B1, x1, B1))
        a("v_bitop3_b32 v%d, v%d, s41, v%d bitop3:0xbe" % (B2, x1 + 1, B2))
        a("v_bitop3_b32 v%d, v%d, s42, v%d bitop3:0xbe" % (B1, x1 + 2, B1))
        a("v_bitop3_b32 v%d, v%d, s43, v%d bitop3:0xbe" % (B2, x1 + 3, B2))
        a("v_or_b32 v%d, v%d, v%d" % (B1, B1, B2))
        a("v_and_b32 v%d, 0xff, v%d" % (B1, B1))
        a("v_cmp_ne_u32 vcc, 0, v%d" % B1)
    a("v_max_f32 v%d, v%d, v%d" % (F0, M0, M1))
    a("s_mov_b32 s54, 0")
    a("s_nop 0")
    a("v_max_f32_dpp v%d, v%d, v%d row_ror:8 row_mask:0xf bank_mask:0xf" % (F0, F0, F0))
    xlane("v_max_f32", F0, F1)
    a("v_sub_f32 v%d, v%d, v%d" % (F1, M1, F0))
    a("v_sub_f32 v%d, v%d, v%d" % (F0, M0, F0))
    a("v_exp_f32 v%d, v%d" % (F1, F1))
    a("v_exp_f32 v%d, v%d" % (F0, F0))
    issued = [0]
    if npipe and early0:
        issued[0] = 1
        if npipe >= 2:
            o_loads2(PF + 8, PF + 12); issued[0] = 2
    elif npipe:
        o_loads2(PF, PF + 4); issued[0] = 1
    elif xpos == 0: o_loads2(X0, X1)
    a("s_nop 0")
    a("v_mul_f32 v%d, v%d, v%d" % (LS, F1, M1 + 1))
    a("v_fmac_f32 v%d, v%d, v%d" % (LS, F0, M0 + 1))
    a("s_nop 1")
    a("v_add_f32_dpp v%d, v%d, v%d row_ror:8 row_mask:0xf bank_mask:0xf" % (LS, LS, LS))
    if npipe > issued[0] and npipe >= 2:
        k_ = issued[0]
        o_loads2(PF + 8 * k_, PF + 8 * k_ + 4); issued[0] = k_ + 1
    xlane("v_add_f32", LS, TT)
    a("v_rcp_f32 v%d, v%d" % (LS, LS))
    if xpos == 1 and not npipe: o_loads2(X0, X1)
    def final_math(x0, x1):
        for c in range(4):
            a("v_and_b32 v%d, s58, v%d" % (x0 + c, x0 + c))
        for c in range(4):
            a("v_and_b32 v%d, s58, v%d" % (x1 + c, x1 + c))
        for c in range(4):
            a("v_mul_f32 v%d, v%d, v%d" % (AC + c, F0, x0 + c))
        for c in range(4):
            a("v_fmac_f32 v%d, v%d, v%d" % (AC + c, F1, x1 + c))
    if npipe:
        sets = [(PF + 8 * i, PF + 8 * i + 4) for i in range(npipe)]
        for i in range(issued[0], npipe): o_loads2(*sets[i])
        a.label("L_owait")
        for i in range(npipe):
            a("s_waitcnt vmcnt(%d)" % (2 * (npipe - 1)))
            o_check(*sets[i])
            a("s_cbranch_vccz L_ok%d" % i)
            if i == npipe - 1:
                a("s_add_u32 s54, s54, 1")
                a("s_cmp_lt_u32 s54, 0x40000")
                a("s_cbranch_scc0 L_ok%d" % i)
                a("s_cmp_lt_u32 s54, %d" % na)
                a("s_cbranch_scc1 L_otog")
                a("v_xor_b32 v%d, 0x%x, v%d" % (vFO, WS_B, vFO))
                a.label("L_otog")
            o_loads2(*sets[i])
        a("s_branch L_owait")
        for i in range(npipe):
            a.label("L_ok%d" % i)
            stamp(10)
            final_math(*sets[i])
            if i < npipe - 1: a("s_branch L_ook")
    else:
        a.label("L_owait")
        a("s_waitcnt vmcnt(0)")
        o_check(X0, X1)
        a("s_cbranch_vccz L_xok")
        a("s_add_u32 s54, s54, 1")
        a("s_cmp_lt_u32 s54, 0x40000")
        a("s_cbranch_scc0 L_xok")
        a("s_cmp_lt_u32 s54, %d" % na)
        a("s_cbranch_scc1 L_otog")
        a("v_xor_b32 v%d, 0x%x, v%d" % (vFO, WS_B, vFO))
        a.label("L_otog")
        o_loads2(X0, X1)
        a("s_branch L_owait")
        a.label("L_xok")
        stamp(10)
        final_math(X0, X1)
    a.label("L_ook")
    for c in range(4):
        a("v_add_f32_dpp v%d, v%d, v%d row_ror:8 row_mask:0xf bank_mask:0xf" % (AC + c, AC + c, AC + c))
    a("s_nop 0")
    a("v_permlane32_swap_b32 v%d, v%d" % (AC, AC + 1))
    a("v_permlane32_swap_b32 v%d, v%d" % (AC + 2, AC + 3))
    a("v_add_f32 v%d, v%d, v%d" % (AC, AC, AC + 1))
    a("v_add_f32 v%d, v%d, v%d" % (AC + 2, AC + 2, AC + 3))
    a("s_nop 1")
    a("v_permlane16_swap_b32 v%d, v%d" % (AC, AC + 2))
    a("v_add_f32 v%d, v%d, v%d" % (AC, AC, AC + 2))
    a("v_mul_f32 v%d, v%d, v%d" % (AC, AC, LS))
    a("v_cvt_pk_bf16_f32 v%d, v%d, v%d" % (AC, AC, AC))
    a("s_mov_b32 exec_lo, 0x00ff00ff")
    a("s_mov_b32 exec_hi, 0x00ff00ff")
    a("global_store_short v%d, v%d, s[16:17]" % (vFA, AC))
    a("s_cmp_eq_u32 s23, 15")
    a("s_cbranch_scc0 L_now")
    a("s_mov_b64 exec, 1")
    a("buffer_store_dword v%d, off, s[32:35], s60" % vNonce)
    a.label("L_now")
    a("s_mov_b64 exec, -1")
    if stamps:
        stamp(11)
        a("s_waitcnt vmcnt(0)")
    stamp(12)
    if stamps:
        a("s_mov_b32 s82, s54")
        a("s_mov_b32 s83, 0")
    stamp_flush(14)
    a.label("L_end")
    if spin:
        a("s_waitcnt vmcnt(0) lgkmcnt(0)")
        a.label("L_spin")
        a("s_memrealtime s[92:93]")
        a("s_waitcnt lgkmcnt(0)")
        a("s_sub_u32 s94, s92, s90")
        if spinref is not None:
            a("s_sub_u32 s95, s96, s90")
            a("s_sub_u32 s94, s94, s95")
        a("s_cmp_lt_u32 s94, %d" % spin)
        a("s_cbranch_scc1 L_spin")
    a("s_endpgm")
    out = HEADER + "; @launch grid=(256,1,1) block=(512,1,1) lds=%d\n" % LDS
    out += '.amdgcn_target "amdgcn-amd-amdhsa--gfx950"\n.text\n.globl %s_kernel\n.p2align 8\n.type %s_kernel,@function\n%s_kernel:\n' % (NAME, NAME, NAME)
    out += a.text()
    out += """.section .rodata,"a"
.p2align 6
.amdhsa_kernel %s_kernel
  .amdhsa_next_free_vgpr 256
  .amdhsa_next_free_sgpr 100
  .amdhsa_accum_offset 256
  .amdhsa_group_segment_fixed_size 0
  .amdhsa_kernarg_size 72
  .amdhsa_user_sgpr_count 2
  .amdhsa_user_sgpr_kernarg_segment_ptr 1
  .amdhsa_system_sgpr_workgroup_id_x 1
  .amdhsa_float_denorm_mode_32 3
.end_amdhsa_kernel
""" % NAME
    return out

if __name__ == "__main__":
    import argparse
    p = argparse.ArgumentParser()
    p.add_argument("-o", default="cdna_kernels/%s.s" % NAME)
    p.add_argument("--ld", default="nt")
    p.add_argument("--hs", default="sc1")
    p.add_argument("--stamps", action="store_true")
    p.add_argument("--spin", type=int, default=0)
    p.add_argument("--spinref", type=int, default=None)
    p.add_argument("--ibar", type=int, default=1)
    p.add_argument("--vsplit", type=int, default=8)
    p.add_argument("--cons", type=int, default=15)
    p.add_argument("--nonlocal", dest="nonlocal_", action="store_true")
    p.add_argument("--na", type=int, default=8)
    p.add_argument("--swave", type=int, default=0)
    p.add_argument("--skew", type=int, default=0)
    p.add_argument("--qpos", type=int, default=4)
    p.add_argument("--fw", type=int, default=1)
    p.add_argument("--dpoll", type=int, default=0)
    p.add_argument("--xpos", type=int, default=1)
    p.add_argument("--nomlwarm", action="store_true")
    p.add_argument("--hl", default="sc1")
    p.add_argument("--sstr", type=int, default=2048)
    p.add_argument("--nokslim", action="store_true")
    p.add_argument("--vdelay", type=int, default=0)
    p.add_argument("--vwarm", type=int, default=1)
    p.add_argument("--noowarm", action="store_true")
    p.add_argument("--gwarm", action="store_true")
    p.add_argument("--wswarm", action="store_true")
    p.add_argument("--late_small", action="store_true")
    p.add_argument("--npipe", type=int, default=3)
    p.add_argument("--noearly0", action="store_true")
    p.add_argument("--v2a", type=int, default=4)
    x = p.parse_args()
    open(x.o, "w").write(gen(x.ld, x.hs, x.stamps, x.spin, x.spinref, x.ibar, x.vsplit, x.cons, not x.nonlocal_, x.na, x.skew, x.swave, x.qpos, x.fw, x.dpoll, x.xpos, not x.nomlwarm, x.hl, x.v2a, x.sstr, not x.nokslim, x.vdelay, x.vwarm, x.npipe, not x.noearly0, not x.noowarm, x.gwarm, not x.late_small, x.wswarm))
```

```python
import sys, math, struct
NAME = "standalone__tree_speculative_verify_tree_attention_over_candidate_token_tree__decode"
HEADER = """; Kernarg layout for this problem (72 bytes, ptrs only, base s[0:1]):
"""
def f32hex(x):
    return "0x%08x" % struct.unpack("<I", struct.pack("<f", x))[0]
class Asm:
    def __init__(self): self.lines = []
    def __call__(self, s): self.lines.append("    " + s)
    def label(self, s): self.lines.append(s + ":")
    def c(self, s): self.lines.append("    ; " + s)
    def text(self): return "\n".join(self.lines) + "\n"
def vq(base, n=4): return "v[%d:%d]" % (base, base + n - 1)

def gen(ld="nt", hs="sc1", stamps=False, spin=0, spinref=None, ibar=1, vsplit=8, cons=15, local=True, na=8,
        skew=0, swave=0, qpos=4, fw=1, dpoll=0, xpos=1, mlwarm=True, hl="sc1", v2a=4, sstr=2048, kslim=True, vdelay=0, vwarm=1, npipe=3, early0=True, owarm=True, gwarm=False, early_small=True, wswarm=False):
    a = Asm()
    LOG2E = 1.4426950408889634
    SCALE = 128 ** -0.5
    C = SCALE * LOG2E
    Q, KT, K = 12, 28, 44
    PR = 28
    KD, KR = 76, 80
    VD, vTR0, vTR1, vPW, vPR = 84, 86, 87, 88, 89
    S, ST = 92, 108
    PF = 112
    VF = 176
    D0, D1 = 208, 212
    T = 232
    vQr, vKToff, vVT, vOoff = 7, 8, 9, 10
    vTagO, vHead, vNonce = 248, 250, 251
    vFO, vFM, vFH, vFA = 11, 5, 246, 245
    vPT = 244
    L_M, L_L, L_ST, L_PT, L_Q, L_P, L_K = 0, 128, 256, 288, 512, 1536, 5632
    L_X = L_Q
    LDS = L_K + 8 * 16384
    WS_ML, WS_W, WS_B = 0xa0000, 0xb0000, 0x100000
    SSTR = sstr
    def stamp(i):
        if spinref == i: a("s_memrealtime s[96:97]")
        if stamps: a("s_memrealtime s[%d:%d]" % (64 + 2 * i, 65 + 2 * i))
    nfl = [0]
    def stamp_flush(n):
        if stamps:
            nfl[0] += 1
            a("s_waitcnt lgkmcnt(0)")
            a("s_cmp_eq_u32 s3, %d" % swave)
            a("s_cbranch_scc0 L_nostamp%d" % nfl[0])
            a("s_lshl_b32 s58, s2, 7")
            a("s_add_u32 s58, s58, 0x1000000")
            a("v_mov_b32 v252, s58")
            a("s_mov_b64 exec, 1")
            for i in range(n):
                a("v_mov_b32 v254, s%d" % (64 + 2 * i))
                a("v_mov_b32 v255, s%d" % (65 + 2 * i))
                a("global_store_dwordx2 v252, v[254:255], s[20:21] offset:%d" % (8 * i))
                a("s_nop 1")
            a("s_mov_b64 exec, -1")
            a.label("L_nostamp%d" % nfl[0])
    stamp(0)
    if spin: a("s_memrealtime s[90:91]")
    a("s_load_dwordx16 s[4:19], s[0:1], 0")
    a("s_load_dwordx2 s[20:21], s[0:1], 64")
    a("s_cmp_ge_u32 s2, 256")
    a("s_cbranch_scc1 L_end")
    if skew:
        a("s_mul_i32 s58, s2, 0x9E3779B1")
        a("s_lshr_b32 s58, s58, 29")
        a("s_mul_i32 s58, s58, %d" % skew)
        a("s_memrealtime s[90:91]")
        a("s_waitcnt lgkmcnt(0)")
        a.label("L_skew")
        a("s_memrealtime s[92:93]")
        a("s_waitcnt lgkmcnt(0)")
        a("s_sub_u32 s94, s92, s90")
        a("s_cmp_lt_u32 s94, s58")
        a("s_cbranch_scc1 L_skew")
    a("v_and_b32 v1, 63, v0")
    a("v_lshrrev_b32 v2, 6, v0")
    a("v_and_b32 v3, 15, v0")
    a("v_bfe_u32 v4, v0, 4, 2")
    a("v_readfirstlane_b32 s3, v2")
    if local:
        a("s_and_b32 s22, s2, 15")
        a("s_lshr_b32 s23, s2, 4")
    else:
        a("s_lshr_b32 s22, s2, 4")
        a("s_and_b32 s23, s2, 15")
    a("s_lshl_b32 s51, s22, 4")
    a("s_add_u32 s51, s51, s23")
    a("s_lshl_b32 s54, s51, 17")
    a("v_lshlrev_b32 v%d, 10, v2" % T)
    a("v_lshlrev_b32 v%d, 2, v4" % (T + 2))
    a("v_xor_b32 v%d, v3, v%d" % (T + 2, T + 2))
    a("v_lshl_add_u32 v%d, v4, 8, v%d" % (T + 3, T))
    for r in range(4):
        a("v_xor_b32 v%d, %d, v%d" % (KD + r, r, T + 2))
        a("v_lshl_add_u32 v%d, v%d, 4, v%d" % (KD + r, KD + r, T + 3))
        if kslim and r: a("v_add_u32 v%d, %d, v%d" % (KD + r, r * 7168, KD + r))
    if kslim:
        a("s_mov_b32 s44, 0x8000")
        a("s_mov_b32 s45, 0x10000")
        a("s_mov_b32 s46, 0x18000")
    a("v_lshlrev_b32 v%d, 4, v1" % vQr)
    a("s_mov_b32 s26, 0x20000")
    a("s_mov_b32 s27, 0x00020000")
    a("s_mov_b32 s30, 0x20000")
    a("s_mov_b32 s31, 0x00020000")
    a("s_mov_b32 s34, 0x200000")
    a("s_mov_b32 s35, 0x00020000")
    a("s_mov_b32 s86, 0x400")
    a("s_mov_b32 s87, 0x00020000")
    a("s_lshl_b32 s52, s22, 10")
    a("s_lshl_b32 s53, s22, 8")
    a("s_lshl_b32 s55, s3, 14")
    a("s_add_u32 s55, s55, %d" % L_K)
    a("s_waitcnt lgkmcnt(0)")
    stamp(1)
    a("s_add_u32 s24, s6, s54")
    a("s_addc_u32 s25, s7, 0")
    a("s_and_b32 s25, s25, 0xffff")
    a("s_add_u32 s84, s4, s52")
    a("s_addc_u32 s85, s5, 0")
    a("s_and_b32 s85, s85, 0xffff")
    a("s_or_b32 s56, s3, s23")
    a("s_cmp_eq_u32 s56, 0")
    a("s_cbranch_scc0 L_nokt")
    a("v_lshlrev_b32 v%d, 4, v4" % vKToff)
    a("v_add_u32 v%d, s53, v%d" % (vKToff, vKToff))
    for j in range(4):
        a("global_load_dwordx4 %s, v%d, s[10:11] offset:%d" % (vq(KT + 4 * j), vKToff, j * 64))
    a.label("L_nokt")
    def qdma():
        a("s_mov_b32 m0, %d" % L_Q)
        a("s_nop 0")
        a("buffer_load_dwordx4 v%d, s[84:87], 0 offen lds" % vQr)
    if kslim:
        assert qpos == 4
        for t in range(4):
            if t == 1: qdma()
            a("s_add_u32 m0, s55, %d" % (t * 4096))
            if t == 0: a("s_nop 0")
            else: a("s_nop 0")
            for r in range(4):
                a("buffer_load_dwordx4 v%d, s[24:27], %s offen offset:%d %s lds" % (KD + r, ["0", "s44", "s45", "s46"][t], r * 1024, ld))
    else:
        a("s_mov_b32 s58, 0")
        for i in range(16):
            if i == qpos: qdma()
            if i == 0 or i == qpos:
                a("s_add_u32 m0, s55, %d" % (i * 1024))
                a("s_nop 0")
            a("buffer_load_dwordx4 v%d, s[24:27], s58 offen %s lds" % (KD + (i & 3), ld))
            if i < 15:
                if i + 1 != qpos: a("s_add_u32 m0, m0, 1024")
                a("s_add_u32 s58, s58, 0x2000")
    a("s_add_u32 s28, s8, s54")
    a("s_addc_u32 s29, s9, 0")
    a("s_and_b32 s29, s29, 0xffff")
    a("s_mov_b32 s32, s20")
    a("s_and_b32 s33, s21, 0xffff")
    a("s_load_dword s62, s[14:15], 0")
    if vwarm == 1:
        a("buffer_load_dword v%d, off, s[28:31], 0 nt" % (T + 15))
    if vwarm == 3:
        a("v_lshlrev_b32 v%d, 14, v2" % (T + 14))
        a("s_mov_b64 exec, 1")
        a("buffer_load_dword v%d, v%d, s[28:31], 0 offen nt" % (T + 15, T + 14))
        a("s_mov_b64 exec, -1")
    if vwarm == 2:
        a("s_cmp_eq_u32 s3, 0")
        a("s_cbranch_scc0 L_novw")
        a("v_and_b32 v%d, 15, v0" % (T + 14))
        a("v_lshlrev_b32 v%d, 13, v%d" % (T + 14, T + 14))
        a("s_mov_b64 exec, 0xffff")
        a("buffer_load_dword v%d, v%d, s[28:31], 0 offen nt" % (T + 15, T + 14))
        a("s_mov_b64 exec, -1")
        a.label("L_novw")
    a("s_lshl_b32 s58, s22, 7")
    a("s_add_u32 s60, s58, 0x%x" % WS_W)
    a("buffer_load_dword v%d, off, s[32:35], s60 %s" % (vNonce, hs))
    if mlwarm:
        a("s_lshl_b32 s58, s51, 6")
        a("s_add_u32 s58, s58, 0x%x" % WS_ML)
        a("buffer_load_dword v%d, off, s[32:35], s58 %s" % (T + 15, hs))
    if early_small:
        a("v_lshlrev_b32 v%d, 1, v3" % vVT)
        a("v_lshl_add_u32 v%d, v2, 5, v%d" % (vVT, vVT))
        a("v_add_u32 v%d, s53, v%d" % (vVT, vVT))
        a("global_load_ushort v%d, v%d, s[12:13]" % (vVT, vVT))
        if owarm:
            a("v_mov_b32 v%d, s52" % (T + 14))
            a("global_load_ushort v%d, v%d, s[16:17]" % (T + 15, T + 14))
    if wswarm:
        a("s_cmp_eq_u32 s3, 2")
        a("s_cbranch_scc0 L_nowsw")
        a("s_mul_i32 s58, s22, %d" % (16 * SSTR))
        a("v_lshlrev_b32 v%d, 9, v1" % (T + 14))
        a("buffer_load_dword v%d, v%d, s[32:35], s58 offen %s" % (T + 15, T + 14, hs))
        a("s_add_u32 s58, s58, 0x%x" % WS_B)
        a("buffer_load_dword v%d, v%d, s[32:35], s58 offen %s" % (T + 15, T + 14, hs))
        a.label("L_nowsw")
    if ibar == 1: a("s_barrier")
    def vloads(i0, i1):
        a("s_add_u32 m0, s55, %d" % (i0 * 1024))
        a("s_mov_b32 s58, 0x%x" % (i0 * 0x2000))
        for i in range(i0, i1):
            a("buffer_load_dwordx4 v%d, s[28:31], s58 offen %s lds" % (VD + (i & 1), ld))
            if i < i1 - 1:
                a("s_add_u32 m0, m0, 1024")
                a("s_add_u32 s58, s58, 0x2000")
    a("v_lshlrev_b32 v%d, 8, v2" % vOoff)
    a("v_lshl_add_u32 v%d, v1, 2, v%d" % (vOoff, vOoff))
    a("v_and_b32 v%d, 1, v4" % (T + 8))
    a("v_lshlrev_b32 v%d, 1, v%d" % (T + 9, T + 8))
    a("v_lshrrev_b32 v%d, 1, v4" % (T + 10))
    a("v_or_b32 v%d, v%d, v%d" % (vHead, T + 9, T + 10))
    if not early_small:
        a("v_lshlrev_b32 v%d, 1, v3" % vVT)
        a("v_lshl_add_u32 v%d, v2, 5, v%d" % (vVT, vVT))
        a("v_add_u32 v%d, s53, v%d" % (vVT, vVT))
    a("v_and_b32 v%d, 1, v2" % (T + 9))
    a("v_lshlrev_b32 v%d, 2, v%d" % (T + 9, T + 9))
    a("v_lshl_add_u32 v%d, v%d, 3, v%d" % (T + 9, T + 8, T + 9))
    a("v_xor_b32 v%d, v3, v%d" % (T + 9, T + 9))
    a("v_lshlrev_b32 v%d, 10, v2" % (T + 10))
    a("v_lshl_add_u32 v%d, v4, 8, v%d" % (T + 10, T + 10))
    a("v_lshl_add_u32 v%d, v%d, 4, v%d" % (VD, T + 9, T + 10))
    a("v_xor_b32 v%d, 2, v%d" % (T + 9, T + 9))
    a("v_lshl_add_u32 v%d, v%d, 4, v%d" % (VD + 1, T + 9, T + 10))
    a("v_lshrrev_b32 v%d, 2, v3" % (T + 9))
    a("v_lshlrev_b32 v%d, 1, v%d" % (T + 10, T + 9))
    a("v_lshl_add_u32 v%d, v%d, 3, v%d" % (T + 10, T + 8, T + 10))
    a("v_bfe_u32 v%d, v3, 1, 1" % (T + 11))
    a("v_lshl_add_u32 v%d, v2, 1, v%d" % (T + 11, T + 11))
    a("v_xor_b32 v%d, v%d, v%d" % (T + 10, T + 10, T + 11))
    a("v_lshlrev_b32 v%d, 4, v%d" % (vTR0, T + 10))
    a("v_and_b32 v%d, 1, v3" % (T + 11))
    a("v_lshl_add_u32 v%d, v%d, 3, v%d" % (vTR0, T + 11, vTR0))
    a("v_lshl_add_u32 v%d, v4, 8, v%d" % (vTR0, vTR0))
    a("v_and_b32 v%d, 1, v%d" % (T + 11, T + 9))
    a("v_lshl_add_u32 v%d, v%d, 10, v%d" % (vTR0, T + 11, vTR0))
    a("v_lshrrev_b32 v%d, 1, v%d" % (T + 11, T + 9))
    a("v_lshl_add_u32 v%d, v%d, 14, v%d" % (vTR0, T + 11, vTR0))
    a("v_add_u32 v%d, 0x10000, v%d" % (vTR1, vTR0))
    a("v_lshlrev_b32 v%d, 6, v4" % vPR)
    a("v_lshl_add_u32 v%d, v3, 4, v%d" % (vPW, vPR))
    a("v_lshl_add_u32 v%d, v%d, 4, v%d" % (vPR, T + 9, vPR))
    a("s_lshr_b32 s36, s3, 2")
    a("s_lshl_b32 s36, s36, 8")
    a("s_and_b32 s37, s3, 3")
    a("s_lshl_b32 s37, s37, 2")
    a("s_add_u32 s36, s36, s37")
    a("v_add_u32 v%d, s36, v%d" % (vPW, vPW))
    a("v_lshrrev_b32 v%d, 3, v1" % (T + 8))
    a("v_and_b32 v%d, 7, v1" % (T + 9))
    a("s_mul_i32 s36, s22, %d" % (16 * SSTR))
    a("s_lshl_b32 s37, s23, 7")
    a("s_add_u32 s36, s36, s37")
    a("v_mul_u32_u24 v%d, %d, v%d" % (vFO, SSTR, T + 8))
    a("v_lshl_add_u32 v%d, v%d, 4, v%d" % (vFO, T + 9, vFO))
    a("v_add_u32 v%d, s36, v%d" % (vFO, vFO))
    a("v_lshrrev_b32 v%d, 2, v%d" % (vFH, T + 9))
    a("s_and_b32 s37, s23, 1")
    a("s_lshl_b32 s37, s37, 1")
    a("v_add_u32 v%d, s37, v%d" % (vFH, vFH))
    a("v_lshlrev_b32 v%d, 6, v%d" % (vFM, T + 8))
    a("v_lshl_add_u32 v%d, v%d, 4, v%d" % (vFM, vFH, vFM))
    a("s_lshl_b32 s37, s22, 10")
    a("s_add_u32 s37, s37, 0x%x" % WS_ML)
    a("v_add_u32 v%d, s37, v%d" % (vFM, vFM))
    a("v_and_b32 v%d, 3, v%d" % (T + 9, T + 9))
    a("v_lshl_add_u32 v%d, v%d, 2, v%d" % (T + 9, T + 9, vHead))
    a("v_lshlrev_b32 v%d, 1, v%d" % (T + 9, T + 9))
    a("v_lshl_add_u32 v%d, v%d, 8, v%d" % (vFA, vFH, T + 9))
    a("s_lshr_b32 s37, s23, 1")
    a("s_lshl_b32 s37, s37, 5")
    a("s_add_u32 s37, s37, s52")
    a("v_add_u32 v%d, s37, v%d" % (vFA, vFA))
    a("s_mov_b32 s38, %d" % (8 * SSTR))
    a("v_and_b32 v%d, 3, v3" % (T + 1))
    a("v_lshlrev_b32 v%d, 14, v2" % (T + 3))
    a("v_lshl_add_u32 v%d, v%d, 10, v%d" % (T + 3, T + 1, T + 3))
    a("v_lshrrev_b32 v%d, 2, v3" % (T + 2))
    a("v_lshl_add_u32 v%d, v%d, 8, v%d" % (T + 3, T + 2, T + 3))
    a("v_xor_b32 v%d, v4, v3" % (T + 2))
    for j in range(4):
        a("v_xor_b32 v%d, %d, v%d" % (KR + j, 4 * j, T + 2))
        a("v_lshl_add_u32 v%d, v%d, 4, v%d" % (KR + j, KR + j, T + 3))
    a("v_lshlrev_b32 v%d, 8, v%d" % (vQr, T + 1))
    a("v_lshl_add_u32 v%d, v4, 4, v%d" % (vQr, vQr))
    if ibar == 2: a("s_barrier")
    for _ in range(vdelay): a("s_nop 15")
    def kwait(t):
        last = 4 * t + 3
        younger = 15 - last
        if qpos > last:
            younger = 15 - (qpos - 1) if False else 15 - max(last, qpos - 1)
            younger = (15 - (qpos - 1))
        return younger + 1 + (1 if mlwarm else 0) + (1 if vwarm in (1, 3) else 0) + ((1 + (1 if owarm else 0)) if early_small else 0)
    for t in range(4):
        a("s_waitcnt vmcnt(%d)" % kwait(t))
        if t == 0: stamp(13)
        kb = K + (t & 1) * 16
        if t == 0:
            for j in range(4):
                a("ds_read_b128 %s, v%d offset:%d" % (vq(Q + 4 * j), vQr, L_Q + j * 64))
        for j in range(4):
            a("ds_read_b128 %s, v%d offset:%d" % (vq(kb + 4 * j), KR + j, L_K + t * 4096))
        for j in range(4):
            a("s_waitcnt lgkmcnt(%d)" % (3 - j))
            a("v_mfma_f32_16x16x32_bf16 %s, %s, %s, %s" % (vq(S + 4 * t), vq(kb + 4 * j), vq(Q + 4 * j), "0" if j == 0 else vq(S + 4 * t)))
    vloads(0, 8)
    stamp(2)
    a("s_cmp_eq_u32 s3, 0")
    a("s_cbranch_scc0 L_notree")
    a("v_mov_b32 v%d, %s" % (T + 8, f32hex(-3.0e38)))
    a("s_cmp_eq_u32 s23, 0")
    a("s_cbranch_scc0 L_tree1")
    for j in range(4):
        a("v_mfma_f32_16x16x32_bf16 %s, %s, %s, %s" % (vq(ST), vq(KT + 4 * j), vq(Q + 4 * j), "0" if j == 0 else vq(ST)))
    a("s_waitcnt lgkmcnt(0)")
    a("s_lshr_b32 s58, s22, 3")
    a("s_lshl_b32 s58, s58, 4")
    a("s_lshr_b32 s58, s62, s58")
    a("s_lshl_b32 s58, s58, 16")
    a("v_mov_b32 v%d, s58" % (T + 8))
    a("v_sub_f32 v%d, 1.0, v%d" % (T + 8, T + 8))
    a("s_mov_b32 s58, %s" % f32hex(-1e9 / SCALE))
    a("s_nop 3")
    a("v_fma_f32 v%d, v%d, s58, v%d" % (T + 8, T + 8, ST))
    a.label("L_tree1")
    a("v_lshlrev_b32 v%d, 2, v3" % (T + 9))
    a("s_mov_b64 exec, 0xf")
    a("ds_write_b32 v%d, v%d offset:%d" % (T + 9, T + 8, L_ST))
    a("s_mov_b64 exec, -1")
    a.label("L_notree")
    a("v_max3_f32 v%d, v%d, v%d, v%d" % (T, S + 0, S + 1, S + 2))
    a("v_max3_f32 v%d, v%d, v%d, v%d" % (T + 1, S + 3, S + 4, S + 5))
    a("v_max3_f32 v%d, v%d, v%d, v%d" % (T + 2, S + 6, S + 7, S + 8))
    a("v_max3_f32 v%d, v%d, v%d, v%d" % (T + 3, S + 9, S + 10, S + 11))
    a("s_nop 4")
    a("v_max3_f32 v%d, v%d, v%d, v%d" % (T, T, S + 12, S + 13))
    a("v_max3_f32 v%d, v%d, v%d, v%d" % (T + 1, T + 1, S + 14, S + 15))
    a("v_max3_f32 v%d, v%d, v%d, v%d" % (T, T, T + 1, T + 2))
    a("v_max_f32 v%d, v%d, v%d" % (T, T, T + 3))
    def xlane(op, r, t):
        a("v_mov_b32 v%d, v%d" % (t, r))
        a("s_nop 1")
        a("v_permlane32_swap_b32 v%d, v%d" % (r, t))
        a("%s v%d, v%d, v%d" % (op, r, r, t))
        a("v_mov_b32 v%d, v%d" % (t, r))
        a("s_nop 1")
        a("v_permlane16_swap_b32 v%d, v%d" % (r, t))
        a("%s v%d, v%d, v%d" % (op, r, r, t))
    xlane("v_max_f32", T, T + 1)
    a("v_and_b32 v%d, 3, v3" % (T + 10))
    a("v_lshlrev_b32 v%d, 5, v%d" % (T + 2, T + 10))
    a("s_lshl_b32 s58, s3, 2")
    a("v_add_u32 v%d, s58, v%d" % (T + 3, T + 2))
    a("v_lshlrev_b32 v%d, 2, v%d" % (T + 10, T + 10))
    a("s_mov_b64 exec, 0xf")
    a("ds_write_b32 v%d, v%d offset:%d" % (T + 3, T, L_M))
    a("s_mov_b64 exec, -1")
    a("s_waitcnt lgkmcnt(0)")
    a("s_barrier")
    stamp(3)
    if not early_small:
        a("global_load_ushort v%d, v%d, s[12:13]" % (vVT, vVT))
        if owarm:
            a("global_load_ushort v%d, v%d, s[16:17]" % (T + 15, vFA))
    if gwarm:
        a("buffer_load_dword v%d, v%d, s[32:35], 0 offen %s" % (T + 15, vFO, hl))
        a("buffer_load_dword v%d, v%d, s[32:35], s38 offen %s" % (T + 15, vFO, hl))
    a("s_mul_i32 s57, s51, %d" % SSTR)
    a("buffer_load_dword v%d, v%d, s[32:35], s57 offen %s" % (T + 15, vOoff, hs))
    vloads(8, 12)
    a("ds_read_b128 %s, v%d offset:%d" % (vq(T + 4), T + 2, L_M))
    a("ds_read_b128 %s, v%d offset:%d" % (vq(K), T + 2, L_M + 16))
    a("ds_read_b32 v%d, v%d offset:%d" % (T + 8, T + 10, L_ST))
    a("s_mov_b32 s63, %s" % f32hex(C))
    a("s_waitcnt vmcnt(%d)" % (13 + (0 if early_small else 1 + (1 if owarm else 0)) + (2 if gwarm else 0)))
    a("v_add_u32 v%d, 1, v%d" % (vNonce, vNonce))
    a("v_and_b32 v%d, 3, v3" % (T + 11))
    a("v_lshlrev_b32 v%d, 3, v%d" % (T + 11, T + 11))
    a("v_lshrrev_b32 v%d, v%d, v%d" % (vTagO, T + 11, vNonce))
    a("v_and_b32 v%d, 0xff, v%d" % (vTagO, vTagO))
    a("v_readfirstlane_b32 s39, v%d" % vNonce)
    a("v_xor_b32 v%d, 0xff, v%d" % (T + 11, vTagO))
    a("v_lshlrev_b32 v%d, 2, v1" % (T + 9))
    a("ds_write_b32 v%d, v%d offset:%d" % (T + 9, T + 11, L_X))
    a("s_waitcnt lgkmcnt(0)")
    a("v_max3_f32 v%d, v%d, v%d, v%d" % (T, T + 4, T + 5, T + 6))
    a("v_max3_f32 v%d, v%d, v%d, v%d" % (T + 1, T + 7, K, K + 1))
    a("v_max3_f32 v%d, v%d, v%d, v%d" % (T, T, K + 2, K + 3))
    a("v_max3_f32 v%d, v%d, v%d, v%d" % (T, T, T + 1, T + 8))
    for r in range(16):
        a("v_sub_f32 v%d, v%d, v%d" % (S + r, S + r, T))
    a("v_sub_f32 v%d, v%d, v%d" % (T + 8, T + 8, T))
    for r in range(16):
        a("v_mul_f32 v%d, s63, v%d" % (S + r, S + r))
    a("v_mul_f32 v%d, s63, v%d" % (T + 8, T + 8))
    for r in range(16):
        a("v_exp_f32 v%d, v%d" % (S + r, S + r))
    a("v_exp_f32 v%d, v%d" % (T + 8, T + 8))
    a("v_mul_f32 v%d, s63, v%d" % (T, T))
    a("v_add_f32 v%d, v%d, v%d" % (T + 1, S + 0, S + 1))
    a("v_add_f32 v%d, v%d, v%d" % (T + 4, S + 2, S + 3))
    for r in range(4, 16, 2):
        a("v_add_f32 v%d, v%d, v%d" % (T + 1, T + 1, S + r))
        a("v_add_f32 v%d, v%d, v%d" % (T + 4, T + 4, S + r + 1))
    a("v_add_f32 v%d, v%d, v%d" % (T + 1, T + 1, T + 4))
    for u in range(2):
        for hq in range(2):
            t = 2 * u + hq
            a("v_cvt_pk_bf16_f32 v%d, v%d, v%d" % (PR + 4 * u + 2 * hq, S + 4 * t, S + 4 * t + 1))
            a("v_cvt_pk_bf16_f32 v%d, v%d, v%d" % (PR + 4 * u + 2 * hq + 1, S + 4 * t + 2, S + 4 * t + 3))
    xlane("v_add_f32", T + 1, T + 4)
    a("s_mov_b64 exec, 0xf")
    a("ds_write_b32 v%d, v%d offset:%d" % (T + 3, T + 1, L_L))
    a("s_cmp_eq_u32 s3, 0")
    a("s_cbranch_scc0 L_nomq")
    a("ds_write_b32 v%d, v%d offset:%d" % (T + 10, T + 8, L_PT))
    a.label("L_nomq")
    a("s_mov_b64 exec, -1")
    a("s_mov_b32 exec_lo, 0x000f000f")
    a("s_mov_b32 exec_hi, 0x000f000f")
    for c in range(8):
        a("ds_write_b32 v%d, v%d offset:%d" % (vPW, PR + c, L_P + c * 512))
    a("s_mov_b64 exec, -1")
    a("s_waitcnt lgkmcnt(0)")
    a("s_barrier")
    a("v_lshlrev_b32 v%d, 2, v4" % (T + 9))
    a("ds_read_b32 v%d, v%d offset:%d" % (vPT, T + 9, L_PT))
    a("s_cmp_eq_u32 s3, 0")
    a("s_cbranch_scc0 L_noml")
    a("ds_read_b128 %s, v%d offset:%d" % (vq(K), T + 2, L_L))
    a("ds_read_b128 %s, v%d offset:%d" % (vq(K + 4), T + 2, L_L + 16))
    a("s_lshl_b32 s61, s51, 6")
    a("s_add_u32 s61, s61, 0x%x" % WS_ML)
    a("s_add_u32 s56, s61, 0x%x" % WS_B)
    a("v_lshlrev_b32 v%d, 4, v3" % (K + 12))
    a("s_waitcnt lgkmcnt(0)")
    a("v_add_f32 v%d, v%d, v%d" % (K, K, K + 1))
    a("v_add_f32 v%d, v%d, v%d" % (K + 2, K + 2, K + 3))
    a("v_add_f32 v%d, v%d, v%d" % (K + 4, K + 4, K + 5))
    a("v_add_f32 v%d, v%d, v%d" % (K + 6, K + 6, K + 7))
    a("v_add_f32 v%d, v%d, v%d" % (K, K, K + 2))
    a("v_add_f32 v%d, v%d, v%d" % (K + 4, K + 4, K + 6))
    a("v_add_f32 v%d, v%d, v%d" % (K, K, K + 4))
    a("v_mov_b32 v%d, v%d" % (K + 8, T))
    a("v_add_f32 v%d, v%d, v%d" % (K + 9, K, T + 8))
    a("v_mov_b32 v%d, v%d" % (K + 10, vNonce))
    a("v_mov_b32 v%d, v%d" % (K + 11, vNonce))
    a("s_mov_b64 exec, 0xf")
    a("buffer_store_dwordx4 %s, v%d, s[32:35], s61 offen" % (vq(K + 8), K + 12))
    a("buffer_store_dwordx4 %s, v%d, s[32:35], s56 offen %s" % (vq(K + 8), K + 12, hs))
    a("s_mov_b64 exec, -1")
    a.label("L_noml")
    vloads(12, 16)
    for c in range(8):
        if c == 5: a("s_waitcnt lgkmcnt(4)")
        for bq in range(2):
            a("ds_read_b128 %s, v%d offset:%d" % (vq(PF + (c * 2 + bq) * 4), vPR, L_P + c * 512 + bq * 256))
    def tr_reads(c, bq, q):
        base = vTR0 if bq == 0 else vTR1
        a("ds_read_b64_tr_b16 %s, v%d offset:%d" % (vq(VF + 4 * q, 2), base, L_K + c * 2048))
        a("ds_read_b64_tr_b16 %s, v%d offset:%d" % (vq(VF + 4 * q + 2, 2), base, L_K + c * 2048 + 32768))
    def pv_mfma(c, bq, q):
        d = D0 if bq == 0 else D1
        a("v_mfma_f32_16x16x32_bf16 %s, %s, %s, %s" % (vq(d), vq(PF + (c * 2 + bq) * 4), vq(VF + 4 * q), "0" if c == 0 else vq(d)))
    def pv_group(chunks):
        blocks = [(c, bq) for c in chunks for bq in range(2)]
        for b0 in range(0, len(blocks), 4):
            batch = blocks[b0:b0 + 4]
            for q, (c, bq) in enumerate(batch): tr_reads(c, bq, q + 4 * ((b0 // 4) & 1))
            for q, (c, bq) in enumerate(batch):
                a("s_waitcnt lgkmcnt(%d)" % (2 * (len(batch) - 1 - q)))
                pv_mfma(c, bq, q + 4 * ((b0 // 4) & 1))
    X0, X1, M0, M1 = 52, 56, 60, 64
    B1, B2, F0, F1, LS, TT = 68, 69, 70, 71, 72, 73
    AC = 76
    a("s_waitcnt vmcnt(%d) lgkmcnt(0)" % (9 + (0 if early_small else 1 + (1 if owarm else 0)) + (2 if gwarm else 0)))
    a("s_barrier")
    pv_group([0, 1, 2, 3])
    a("s_waitcnt vmcnt(4)")
    a("v_lshlrev_b32 v%d, 16, v%d" % (vVT, vVT))
    a("v_mul_f32 v%d, v%d, v%d" % (vPT, vPT, vVT))
    a("s_barrier")
    pv_group([4, 5])
    a("s_waitcnt vmcnt(2)")
    a("s_barrier")
    pv_group([6])
    a("s_add_u32 s59, s57, 0x%x" % WS_B)
    a("s_mov_b32 s58, 0xffffff00")
    a("s_waitcnt vmcnt(0)")
    stamp(4)
    a("s_cmp_eq_u32 s3, %d" % fw)
    a("s_cbranch_scc0 L_nomlphase")
    a("buffer_load_dwordx4 %s, v%d, s[32:35], 0 offen %s" % (vq(M0), vFM, hl))
    a("buffer_load_dwordx4 %s, v%d, s[32:35], 0 offen offset:512 %s" % (vq(M1), vFM, hl))
    a.label("L_nomlphase")
    a("s_barrier")
    stamp(5)
    pv_group([7])
    A = K
    a("v_lshlrev_b32 v%d, 2, v1" % (A + 2))
    a("s_nop 6")
    a("v_add_f32 v%d, v%d, v%d" % (A, D0, D1))
    a("v_add_f32 v%d, v%d, v%d" % (A, A, vPT))
    a("v_and_or_b32 v%d, v%d, s58, v%d" % (A + 1, A, vTagO))
    a("buffer_store_dword v%d, v%d, s[32:35], s57 offen" % (A + 1, vOoff))
    a("s_cmp_eq_u32 s3, %d" % fw)
    a("s_cbranch_scc1 L_final")
    a("buffer_store_dword v%d, v%d, s[32:35], s59 offen %s" % (A + 1, vOoff, hs))
    a("s_cmp_eq_u32 s3, 0")
    a("s_cbranch_scc0 L_pubdone")
    a("s_mov_b32 s54, 0")
    a.label("L_bpoll")
    a("ds_read_b32 v%d, v%d offset:%d" % (A + 3, A + 2, L_X))
    a("s_waitcnt lgkmcnt(0)")
    a("v_xor_b32 v%d, v%d, v%d" % (A + 4, A + 3, vTagO))
    a("v_and_b32 v%d, 0xff, v%d" % (A + 4, A + 4))
    a("v_cmp_ne_u32 vcc, 0, v%d" % (A + 4))
    a("s_cbranch_vccz L_bgo")
    a("s_add_u32 s54, s54, 1")
    a("s_cmp_lt_u32 s54, 0x400000")
    a("s_cbranch_scc1 L_bpoll")
    a.label("L_bgo")
    a("v_add_u32 v%d, %d, v%d" % (A + 5, fw * 256, vOoff))
    a("buffer_store_dword v%d, v%d, s[32:35], s59 offen %s" % (A + 3, A + 5, hs))
    a.label("L_pubdone")
    stamp(6)
    stamp_flush(7)
    a("s_branch L_end")
    a.label("L_final")
    stamp(6)
    a("ds_write_b32 v%d, v%d offset:%d" % (A + 2, A + 1, L_X))
    a("s_and_b32 s40, s39, 0xff")
    a("s_bfe_u32 s41, s39, 0x80008")
    a("s_bfe_u32 s42, s39, 0x80010")
    a("s_lshr_b32 s43, s39, 24")
    a("s_mov_b32 s54, 0")
    if npipe and early0:
        a("buffer_load_dwordx4 %s, v%d, s[32:35], 0 offen %s" % (vq(PF), vFO, hl))
        a("buffer_load_dwordx4 %s, v%d, s[32:35], s38 offen %s" % (vq(PF + 4), vFO, hl))
        a("s_waitcnt vmcnt(3)")
    else:
        a("s_waitcnt vmcnt(1)")
    a("s_branch L_mlchk")
    a.label("L_mlpoll")
    a("buffer_load_dwordx4 %s, v%d, s[32:35], 0 offen %s" % (vq(M0), vFM, hl))
    a("buffer_load_dwordx4 %s, v%d, s[32:35], 0 offen offset:512 %s" % (vq(M1), vFM, hl))
    a("s_waitcnt vmcnt(0)")
    a.label("L_mlchk")
    a("v_xor_b32 v%d, s39, v%d" % (B1, M0 + 2))
    a("v_bitop3_b32 v%d, v%d, s39, v%d bitop3:0xbe" % (B1, M1 + 2, B1))
    a("v_bitop3_b32 v%d, v%d, s39, v%d bitop3:0xbe" % (B1, M0 + 3, B1))
    a("v_bitop3_b32 v%d, v%d, s39, v%d bitop3:0xbe" % (B1, M1 + 3, B1))
    a("v_cmp_ne_u32 vcc, 0, v%d" % B1)
    a("s_cbranch_vccz L_mlok")
    a("s_add_u32 s54, s54, 1")
    a("s_cmp_lt_u32 s54, 0x40000")
    a("s_cbranch_scc0 L_mlok")
    a("s_cmp_lt_u32 s54, %d" % na)
    a("s_cbranch_scc1 L_mlpoll")
    a("v_xor_b32 v%d, 0x%x, v%d" % (vFM, WS_B, vFM))
    a("s_branch L_mlpoll")
    a.label("L_mlok")
    stamp(7)
    Y0, Y1 = 100, 104
    def o_loads2(x0, x1):
        a("buffer_load_dwordx4 %s, v%d, s[32:35], 0 offen %s" % (vq(x0), vFO, hl))
        a("buffer_load_dwordx4 %s, v%d, s[32:35], s38 offen %s" % (vq(x1), vFO, hl))
    def o_check(x0, x1):
        a("v_xor_b32 v%d, s40, v%d" % (B1, x0))
        a("v_xor_b32 v%d, s41, v%d" % (B2, x0 + 1))
        a("v_bitop3_b32 v%d, v%d, s42, v%d bitop3:0xbe" % (B1, x0 + 2, B1))
        a("v_bitop3_b32 v%d, v%d, s43, v%d bitop3:0xbe" % (B2, x0 + 3, B2))
        a("v_bitop3_b32 v%d, v%d, s40, v%d bitop3:0xbe" % (B1, x1, B1))
        a("v_bitop3_b32 v%d, v%d, s41, v%d bitop3:0xbe" % (B2, x1 + 1, B2))
        a("v_bitop3_b32 v%d, v%d, s42, v%d bitop3:0xbe" % (B1, x1 + 2, B1))
        a("v_bitop3_b32 v%d, v%d, s43, v%d bitop3:0xbe" % (B2, x1 + 3, B2))
        a("v_or_b32 v%d, v%d, v%d" % (B1, B1, B2))
        a("v_and_b32 v%d, 0xff, v%d" % (B1, B1))
        a("v_cmp_ne_u32 vcc, 0, v%d" % B1)
    a("v_max_f32 v%d, v%d, v%d" % (F0, M0, M1))
    a("s_mov_b32 s54, 0")
    a("s_nop 0")
    a("v_max_f32_dpp v%d, v%d, v%d row_ror:8 row_mask:0xf bank_mask:0xf" % (F0, F0, F0))
    xlane("v_max_f32", F0, F1)
    a("v_sub_f32 v%d, v%d, v%d" % (F1, M1, F0))
    a("v_sub_f32 v%d, v%d, v%d" % (F0, M0, F0))
    a("v_exp_f32 v%d, v%d" % (F1, F1))
    a("v_exp_f32 v%d, v%d" % (F0, F0))
    issued = [0]
    if npipe and early0:
        issued[0] = 1
        if npipe >= 2:
            o_loads2(PF + 8, PF + 12); issued[0] = 2
    elif npipe:
        o_loads2(PF, PF + 4); issued[0] = 1
    elif xpos == 0: o_loads2(X0, X1)
    a("s_nop 0")
    a("v_mul_f32 v%d, v%d, v%d" % (LS, F1, M1 + 1))
    a("v_fmac_f32 v%d, v%d, v%d" % (LS, F0, M0 + 1))
    a("s_nop 1")
    a("v_add_f32_dpp v%d, v%d, v%d row_ror:8 row_mask:0xf bank_mask:0xf" % (LS, LS, LS))
    if npipe > issued[0] and npipe >= 2:
        k_ = issued[0]
        o_loads2(PF + 8 * k_, PF + 8 * k_ + 4); issued[0] = k_ + 1
    xlane("v_add_f32", LS, TT)
    a("v_rcp_f32 v%d, v%d" % (LS, LS))
    if xpos == 1 and not npipe: o_loads2(X0, X1)
    def final_math(x0, x1):
        for c in range(4):
            a("v_and_b32 v%d, s58, v%d" % (x0 + c, x0 + c))
        for c in range(4):
            a("v_and_b32 v%d, s58, v%d" % (x1 + c, x1 + c))
        for c in range(4):
            a("v_mul_f32 v%d, v%d, v%d" % (AC + c, F0, x0 + c))
        for c in range(4):
            a("v_fmac_f32 v%d, v%d, v%d" % (AC + c, F1, x1 + c))
    if npipe:
        sets = [(PF + 8 * i, PF + 8 * i + 4) for i in range(npipe)]
        for i in range(issued[0], npipe): o_loads2(*sets[i])
        a.label("L_owait")
        for i in range(npipe):
            a("s_waitcnt vmcnt(%d)" % (2 * (npipe - 1)))
            o_check(*sets[i])
            a("s_cbranch_vccz L_ok%d" % i)
            if i == npipe - 1:
                a("s_add_u32 s54, s54, 1")
                a("s_cmp_lt_u32 s54, 0x40000")
                a("s_cbranch_scc0 L_ok%d" % i)
                a("s_cmp_lt_u32 s54, %d" % na)
                a("s_cbranch_scc1 L_otog")
                a("v_xor_b32 v%d, 0x%x, v%d" % (vFO, WS_B, vFO))
                a.label("L_otog")
            o_loads2(*sets[i])
        a("s_branch L_owait")
        for i in range(npipe):
            a.label("L_ok%d" % i)
            stamp(10)
            final_math(*sets[i])
            if i < npipe - 1: a("s_branch L_ook")
    else:
        a.label("L_owait")
        a("s_waitcnt vmcnt(0)")
        o_check(X0, X1)
        a("s_cbranch_vccz L_xok")
        a("s_add_u32 s54, s54, 1")
        a("s_cmp_lt_u32 s54, 0x40000")
        a("s_cbranch_scc0 L_xok")
        a("s_cmp_lt_u32 s54, %d" % na)
        a("s_cbranch_scc1 L_otog")
        a("v_xor_b32 v%d, 0x%x, v%d" % (vFO, WS_B, vFO))
        a.label("L_otog")
        o_loads2(X0, X1)
        a("s_branch L_owait")
        a.label("L_xok")
        stamp(10)
        final_math(X0, X1)
    a.label("L_ook")
    for c in range(4):
        a("v_add_f32_dpp v%d, v%d, v%d row_ror:8 row_mask:0xf bank_mask:0xf" % (AC + c, AC + c, AC + c))
    a("s_nop 0")
    a("v_permlane32_swap_b32 v%d, v%d" % (AC, AC + 1))
    a("v_permlane32_swap_b32 v%d, v%d" % (AC + 2, AC + 3))
    a("v_add_f32 v%d, v%d, v%d" % (AC, AC, AC + 1))
    a("v_add_f32 v%d, v%d, v%d" % (AC + 2, AC + 2, AC + 3))
    a("s_nop 1")
    a("v_permlane16_swap_b32 v%d, v%d" % (AC, AC + 2))
    a("v_add_f32 v%d, v%d, v%d" % (AC, AC, AC + 2))
    a("v_mul_f32 v%d, v%d, v%d" % (AC, AC, LS))
    a("v_cvt_pk_bf16_f32 v%d, v%d, v%d" % (AC, AC, AC))
    a("s_mov_b32 exec_lo, 0x00ff00ff")
    a("s_mov_b32 exec_hi, 0x00ff00ff")
    a("global_store_short v%d, v%d, s[16:17]" % (vFA, AC))
    a("s_cmp_eq_u32 s23, 15")
    a("s_cbranch_scc0 L_now")
    a("s_mov_b64 exec, 1")
    a("buffer_store_dword v%d, off, s[32:35], s60" % vNonce)
    a.label("L_now")
    a("s_mov_b64 exec, -1")
    if stamps:
        stamp(11)
        a("s_waitcnt vmcnt(0)")
    stamp(12)
    if stamps:
        a("s_mov_b32 s82, s54")
        a("s_mov_b32 s83, 0")
    stamp_flush(14)
    a.label("L_end")
    if spin:
        a("s_waitcnt vmcnt(0) lgkmcnt(0)")
        a.label("L_spin")
        a("s_memrealtime s[92:93]")
        a("s_waitcnt lgkmcnt(0)")
        a("s_sub_u32 s94, s92, s90")
        if spinref is not None:
            a("s_sub_u32 s95, s96, s90")
            a("s_sub_u32 s94, s94, s95")
        a("s_cmp_lt_u32 s94, %d" % spin)
        a("s_cbranch_scc1 L_spin")
    a("s_endpgm")
    out = HEADER + "; @launch grid=(256,1,1) block=(512,1,1) lds=%d\n" % LDS
    out += '.amdgcn_target "amdgcn-amd-amdhsa--gfx950"\n.text\n.globl %s_kernel\n.p2align 8\n.type %s_kernel,@function\n%s_kernel:\n' % (NAME, NAME, NAME)
    out += a.text()
    out += """.section .rodata,"a"
.p2align 6
.amdhsa_kernel %s_kernel
  .amdhsa_next_free_vgpr 256
  .amdhsa_next_free_sgpr 100
  .amdhsa_accum_offset 256
  .amdhsa_group_segment_fixed_size 0
  .amdhsa_kernarg_size 72
  .amdhsa_user_sgpr_count 2
  .amdhsa_user_sgpr_kernarg_segment_ptr 1
  .amdhsa_system_sgpr_workgroup_id_x 1
  .amdhsa_float_denorm_mode_32 3
.end_amdhsa_kernel
""" % NAME
    return out

if __name__ == "__main__":
    import argparse
    p = argparse.ArgumentParser()
    p.add_argument("-o", default="cdna_kernels/%s.s" % NAME)
    p.add_argument("--ld", default="nt")
    p.add_argument("--hs", default="sc1")
    p.add_argument("--stamps", action="store_true")
    p.add_argument("--spin", type=int, default=0)
    p.add_argument("--spinref", type=int, default=None)
    p.add_argument("--ibar", type=int, default=1)
    p.add_argument("--vsplit", type=int, default=8)
    p.add_argument("--cons", type=int, default=15)
    p.add_argument("--nonlocal", dest="nonlocal_", action="store_true")
    p.add_argument("--na", type=int, default=8)
    p.add_argument("--swave", type=int, default=0)
    p.add_argument("--skew", type=int, default=0)
    p.add_argument("--qpos", type=int, default=4)
    p.add_argument("--fw", type=int, default=1)
    p.add_argument("--dpoll", type=int, default=0)
    p.add_argument("--xpos", type=int, default=1)
    p.add_argument("--nomlwarm", action="store_true")
    p.add_argument("--hl", default="sc1")
    p.add_argument("--sstr", type=int, default=2048)
    p.add_argument("--nokslim", action="store_true")
    p.add_argument("--vdelay", type=int, default=0)
    p.add_argument("--vwarm", type=int, default=1)
    p.add_argument("--noowarm", action="store_true")
    p.add_argument("--gwarm", action="store_true")
    p.add_argument("--wswarm", action="store_true")
    p.add_argument("--late_small", action="store_true")
    p.add_argument("--npipe", type=int, default=3)
    p.add_argument("--noearly0", action="store_true")
    p.add_argument("--v2a", type=int, default=4)
    x = p.parse_args()
    open(x.o, "w").write(gen(x.ld, x.hs, x.stamps, x.spin, x.spinref, x.ibar, x.vsplit, x.cons, not x.nonlocal_, x.na, x.skew, x.swave, x.qpos, x.fw, x.dpoll, x.xpos, not x.nomlwarm, x.hl, x.v2a, x.sstr, not x.nokslim, x.vdelay, x.vwarm, x.npipe, not x.noearly0, not x.noowarm, x.gwarm, not x.late_small, x.wswarm))
```

```python
import sys, math, struct
NAME = "standalone__tree_speculative_verify_tree_attention_over_candidate_token_tree__decode"
HEADER = """; Kernarg layout for this problem (72 bytes, ptrs only, base s[0:1]):
;
"""
def f32hex(x):
    return "0x%08x" % struct.unpack("<I", struct.pack("<f", x))[0]
class Asm:
    def __init__(self): self.lines = []
    def __call__(self, s): self.lines.append("    " + s)
    def label(self, s): self.lines.append(s + ":")
    def c(self, s): self.lines.append("    ; " + s)
    def text(self): return "\n".join(self.lines) + "\n"
def vq(base, n=4): return "v[%d:%d]" % (base, base + n - 1)

def gen(ld="nt", hs="sc1", stamps=False, spin=0, spinref=None, ibar=1, vsplit=8, cons=15, local=True, na=8,
        skew=0, swave=0, qpos=4, fw=1, dpoll=0, xpos=1, mlwarm=True, hl="sc1", v2a=4, sstr=2048, kslim=True, vdelay=0, vwarm=1, npipe=3, early0=True, owarm=True, gwarm=False, early_small=True, wswarm=False):
    a = Asm()
    LOG2E = 1.4426950408889634
    SCALE = 128 ** -0.5
    C = SCALE * LOG2E
    Q, KT, K = 12, 28, 44
    PR = 28
    KD, KR = 76, 80
    VD, vTR0, vTR1, vPW, vPR = 84, 86, 87, 88, 89
    S, ST = 92, 108
    PF = 112
    VF = 176
    D0, D1 = 208, 212
    T = 232
    vQr, vKToff, vVT, vOoff = 7, 8, 9, 10
    vTagO, vHead, vNonce = 248, 250, 251
    vFO, vFM, vFH, vFA = 11, 5, 246, 245
    vPT = 244
    L_M, L_L, L_ST, L_PT, L_Q, L_P, L_K = 0, 128, 256, 288, 512, 1536, 5632
    L_X = L_Q
    LDS = L_K + 8 * 16384
    WS_ML, WS_W, WS_B = 0xa0000, 0xb0000, 0x100000
    SSTR = sstr
    def stamp(i):
        if spinref == i: a("s_memrealtime s[96:97]")
        if stamps: a("s_memrealtime s[%d:%d]" % (64 + 2 * i, 65 + 2 * i))
    nfl = [0]
    def stamp_flush(n):
        if stamps:
            nfl[0] += 1
            a("s_waitcnt lgkmcnt(0)")
            a("s_cmp_eq_u32 s3, %d" % swave)
            a("s_cbranch_scc0 L_nostamp%d" % nfl[0])
            a("s_lshl_b32 s58, s2, 7")
            a("s_add_u32 s58, s58, 0x1000000")
            a("v_mov_b32 v252, s58")
            a("s_mov_b64 exec, 1")
            for i in range(n):
                a("v_mov_b32 v254, s%d" % (64 + 2 * i))
                a("v_mov_b32 v255, s%d" % (65 + 2 * i))
                a("global_store_dwordx2 v252, v[254:255], s[20:21] offset:%d" % (8 * i))
                a("s_nop 1")
            a("s_mov_b64 exec, -1")
            a.label("L_nostamp%d" % nfl[0])
    stamp(0)
    if spin: a("s_memrealtime s[90:91]")
    a("s_load_dwordx16 s[4:19], s[0:1], 0")
    a("s_load_dwordx2 s[20:21], s[0:1], 64")
    a("s_cmp_ge_u32 s2, 256")
    a("s_cbranch_scc1 L_end")
    if skew:
        a("s_mul_i32 s58, s2, 0x9E3779B1")
        a("s_lshr_b32 s58, s58, 29")
        a("s_mul_i32 s58, s58, %d" % skew)
        a("s_memrealtime s[90:91]")
        a("s_waitcnt lgkmcnt(0)")
        a.label("L_skew")
        a("s_memrealtime s[92:93]")
        a("s_waitcnt lgkmcnt(0)")
        a("s_sub_u32 s94, s92, s90")
        a("s_cmp_lt_u32 s94, s58")
        a("s_cbranch_scc1 L_skew")
    a("v_and_b32 v1, 63, v0")
    a("v_lshrrev_b32 v2, 6, v0")
    a("v_and_b32 v3, 15, v0")
    a("v_bfe_u32 v4, v0, 4, 2")
    a("v_readfirstlane_b32 s3, v2")
    if local:
        a("s_and_b32 s22, s2, 15")
        a("s_lshr_b32 s23, s2, 4")
    else:
        a("s_lshr_b32 s22, s2, 4")
        a("s_and_b32 s23, s2, 15")
    a("s_lshl_b32 s51, s22, 4")
    a("s_add_u32 s51, s51, s23")
    a("s_lshl_b32 s54, s51, 17")
    a("v_lshlrev_b32 v%d, 10, v2" % T)
    a("v_lshlrev_b32 v%d, 2, v4" % (T + 2))
    a("v_xor_b32 v%d, v3, v%d" % (T + 2, T + 2))
    a("v_lshl_add_u32 v%d, v4, 8, v%d" % (T + 3, T))
    for r in range(4):
        a("v_xor_b32 v%d, %d, v%d" % (KD + r, r, T + 2))
        a("v_lshl_add_u32 v%d, v%d, 4, v%d" % (KD + r, KD + r, T + 3))
        if kslim and r: a("v_add_u32 v%d, %d, v%d" % (KD + r, r * 7168, KD + r))
    if kslim:
        a("s_mov_b32 s44, 0x8000")
        a("s_mov_b32 s45, 0x10000")
        a("s_mov_b32 s46, 0x18000")
    a("v_lshlrev_b32 v%d, 4, v1" % vQr)
    a("s_mov_b32 s26, 0x20000")
    a("s_mov_b32 s27, 0x00020000")
    a("s_mov_b32 s30, 0x20000")
    a("s_mov_b32 s31, 0x00020000")
    a("s_mov_b32 s34, 0x200000")
    a("s_mov_b32 s35, 0x00020000")
    a("s_mov_b32 s86, 0x400")
    a("s_mov_b32 s87, 0x00020000")
    a("s_lshl_b32 s52, s22, 10")
    a("s_lshl_b32 s53, s22, 8")
    a("s_lshl_b32 s55, s3, 14")
    a("s_add_u32 s55, s55, %d" % L_K)
    a("s_waitcnt lgkmcnt(0)")
    stamp(1)
    a("s_add_u32 s24, s6, s54")
    a("s_addc_u32 s25, s7, 0")
    a("s_and_b32 s25, s25, 0xffff")
    a("s_add_u32 s84, s4, s52")
    a("s_addc_u32 s85, s5, 0")
    a("s_and_b32 s85, s85, 0xffff")
    a("s_or_b32 s56, s3, s23")
    a("s_cmp_eq_u32 s56, 0")
    a("s_cbranch_scc0 L_nokt")
    a("v_lshlrev_b32 v%d, 4, v4" % vKToff)
    a("v_add_u32 v%d, s53, v%d" % (vKToff, vKToff))
    for j in range(4):
        a("global_load_dwordx4 %s, v%d, s[10:11] offset:%d" % (vq(KT + 4 * j), vKToff, j * 64))
    a("s_load_dword s62, s[14:15], 0")
    a.label("L_nokt")
    def qdma():
        a("s_mov_b32 m0, %d" % L_Q)
        a("s_nop 0")
        a("buffer_load_dwordx4 v%d, s[84:87], 0 offen lds" % vQr)
    if kslim:
        assert qpos == 4
        for t in range(4):
            if t == 1: qdma()
            a("s_add_u32 m0, s55, %d" % (t * 4096))
            if t == 0: a("s_nop 0")
            else: a("s_nop 0")
            for r in range(4):
                a("buffer_load_dwordx4 v%d, s[24:27], %s offen offset:%d %s lds" % (KD + r, ["0", "s44", "s45", "s46"][t], r * 1024, ld))
    else:
        a("s_mov_b32 s58, 0")
        for i in range(16):
            if i == qpos: qdma()
            if i == 0 or i == qpos:
                a("s_add_u32 m0, s55, %d" % (i * 1024))
                a("s_nop 0")
            a("buffer_load_dwordx4 v%d, s[24:27], s58 offen %s lds" % (KD + (i & 3), ld))
            if i < 15:
                if i + 1 != qpos: a("s_add_u32 m0, m0, 1024")
                a("s_add_u32 s58, s58, 0x2000")
    a("s_add_u32 s28, s8, s54")
    a("s_addc_u32 s29, s9, 0")
    a("s_and_b32 s29, s29, 0xffff")
    a("s_mov_b32 s32, s20")
    a("s_and_b32 s33, s21, 0xffff")
    if vwarm == 1:
        a("buffer_load_dword v%d, off, s[28:31], 0 nt" % (T + 15))
    if vwarm == 3:
        a("v_lshlrev_b32 v%d, 14, v2" % (T + 14))
        a("s_mov_b64 exec, 1")
        a("buffer_load_dword v%d, v%d, s[28:31], 0 offen nt" % (T + 15, T + 14))
        a("s_mov_b64 exec, -1")
    if vwarm == 2:
        a("s_cmp_eq_u32 s3, 0")
        a("s_cbranch_scc0 L_novw")
        a("v_and_b32 v%d, 15, v0" % (T + 14))
        a("v_lshlrev_b32 v%d, 13, v%d" % (T + 14, T + 14))
        a("s_mov_b64 exec, 0xffff")
        a("buffer_load_dword v%d, v%d, s[28:31], 0 offen nt" % (T + 15, T + 14))
        a("s_mov_b64 exec, -1")
        a.label("L_novw")
    a("s_lshl_b32 s58, s22, 7")
    a("s_add_u32 s60, s58, 0x%x" % WS_W)
    a("buffer_load_dword v%d, off, s[32:35], s60 %s" % (vNonce, hs))
    if mlwarm:
        a("s_lshl_b32 s58, s51, 6")
        a("s_add_u32 s58, s58, 0x%x" % WS_ML)
        a("buffer_load_dword v%d, off, s[32:35], s58 %s" % (T + 15, hs))
    if early_small:
        a("v_lshlrev_b32 v%d, 1, v3" % vVT)
        a("v_lshl_add_u32 v%d, v2, 5, v%d" % (vVT, vVT))
        a("v_add_u32 v%d, s53, v%d" % (vVT, vVT))
        a("global_load_ushort v%d, v%d, s[12:13]" % (vVT, vVT))
        if owarm:
            a("v_mov_b32 v%d, s52" % (T + 14))
            a("global_load_ushort v%d, v%d, s[16:17]" % (T + 15, T + 14))
    if wswarm:
        a("s_cmp_eq_u32 s3, 2")
        a("s_cbranch_scc0 L_nowsw")
        a("s_mul_i32 s58, s22, %d" % (16 * SSTR))
        a("v_lshlrev_b32 v%d, 9, v1" % (T + 14))
        a("buffer_load_dword v%d, v%d, s[32:35], s58 offen %s" % (T + 15, T + 14, hs))
        a("s_add_u32 s58, s58, 0x%x" % WS_B)
        a("buffer_load_dword v%d, v%d, s[32:35], s58 offen %s" % (T + 15, T + 14, hs))
        a.label("L_nowsw")
    if ibar == 1: a("s_barrier")
    def vloads(i0, i1):
        a("s_add_u32 m0, s55, %d" % (i0 * 1024))
        a("s_mov_b32 s58, 0x%x" % (i0 * 0x2000))
        for i in range(i0, i1):
            a("buffer_load_dwordx4 v%d, s[28:31], s58 offen %s lds" % (VD + (i & 1), ld))
            if i < i1 - 1:
                a("s_add_u32 m0, m0, 1024")
                a("s_add_u32 s58, s58, 0x2000")
    a("v_lshlrev_b32 v%d, 8, v2" % vOoff)
    a("v_lshl_add_u32 v%d, v1, 2, v%d" % (vOoff, vOoff))
    a("v_and_b32 v%d, 1, v4" % (T + 8))
    a("v_lshlrev_b32 v%d, 1, v%d" % (T + 9, T + 8))
    a("v_lshrrev_b32 v%d, 1, v4" % (T + 10))
    a("v_or_b32 v%d, v%d, v%d" % (vHead, T + 9, T + 10))
    if not early_small:
        a("v_lshlrev_b32 v%d, 1, v3" % vVT)
        a("v_lshl_add_u32 v%d, v2, 5, v%d" % (vVT, vVT))
        a("v_add_u32 v%d, s53, v%d" % (vVT, vVT))
    a("v_and_b32 v%d, 1, v2" % (T + 9))
    a("v_lshlrev_b32 v%d, 2, v%d" % (T + 9, T + 9))
    a("v_lshl_add_u32 v%d, v%d, 3, v%d" % (T + 9, T + 8, T + 9))
    a("v_xor_b32 v%d, v3, v%d" % (T + 9, T + 9))
    a("v_lshlrev_b32 v%d, 10, v2" % (T + 10))
    a("v_lshl_add_u32 v%d, v4, 8, v%d" % (T + 10, T + 10))
    a("v_lshl_add_u32 v%d, v%d, 4, v%d" % (VD, T + 9, T + 10))
    a("v_xor_b32 v%d, 2, v%d" % (T + 9, T + 9))
    a("v_lshl_add_u32 v%d, v%d, 4, v%d" % (VD + 1, T + 9, T + 10))
    a("v_lshrrev_b32 v%d, 2, v3" % (T + 9))
    a("v_lshlrev_b32 v%d, 1, v%d" % (T + 10, T + 9))
    a("v_lshl_add_u32 v%d, v%d, 3, v%d" % (T + 10, T + 8, T + 10))
    a("v_bfe_u32 v%d, v3, 1, 1" % (T + 11))
    a("v_lshl_add_u32 v%d, v2, 1, v%d" % (T + 11, T + 11))
    a("v_xor_b32 v%d, v%d, v%d" % (T + 10, T + 10, T + 11))
    a("v_lshlrev_b32 v%d, 4, v%d" % (vTR0, T + 10))
    a("v_and_b32 v%d, 1, v3" % (T + 11))
    a("v_lshl_add_u32 v%d, v%d, 3, v%d" % (vTR0, T + 11, vTR0))
    a("v_lshl_add_u32 v%d, v4, 8, v%d" % (vTR0, vTR0))
    a("v_and_b32 v%d, 1, v%d" % (T + 11, T + 9))
    a("v_lshl_add_u32 v%d, v%d, 10, v%d" % (vTR0, T + 11, vTR0))
    a("v_lshrrev_b32 v%d, 1, v%d" % (T + 11, T + 9))
    a("v_lshl_add_u32 v%d, v%d, 14, v%d" % (vTR0, T + 11, vTR0))
    a("v_add_u32 v%d, 0x10000, v%d" % (vTR1, vTR0))
    a("v_lshlrev_b32 v%d, 6, v4" % vPR)
    a("v_lshl_add_u32 v%d, v3, 4, v%d" % (vPW, vPR))
    a("v_lshl_add_u32 v%d, v%d, 4, v%d" % (vPR, T + 9, vPR))
    a("s_lshr_b32 s36, s3, 2")
    a("s_lshl_b32 s36, s36, 8")
    a("s_and_b32 s37, s3, 3")
    a("s_lshl_b32 s37, s37, 2")
    a("s_add_u32 s36, s36, s37")
    a("v_add_u32 v%d, s36, v%d" % (vPW, vPW))
    a("v_lshrrev_b32 v%d, 3, v1" % (T + 8))
    a("v_and_b32 v%d, 7, v1" % (T + 9))
    a("s_mul_i32 s36, s22, %d" % (16 * SSTR))
    a("s_lshl_b32 s37, s23, 7")
    a("s_add_u32 s36, s36, s37")
    a("v_mul_u32_u24 v%d, %d, v%d" % (vFO, SSTR, T + 8))
    a("v_lshl_add_u32 v%d, v%d, 4, v%d" % (vFO, T + 9, vFO))
    a("v_add_u32 v%d, s36, v%d" % (vFO, vFO))
    a("v_lshrrev_b32 v%d, 2, v%d" % (vFH, T + 9))
    a("s_and_b32 s37, s23, 1")
    a("s_lshl_b32 s37, s37, 1")
    a("v_add_u32 v%d, s37, v%d" % (vFH, vFH))
    a("v_lshlrev_b32 v%d, 6, v%d" % (vFM, T + 8))
    a("v_lshl_add_u32 v%d, v%d, 4, v%d" % (vFM, vFH, vFM))
    a("s_lshl_b32 s37, s22, 10")
    a("s_add_u32 s37, s37, 0x%x" % WS_ML)
    a("v_add_u32 v%d, s37, v%d" % (vFM, vFM))
    a("v_and_b32 v%d, 3, v%d" % (T + 9, T + 9))
    a("v_lshl_add_u32 v%d, v%d, 2, v%d" % (T + 9, T + 9, vHead))
    a("v_lshlrev_b32 v%d, 1, v%d" % (T + 9, T + 9))
    a("v_lshl_add_u32 v%d, v%d, 8, v%d" % (vFA, vFH, T + 9))
    a("s_lshr_b32 s37, s23, 1")
    a("s_lshl_b32 s37, s37, 5")
    a("s_add_u32 s37, s37, s52")
    a("v_add_u32 v%d, s37, v%d" % (vFA, vFA))
    a("s_mov_b32 s38, %d" % (8 * SSTR))
    a("v_and_b32 v%d, 3, v3" % (T + 1))
    a("v_lshlrev_b32 v%d, 14, v2" % (T + 3))
    a("v_lshl_add_u32 v%d, v%d, 10, v%d" % (T + 3, T + 1, T + 3))
    a("v_lshrrev_b32 v%d, 2, v3" % (T + 2))
    a("v_lshl_add_u32 v%d, v%d, 8, v%d" % (T + 3, T + 2, T + 3))
    a("v_xor_b32 v%d, v4, v3" % (T + 2))
    for j in range(4):
        a("v_xor_b32 v%d, %d, v%d" % (KR + j, 4 * j, T + 2))
        a("v_lshl_add_u32 v%d, v%d, 4, v%d" % (KR + j, KR + j, T + 3))
    a("v_lshlrev_b32 v%d, 8, v%d" % (vQr, T + 1))
    a("v_lshl_add_u32 v%d, v4, 4, v%d" % (vQr, vQr))
    if ibar == 2: a("s_barrier")
    for _ in range(vdelay): a("s_nop 15")
    def kwait(t):
        last = 4 * t + 3
        younger = 15 - last
        if qpos > last:
            younger = 15 - (qpos - 1) if False else 15 - max(last, qpos - 1)
            younger = (15 - (qpos - 1))
        return younger + 1 + (1 if mlwarm else 0) + (1 if vwarm in (1, 3) else 0) + ((1 + (1 if owarm else 0)) if early_small else 0)
    for t in range(4):
        a("s_waitcnt vmcnt(%d)" % kwait(t))
        if t == 0: stamp(13)
        kb = K + (t & 1) * 16
        if t == 0:
            for j in range(4):
                a("ds_read_b128 %s, v%d offset:%d" % (vq(Q + 4 * j), vQr, L_Q + j * 64))
        for j in range(4):
            a("ds_read_b128 %s, v%d offset:%d" % (vq(kb + 4 * j), KR + j, L_K + t * 4096))
        for j in range(4):
            a("s_waitcnt lgkmcnt(%d)" % (3 - j))
            a("v_mfma_f32_16x16x32_bf16 %s, %s, %s, %s" % (vq(S + 4 * t), vq(kb + 4 * j), vq(Q + 4 * j), "0" if j == 0 else vq(S + 4 * t)))
    vloads(0, 8)
    stamp(2)
    a("s_cmp_eq_u32 s3, 0")
    a("s_cbranch_scc0 L_notree")
    a("v_mov_b32 v%d, %s" % (T + 8, f32hex(-3.0e38)))
    a("s_cmp_eq_u32 s23, 0")
    a("s_cbranch_scc0 L_tree1")
    for j in range(4):
        a("v_mfma_f32_16x16x32_bf16 %s, %s, %s, %s" % (vq(ST), vq(KT + 4 * j), vq(Q + 4 * j), "0" if j == 0 else vq(ST)))
    a("s_waitcnt lgkmcnt(0)")
    a("s_lshr_b32 s58, s22, 3")
    a("s_lshl_b32 s58, s58, 4")
    a("s_lshr_b32 s58, s62, s58")
    a("s_lshl_b32 s58, s58, 16")
    a("v_mov_b32 v%d, s58" % (T + 8))
    a("v_sub_f32 v%d, 1.0, v%d" % (T + 8, T + 8))
    a("s_mov_b32 s58, %s" % f32hex(-1e9 / SCALE))
    a("s_nop 3")
    a("v_fma_f32 v%d, v%d, s58, v%d" % (T + 8, T + 8, ST))
    a.label("L_tree1")
    a("v_lshlrev_b32 v%d, 2, v3" % (T + 9))
    a("s_mov_b64 exec, 0xf")
    a("ds_write_b32 v%d, v%d offset:%d" % (T + 9, T + 8, L_ST))
    a("s_mov_b64 exec, -1")
    a.label("L_notree")
    a("v_max3_f32 v%d, v%d, v%d, v%d" % (T, S + 0, S + 1, S + 2))
    a("v_max3_f32 v%d, v%d, v%d, v%d" % (T + 1, S + 3, S + 4, S + 5))
    a("v_max3_f32 v%d, v%d, v%d, v%d" % (T + 2, S + 6, S + 7, S + 8))
    a("v_max3_f32 v%d, v%d, v%d, v%d" % (T + 3, S + 9, S + 10, S + 11))
    a("s_nop 4")
    a("v_max3_f32 v%d, v%d, v%d, v%d" % (T, T, S + 12, S + 13))
    a("v_max3_f32 v%d, v%d, v%d, v%d" % (T + 1, T + 1, S + 14, S + 15))
    a("v_max3_f32 v%d, v%d, v%d, v%d" % (T, T, T + 1, T + 2))
    a("v_max_f32 v%d, v%d, v%d" % (T, T, T + 3))
    def xlane(op, r, t):
        a("v_mov_b32 v%d, v%d" % (t, r))
        a("s_nop 1")
        a("v_permlane32_swap_b32 v%d, v%d" % (r, t))
        a("%s v%d, v%d, v%d" % (op, r, r, t))
        a("v_mov_b32 v%d, v%d" % (t, r))
        a("s_nop 1")
        a("v_permlane16_swap_b32 v%d, v%d" % (r, t))
        a("%s v%d, v%d, v%d" % (op, r, r, t))
    xlane("v_max_f32", T, T + 1)
    a("v_and_b32 v%d, 3, v3" % (T + 10))
    a("v_lshlrev_b32 v%d, 5, v%d" % (T + 2, T + 10))
    a("s_lshl_b32 s58, s3, 2")
    a("v_add_u32 v%d, s58, v%d" % (T + 3, T + 2))
    a("v_lshlrev_b32 v%d, 2, v%d" % (T + 10, T + 10))
    a("s_mov_b64 exec, 0xf")
    a("ds_write_b32 v%d, v%d offset:%d" % (T + 3, T, L_M))
    a("s_mov_b64 exec, -1")
    a("s_waitcnt lgkmcnt(0)")
    a("s_barrier")
    stamp(3)
    if not early_small:
        a("global_load_ushort v%d, v%d, s[12:13]" % (vVT, vVT))
        if owarm:
            a("global_load_ushort v%d, v%d, s[16:17]" % (T + 15, vFA))
    if gwarm:
        a("buffer_load_dword v%d, v%d, s[32:35], 0 offen %s" % (T + 15, vFO, hl))
        a("buffer_load_dword v%d, v%d, s[32:35], s38 offen %s" % (T + 15, vFO, hl))
    a("s_mul_i32 s57, s51, %d" % SSTR)
    a("buffer_load_dword v%d, v%d, s[32:35], s57 offen %s" % (T + 15, vOoff, hs))
    vloads(8, 12)
    a("ds_read_b128 %s, v%d offset:%d" % (vq(T + 4), T + 2, L_M))
    a("ds_read_b128 %s, v%d offset:%d" % (vq(K), T + 2, L_M + 16))
    a("ds_read_b32 v%d, v%d offset:%d" % (T + 8, T + 10, L_ST))
    a("s_mov_b32 s63, %s" % f32hex(C))
    a("s_waitcnt vmcnt(%d)" % (13 + (0 if early_small else 1 + (1 if owarm else 0)) + (2 if gwarm else 0)))
    a("v_add_u32 v%d, 1, v%d" % (vNonce, vNonce))
    a("s_nop 0")
    a("v_readfirstlane_b32 s39, v%d" % vNonce)
    a("s_nop 1")
    a("s_and_b32 s47, s39, 0xff")
    a("s_mul_i32 s47, s47, 0x01010100")
    a("s_and_b32 s48, s39, 0x7f7f7f7f")
    a("s_and_b32 s49, s47, 0x7f7f7f7f")
    a("s_add_u32 s48, s48, s49")
    a("s_xor_b32 s47, s47, s39")
    a("s_and_b32 s47, s47, 0x80808080")
    a("s_xor_b32 s50, s48, s47")
    a("v_and_b32 v%d, 3, v3" % (T + 11))
    a("v_lshlrev_b32 v%d, 3, v%d" % (T + 11, T + 11))
    a("v_lshrrev_b32 v%d, v%d, s50" % (vTagO, T + 11))
    a("v_and_b32 v%d, 0xff, v%d" % (vTagO, vTagO))
    a("v_xor_b32 v%d, 0xff, v%d" % (T + 11, vTagO))
    a("v_lshlrev_b32 v%d, 2, v1" % (T + 9))
    a("ds_write_b32 v%d, v%d offset:%d" % (T + 9, T + 11, L_X))
    a("s_waitcnt lgkmcnt(0)")
    a("v_max3_f32 v%d, v%d, v%d, v%d" % (T, T + 4, T + 5, T + 6))
    a("v_max3_f32 v%d, v%d, v%d, v%d" % (T + 1, T + 7, K, K + 1))
    a("v_max3_f32 v%d, v%d, v%d, v%d" % (T, T, K + 2, K + 3))
    a("v_max3_f32 v%d, v%d, v%d, v%d" % (T, T, T + 1, T + 8))
    for r in range(16):
        a("v_sub_f32 v%d, v%d, v%d" % (S + r, S + r, T))
    a("v_sub_f32 v%d, v%d, v%d" % (T + 8, T + 8, T))
    for r in range(16):
        a("v_mul_f32 v%d, s63, v%d" % (S + r, S + r))
    a("v_mul_f32 v%d, s63, v%d" % (T + 8, T + 8))
    for r in range(16):
        a("v_exp_f32 v%d, v%d" % (S + r, S + r))
    a("v_exp_f32 v%d, v%d" % (T + 8, T + 8))
    a("v_mul_f32 v%d, s63, v%d" % (T, T))
    a("v_add_f32 v%d, v%d, v%d" % (T + 1, S + 0, S + 1))
    a("v_add_f32 v%d, v%d, v%d" % (T + 4, S + 2, S + 3))
    for r in range(4, 16, 2):
        a("v_add_f32 v%d, v%d, v%d" % (T + 1, T + 1, S + r))
        a("v_add_f32 v%d, v%d, v%d" % (T + 4, T + 4, S + r + 1))
    a("v_add_f32 v%d, v%d, v%d" % (T + 1, T + 1, T + 4))
    for u in range(2):
        for hq in range(2):
            t = 2 * u + hq
            a("v_cvt_pk_bf16_f32 v%d, v%d, v%d" % (PR + 4 * u + 2 * hq, S + 4 * t, S + 4 * t + 1))
            a("v_cvt_pk_bf16_f32 v%d, v%d, v%d" % (PR + 4 * u + 2 * hq + 1, S + 4 * t + 2, S + 4 * t + 3))
    xlane("v_add_f32", T + 1, T + 4)
    a("s_mov_b64 exec, 0xf")
    a("ds_write_b32 v%d, v%d offset:%d" % (T + 3, T + 1, L_L))
    a("s_cmp_eq_u32 s3, 0")
    a("s_cbranch_scc0 L_nomq")
    a("ds_write_b32 v%d, v%d offset:%d" % (T + 10, T + 8, L_PT))
    a.label("L_nomq")
    a("s_mov_b64 exec, -1")
    a("s_mov_b32 exec_lo, 0x000f000f")
    a("s_mov_b32 exec_hi, 0x000f000f")
    for c in range(8):
        a("ds_write_b32 v%d, v%d offset:%d" % (vPW, PR + c, L_P + c * 512))
    a("s_mov_b64 exec, -1")
    a("s_waitcnt lgkmcnt(0)")
    a("s_barrier")
    a("v_lshlrev_b32 v%d, 2, v4" % (T + 9))
    a("ds_read_b32 v%d, v%d offset:%d" % (vPT, T + 9, L_PT))
    a("s_cmp_eq_u32 s3, 0")
    a("s_cbranch_scc0 L_noml")
    a("ds_read_b128 %s, v%d offset:%d" % (vq(K), T + 2, L_L))
    a("ds_read_b128 %s, v%d offset:%d" % (vq(K + 4), T + 2, L_L + 16))
    a("s_lshl_b32 s61, s51, 6")
    a("s_add_u32 s61, s61, 0x%x" % WS_ML)
    a("s_add_u32 s56, s61, 0x%x" % WS_B)
    a("v_lshlrev_b32 v%d, 4, v3" % (K + 12))
    a("s_waitcnt lgkmcnt(0)")
    a("v_add_f32 v%d, v%d, v%d" % (K, K, K + 1))
    a("v_add_f32 v%d, v%d, v%d" % (K + 2, K + 2, K + 3))
    a("v_add_f32 v%d, v%d, v%d" % (K + 4, K + 4, K + 5))
    a("v_add_f32 v%d, v%d, v%d" % (K + 6, K + 6, K + 7))
    a("v_add_f32 v%d, v%d, v%d" % (K, K, K + 2))
    a("v_add_f32 v%d, v%d, v%d" % (K + 4, K + 4, K + 6))
    a("v_add_f32 v%d, v%d, v%d" % (K, K, K + 4))
    a("v_mov_b32 v%d, v%d" % (K + 8, T))
    a("v_add_f32 v%d, v%d, v%d" % (K + 9, K, T + 8))
    a("v_mov_b32 v%d, v%d" % (K + 10, vNonce))
    a("v_mov_b32 v%d, v%d" % (K + 11, vNonce))
    a("s_mov_b64 exec, 0xf")
    a("buffer_store_dwordx4 %s, v%d, s[32:35], s61 offen" % (vq(K + 8), K + 12))
    a("buffer_store_dwordx4 %s, v%d, s[32:35], s56 offen %s" % (vq(K + 8), K + 12, hs))
    a("s_mov_b64 exec, -1")
    a.label("L_noml")
    vloads(12, 16)
    for c in range(8):
        if c == 5: a("s_waitcnt lgkmcnt(4)")
        for bq in range(2):
            a("ds_read_b128 %s, v%d offset:%d" % (vq(PF + (c * 2 + bq) * 4), vPR, L_P + c * 512 + bq * 256))
    def tr_reads(c, bq, q):
        base = vTR0 if bq == 0 else vTR1
        a("ds_read_b64_tr_b16 %s, v%d offset:%d" % (vq(VF + 4 * q, 2), base, L_K + c * 2048))
        a("ds_read_b64_tr_b16 %s, v%d offset:%d" % (vq(VF + 4 * q + 2, 2), base, L_K + c * 2048 + 32768))
    def pv_mfma(c, bq, q):
        d = D0 if bq == 0 else D1
        a("v_mfma_f32_16x16x32_bf16 %s, %s, %s, %s" % (vq(d), vq(PF + (c * 2 + bq) * 4), vq(VF + 4 * q), "0" if c == 0 else vq(d)))
    def pv_group(chunks):
        blocks = [(c, bq) for c in chunks for bq in range(2)]
        for b0 in range(0, len(blocks), 4):
            batch = blocks[b0:b0 + 4]
            for q, (c, bq) in enumerate(batch): tr_reads(c, bq, q + 4 * ((b0 // 4) & 1))
            for q, (c, bq) in enumerate(batch):
                a("s_waitcnt lgkmcnt(%d)" % (2 * (len(batch) - 1 - q)))
                pv_mfma(c, bq, q + 4 * ((b0 // 4) & 1))
    X0, X1, M0, M1 = 52, 56, 60, 64
    B1, B2, F0, F1, LS, TT = 68, 69, 70, 71, 72, 73
    AC = 76
    a("s_waitcnt vmcnt(%d) lgkmcnt(0)" % (9 + (0 if early_small else 1 + (1 if owarm else 0)) + (2 if gwarm else 0)))
    a("s_barrier")
    pv_group([0, 1, 2, 3])
    a("s_waitcnt vmcnt(4)")
    a("v_lshlrev_b32 v%d, 16, v%d" % (vVT, vVT))
    a("v_mul_f32 v%d, v%d, v%d" % (vPT, vPT, vVT))
    a("s_barrier")
    pv_group([4, 5])
    a("s_waitcnt vmcnt(2)")
    a("s_barrier")
    pv_group([6])
    a("s_add_u32 s59, s57, 0x%x" % WS_B)
    a("s_mov_b32 s58, 0xffffff00")
    a("s_waitcnt vmcnt(0)")
    stamp(4)
    a("s_cmp_eq_u32 s3, %d" % fw)
    a("s_cbranch_scc0 L_nomlphase")
    a("buffer_load_dwordx4 %s, v%d, s[32:35], 0 offen %s" % (vq(M0), vFM, hl))
    a("buffer_load_dwordx4 %s, v%d, s[32:35], 0 offen offset:512 %s" % (vq(M1), vFM, hl))
    a.label("L_nomlphase")
    a("s_barrier")
    stamp(5)
    pv_group([7])
    A = K
    a("v_lshlrev_b32 v%d, 2, v1" % (A + 2))
    a("s_nop 6")
    a("v_add_f32 v%d, v%d, v%d" % (A, D0, D1))
    a("v_add_f32 v%d, v%d, v%d" % (A, A, vPT))
    a("v_and_or_b32 v%d, v%d, s58, v%d" % (A + 1, A, vTagO))
    a("buffer_store_dword v%d, v%d, s[32:35], s57 offen" % (A + 1, vOoff))
    a("s_cmp_eq_u32 s3, %d" % fw)
    a("s_cbranch_scc1 L_final")
    a("buffer_store_dword v%d, v%d, s[32:35], s59 offen %s" % (A + 1, vOoff, hs))
    a("s_cmp_eq_u32 s3, 0")
    a("s_cbranch_scc0 L_pubdone")
    a("s_mov_b32 s54, 0")
    a.label("L_bpoll")
    a("ds_read_b32 v%d, v%d offset:%d" % (A + 3, A + 2, L_X))
    a("s_waitcnt lgkmcnt(0)")
    a("v_xor_b32 v%d, v%d, v%d" % (A + 4, A + 3, vTagO))
    a("v_and_b32 v%d, 0xff, v%d" % (A + 4, A + 4))
    a("v_cmp_ne_u32 vcc, 0, v%d" % (A + 4))
    a("s_cbranch_vccz L_bgo")
    a("s_add_u32 s54, s54, 1")
    a("s_cmp_lt_u32 s54, 0x400000")
    a("s_cbranch_scc1 L_bpoll")
    a.label("L_bgo")
    a("v_add_u32 v%d, %d, v%d" % (A + 5, fw * 256, vOoff))
    a("buffer_store_dword v%d, v%d, s[32:35], s59 offen %s" % (A + 3, A + 5, hs))
    a.label("L_pubdone")
    stamp(6)
    stamp_flush(7)
    a("s_branch L_end")
    a.label("L_final")
    stamp(6)
    a("ds_write_b32 v%d, v%d offset:%d" % (A + 2, A + 1, L_X))
    a("s_and_b32 s40, s50, 0xff")
    a("s_bfe_u32 s41, s50, 0x80008")
    a("s_bfe_u32 s42, s50, 0x80010")
    a("s_lshr_b32 s43, s50, 24")
    a("s_mov_b32 s54, 0")
    if npipe and early0:
        a("buffer_load_dwordx4 %s, v%d, s[32:35], 0 offen %s" % (vq(PF), vFO, hl))
        a("buffer_load_dwordx4 %s, v%d, s[32:35], s38 offen %s" % (vq(PF + 4), vFO, hl))
        a("s_waitcnt vmcnt(3)")
    else:
        a("s_waitcnt vmcnt(1)")
    a("s_branch L_mlchk")
    a.label("L_mlpoll")
    a("buffer_load_dwordx4 %s, v%d, s[32:35], 0 offen %s" % (vq(M0), vFM, hl))
    a("buffer_load_dwordx4 %s, v%d, s[32:35], 0 offen offset:512 %s" % (vq(M1), vFM, hl))
    a("s_waitcnt vmcnt(0)")
    a.label("L_mlchk")
    a("v_xor_b32 v%d, s39, v%d" % (B1, M0 + 2))
    a("v_bitop3_b32 v%d, v%d, s39, v%d bitop3:0xbe" % (B1, M1 + 2, B1))
    a("v_bitop3_b32 v%d, v%d, s39, v%d bitop3:0xbe" % (B1, M0 + 3, B1))
    a("v_bitop3_b32 v%d, v%d, s39, v%d bitop3:0xbe" % (B1, M1 + 3, B1))
    a("v_cmp_ne_u32 vcc, 0, v%d" % B1)
    a("s_cbranch_vccz L_mlok")
    a("s_add_u32 s54, s54, 1")
    a("s_cmp_lt_u32 s54, 0x40000")
    a("s_cbranch_scc0 L_mlok")
    a("s_cmp_lt_u32 s54, %d" % na)
    a("s_cbranch_scc1 L_mlpoll")
    a("v_xor_b32 v%d, 0x%x, v%d" % (vFM, WS_B, vFM))
    a("s_branch L_mlpoll")
    a.label("L_mlok")
    stamp(7)
    Y0, Y1 = 100, 104
    def o_loads2(x0, x1):
        a("buffer_load_dwordx4 %s, v%d, s[32:35], 0 offen %s" % (vq(x0), vFO, hl))
        a("buffer_load_dwordx4 %s, v%d, s[32:35], s38 offen %s" % (vq(x1), vFO, hl))
    def o_check(x0, x1):
        a("v_xor_b32 v%d, s40, v%d" % (B1, x0))
        a("v_xor_b32 v%d, s41, v%d" % (B2, x0 + 1))
        a("v_bitop3_b32 v%d, v%d, s42, v%d bitop3:0xbe" % (B1, x0 + 2, B1))
        a("v_bitop3_b32 v%d, v%d, s43, v%d bitop3:0xbe" % (B2, x0 + 3, B2))
        a("v_bitop3_b32 v%d, v%d, s40, v%d bitop3:0xbe" % (B1, x1, B1))
        a("v_bitop3_b32 v%d, v%d, s41, v%d bitop3:0xbe" % (B2, x1 + 1, B2))
        a("v_bitop3_b32 v%d, v%d, s42, v%d bitop3:0xbe" % (B1, x1 + 2, B1))
        a("v_bitop3_b32 v%d, v%d, s43, v%d bitop3:0xbe" % (B2, x1 + 3, B2))
        a("v_or_b32 v%d, v%d, v%d" % (B1, B1, B2))
        a("v_and_b32 v%d, 0xff, v%d" % (B1, B1))
        a("v_cmp_ne_u32 vcc, 0, v%d" % B1)
    a("v_max_f32 v%d, v%d, v%d" % (F0, M0, M1))
    a("s_mov_b32 s54, 0")
    a("s_nop 0")
    a("v_max_f32_dpp v%d, v%d, v%d row_ror:8 row_mask:0xf bank_mask:0xf" % (F0, F0, F0))
    xlane("v_max_f32", F0, F1)
    a("v_sub_f32 v%d, v%d, v%d" % (F1, M1, F0))
    a("v_sub_f32 v%d, v%d, v%d" % (F0, M0, F0))
    a("v_exp_f32 v%d, v%d" % (F1, F1))
    a("v_exp_f32 v%d, v%d" % (F0, F0))
    issued = [0]
    if npipe and early0:
        issued[0] = 1
        if npipe >= 2:
            o_loads2(PF + 8, PF + 12); issued[0] = 2
    elif npipe:
        o_loads2(PF, PF + 4); issued[0] = 1
    elif xpos == 0: o_loads2(X0, X1)
    a("s_nop 0")
    a("v_mul_f32 v%d, v%d, v%d" % (LS, F1, M1 + 1))
    a("v_fmac_f32 v%d, v%d, v%d" % (LS, F0, M0 + 1))
    a("s_nop 1")
    a("v_add_f32_dpp v%d, v%d, v%d row_ror:8 row_mask:0xf bank_mask:0xf" % (LS, LS, LS))
    if npipe > issued[0] and npipe >= 2:
        k_ = issued[0]
        o_loads2(PF + 8 * k_, PF + 8 * k_ + 4); issued[0] = k_ + 1
    xlane("v_add_f32", LS, TT)
    a("v_rcp_f32 v%d, v%d" % (LS, LS))
    if xpos == 1 and not npipe: o_loads2(X0, X1)
    def final_math(x0, x1):
        for c in range(4):
            a("v_and_b32 v%d, s58, v%d" % (x0 + c, x0 + c))
        for c in range(4):
            a("v_and_b32 v%d, s58, v%d" % (x1 + c, x1 + c))
        for c in range(4):
            a("v_mul_f32 v%d, v%d, v%d" % (AC + c, F0, x0 + c))
        for c in range(4):
            a("v_fmac_f32 v%d, v%d, v%d" % (AC + c, F1, x1 + c))
    if npipe:
        sets = [(PF + 8 * i, PF + 8 * i + 4) for i in range(npipe)]
        for i in range(issued[0], npipe): o_loads2(*sets[i])
        a.label("L_owait")
        for i in range(npipe):
            a("s_waitcnt vmcnt(%d)" % (2 * (npipe - 1)))
            o_check(*sets[i])
            a("s_cbranch_vccz L_ok%d" % i)
            if i == npipe - 1:
                a("s_add_u32 s54, s54, 1")
                a("s_cmp_lt_u32 s54, 0x40000")
                a("s_cbranch_scc0 L_ok%d" % i)
                a("s_cmp_lt_u32 s54, %d" % na)
                a("s_cbranch_scc1 L_otog")
                a("v_xor_b32 v%d, 0x%x, v%d" % (vFO, WS_B, vFO))
                a.label("L_otog")
            o_loads2(*sets[i])
        a("s_branch L_owait")
        for i in range(npipe):
            a.label("L_ok%d" % i)
            stamp(10)
            final_math(*sets[i])
            if i < npipe - 1: a("s_branch L_ook")
    else:
        a.label("L_owait")
        a("s_waitcnt vmcnt(0)")
        o_check(X0, X1)
        a("s_cbranch_vccz L_xok")
        a("s_add_u32 s54, s54, 1")
        a("s_cmp_lt_u32 s54, 0x40000")
        a("s_cbranch_scc0 L_xok")
        a("s_cmp_lt_u32 s54, %d" % na)
        a("s_cbranch_scc1 L_otog")
        a("v_xor_b32 v%d, 0x%x, v%d" % (vFO, WS_B, vFO))
        a.label("L_otog")
        o_loads2(X0, X1)
        a("s_branch L_owait")
        a.label("L_xok")
        stamp(10)
        final_math(X0, X1)
    a.label("L_ook")
    for c in range(4):
        a("v_add_f32_dpp v%d, v%d, v%d row_ror:8 row_mask:0xf bank_mask:0xf" % (AC + c, AC + c, AC + c))
    a("s_nop 0")
    a("v_permlane32_swap_b32 v%d, v%d" % (AC, AC + 1))
    a("v_permlane32_swap_b32 v%d, v%d" % (AC + 2, AC + 3))
    a("v_add_f32 v%d, v%d, v%d" % (AC, AC, AC + 1))
    a("v_add_f32 v%d, v%d, v%d" % (AC + 2, AC + 2, AC + 3))
    a("s_nop 1")
    a("v_permlane16_swap_b32 v%d, v%d" % (AC, AC + 2))
    a("v_add_f32 v%d, v%d, v%d" % (AC, AC, AC + 2))
    a("v_mul_f32 v%d, v%d, v%d" % (AC, AC, LS))
    a("v_cvt_pk_bf16_f32 v%d, v%d, v%d" % (AC, AC, AC))
    a("s_mov_b32 exec_lo, 0x00ff00ff")
    a("s_mov_b32 exec_hi, 0x00ff00ff")
    a("global_store_short v%d, v%d, s[16:17]" % (vFA, AC))
    a("s_cmp_eq_u32 s23, 15")
    a("s_cbranch_scc0 L_now")
    a("s_mov_b64 exec, 1")
    a("buffer_store_dword v%d, off, s[32:35], s60" % vNonce)
    a.label("L_now")
    a("s_mov_b64 exec, -1")
    if stamps:
        stamp(11)
        a("s_waitcnt vmcnt(0)")
    stamp(12)
    if stamps:
        a("s_mov_b32 s82, s54")
        a("s_mov_b32 s83, 0")
    stamp_flush(14)
    a.label("L_end")
    if spin:
        a("s_waitcnt vmcnt(0) lgkmcnt(0)")
        a.label("L_spin")
        a("s_memrealtime s[92:93]")
        a("s_waitcnt lgkmcnt(0)")
        a("s_sub_u32 s94, s92, s90")
        if spinref is not None:
            a("s_sub_u32 s95, s96, s90")
            a("s_sub_u32 s94, s94, s95")
        a("s_cmp_lt_u32 s94, %d" % spin)
        a("s_cbranch_scc1 L_spin")
    a("s_endpgm")
    out = HEADER + "; @launch grid=(256,1,1) block=(512,1,1) lds=%d\n" % LDS
    out += '.amdgcn_target "amdgcn-amd-amdhsa--gfx950"\n.text\n.globl %s_kernel\n.p2align 8\n.type %s_kernel,@function\n%s_kernel:\n' % (NAME, NAME, NAME)
    out += a.text()
    out += """.section .rodata,"a"
.p2align 6
.amdhsa_kernel %s_kernel
  .amdhsa_next_free_vgpr 256
  .amdhsa_next_free_sgpr 100
  .amdhsa_accum_offset 256
  .amdhsa_group_segment_fixed_size 0
  .amdhsa_kernarg_size 72
  .amdhsa_user_sgpr_count 2
  .amdhsa_user_sgpr_kernarg_segment_ptr 1
  .amdhsa_system_sgpr_workgroup_id_x 1
  .amdhsa_float_denorm_mode_32 3
.end_amdhsa_kernel
""" % NAME
    return out

if __name__ == "__main__":
    import argparse
    p = argparse.ArgumentParser()
    p.add_argument("-o", default="cdna_kernels/%s.s" % NAME)
    p.add_argument("--ld", default="nt")
    p.add_argument("--hs", default="sc1")
    p.add_argument("--stamps", action="store_true")
    p.add_argument("--spin", type=int, default=0)
    p.add_argument("--spinref", type=int, default=None)
    p.add_argument("--ibar", type=int, default=1)
    p.add_argument("--vsplit", type=int, default=8)
    p.add_argument("--cons", type=int, default=15)
    p.add_argument("--nonlocal", dest="nonlocal_", action="store_true")
    p.add_argument("--na", type=int, default=8)
    p.add_argument("--swave", type=int, default=0)
    p.add_argument("--skew", type=int, default=0)
    p.add_argument("--qpos", type=int, default=4)
    p.add_argument("--fw", type=int, default=1)
    p.add_argument("--dpoll", type=int, default=0)
    p.add_argument("--xpos", type=int, default=1)
    p.add_argument("--nomlwarm", action="store_true")
    p.add_argument("--hl", default="sc1")
    p.add_argument("--sstr", type=int, default=2048)
    p.add_argument("--nokslim", action="store_true")
    p.add_argument("--vdelay", type=int, default=0)
    p.add_argument("--vwarm", type=int, default=1)
    p.add_argument("--noowarm", action="store_true")
    p.add_argument("--gwarm", action="store_true")
    p.add_argument("--wswarm", action="store_true")
    p.add_argument("--late_small", action="store_true")
    p.add_argument("--npipe", type=int, default=3)
    p.add_argument("--noearly0", action="store_true")
    p.add_argument("--v2a", type=int, default=4)
    x = p.parse_args()
    open(x.o, "w").write(gen(x.ld, x.hs, x.stamps, x.spin, x.spinref, x.ibar, x.vsplit, x.cons, not x.nonlocal_, x.na, x.skew, x.swave, x.qpos, x.fw, x.dpoll, x.xpos, not x.nomlwarm, x.hl, x.v2a, x.sstr, not x.nokslim, x.vdelay, x.vwarm, x.npipe, not x.noearly0, not x.noowarm, x.gwarm, not x.late_small, x.wswarm))
```

```python
import sys, math, struct
NAME = "standalone__tree_speculative_verify_tree_attention_over_candidate_token_tree__decode"
HEADER = """; Kernarg layout for this problem (72 bytes, ptrs only, base s[0:1]):
;
"""
def f32hex(x):
    return "0x%08x" % struct.unpack("<I", struct.pack("<f", x))[0]
class Asm:
    def __init__(self): self.lines = []
    def __call__(self, s): self.lines.append("    " + s)
    def label(self, s): self.lines.append(s + ":")
    def c(self, s): self.lines.append("    ; " + s)
    def text(self): return "\n".join(self.lines) + "\n"
def vq(base, n=4): return "v[%d:%d]" % (base, base + n - 1)

def gen(ld="nt", hs="sc1", stamps=False, spin=0, spinref=None, ibar=1, vsplit=8, cons=15, local=True, na=8,
        skew=0, swave=0, qpos=4, fw=1, dpoll=0, xpos=1, mlwarm=True, hl="sc1", v2a=4, sstr=2048, kslim=True, vdelay=0, vwarm=1, npipe=3, early0=True, owarm=True, gwarm=False, early_small=True, wswarm=False):
    a = Asm()
    LOG2E = 1.4426950408889634
    SCALE = 128 ** -0.5
    C = SCALE * LOG2E
    Q, KT, K = 12, 28, 44
    PR = 28
    KD, KR = 76, 80
    VD, vTR0, vTR1, vPW, vPR = 84, 86, 87, 88, 89
    S, ST = 92, 108
    PF = 112
    VF = 176
    D0, D1 = 208, 212
    T = 232
    vQr, vKToff, vVT, vOoff = 7, 8, 9, 10
    vTagO, vHead, vNonce = 248, 250, 251
    vFO, vFM, vFH, vFA = 11, 5, 246, 245
    vPT = 244
    L_M, L_L, L_ST, L_PT, L_Q, L_P, L_K = 0, 128, 256, 288, 512, 1536, 5632
    L_X = L_Q
    LDS = L_K + 8 * 16384
    WS_ML, WS_W, WS_B = 0xa0000, 0xb0000, 0x100000
    SSTR = sstr
    def stamp(i):
        if spinref == i: a("s_memrealtime s[96:97]")
        if stamps: a("s_memrealtime s[%d:%d]" % (64 + 2 * i, 65 + 2 * i))
    nfl = [0]
    def stamp_flush(n):
        if stamps:
            nfl[0] += 1
            a("s_waitcnt lgkmcnt(0)")
            a("s_cmp_eq_u32 s3, %d" % swave)
            a("s_cbranch_scc0 L_nostamp%d" % nfl[0])
            a("s_lshl_b32 s58, s2, 7")
            a("s_add_u32 s58, s58, 0x1000000")
            a("v_mov_b32 v252, s58")
            a("s_mov_b64 exec, 1")
            for i in range(n):
                a("v_mov_b32 v254, s%d" % (64 + 2 * i))
                a("v_mov_b32 v255, s%d" % (65 + 2 * i))
                a("global_store_dwordx2 v252, v[254:255], s[20:21] offset:%d" % (8 * i))
                a("s_nop 1")
            a("s_mov_b64 exec, -1")
            a.label("L_nostamp%d" % nfl[0])
    stamp(0)
    if spin: a("s_memrealtime s[90:91]")
    a("s_load_dwordx16 s[4:19], s[0:1], 0")
    a("s_load_dwordx2 s[20:21], s[0:1], 64")
    a("s_cmp_ge_u32 s2, 256")
    a("s_cbranch_scc1 L_end")
    if skew:
        a("s_mul_i32 s58, s2, 0x9E3779B1")
        a("s_lshr_b32 s58, s58, 29")
        a("s_mul_i32 s58, s58, %d" % skew)
        a("s_memrealtime s[90:91]")
        a("s_waitcnt lgkmcnt(0)")
        a.label("L_skew")
        a("s_memrealtime s[92:93]")
        a("s_waitcnt lgkmcnt(0)")
        a("s_sub_u32 s94, s92, s90")
        a("s_cmp_lt_u32 s94, s58")
        a("s_cbranch_scc1 L_skew")
    a("v_and_b32 v1, 63, v0")
    a("v_lshrrev_b32 v2, 6, v0")
    a("v_and_b32 v3, 15, v0")
    a("v_bfe_u32 v4, v0, 4, 2")
    a("v_readfirstlane_b32 s3, v2")
    if local:
        a("s_and_b32 s22, s2, 15")
        a("s_lshr_b32 s23, s2, 4")
    else:
        a("s_lshr_b32 s22, s2, 4")
        a("s_and_b32 s23, s2, 15")
    a("s_lshl_b32 s51, s22, 4")
    a("s_add_u32 s51, s51, s23")
    a("s_lshl_b32 s54, s51, 17")
    a("v_lshlrev_b32 v%d, 10, v2" % T)
    a("v_lshlrev_b32 v%d, 2, v4" % (T + 2))
    a("v_xor_b32 v%d, v3, v%d" % (T + 2, T + 2))
    a("v_lshl_add_u32 v%d, v4, 8, v%d" % (T + 3, T))
    for r in range(4):
        a("v_xor_b32 v%d, %d, v%d" % (KD + r, r, T + 2))
        a("v_lshl_add_u32 v%d, v%d, 4, v%d" % (KD + r, KD + r, T + 3))
        if kslim and r: a("v_add_u32 v%d, %d, v%d" % (KD + r, r * 7168, KD + r))
    if kslim:
        a("s_mov_b32 s44, 0x8000")
        a("s_mov_b32 s45, 0x10000")
        a("s_mov_b32 s46, 0x18000")
    a("v_lshlrev_b32 v%d, 4, v1" % vQr)
    a("s_mov_b32 s26, 0x20000")
    a("s_mov_b32 s27, 0x00020000")
    a("s_mov_b32 s30, 0x20000")
    a("s_mov_b32 s31, 0x00020000")
    a("s_mov_b32 s34, 0x200000")
    a("s_mov_b32 s35, 0x00020000")
    a("s_mov_b32 s86, 0x400")
    a("s_mov_b32 s87, 0x00020000")
    a("s_lshl_b32 s52, s22, 10")
    a("s_lshl_b32 s53, s22, 8")
    a("s_lshl_b32 s55, s3, 14")
    a("s_add_u32 s55, s55, %d" % L_K)
    a("s_waitcnt lgkmcnt(0)")
    stamp(1)
    a("s_add_u32 s24, s6, s54")
    a("s_addc_u32 s25, s7, 0")
    a("s_and_b32 s25, s25, 0xffff")
    a("s_add_u32 s84, s4, s52")
    a("s_addc_u32 s85, s5, 0")
    a("s_and_b32 s85, s85, 0xffff")
    a("s_or_b32 s56, s3, s23")
    a("s_cmp_eq_u32 s56, 0")
    a("s_cbranch_scc0 L_nokt")
    a("v_lshlrev_b32 v%d, 4, v4" % vKToff)
    a("v_add_u32 v%d, s53, v%d" % (vKToff, vKToff))
    for j in range(4):
        a("global_load_dwordx4 %s, v%d, s[10:11] offset:%d" % (vq(KT + 4 * j), vKToff, j * 64))
    a("s_load_dword s62, s[14:15], 0")
    a.label("L_nokt")
    def qdma():
        a("s_mov_b32 m0, %d" % L_Q)
        a("s_nop 0")
        a("buffer_load_dwordx4 v%d, s[84:87], 0 offen lds" % vQr)
    if kslim:
        assert qpos in (4, 16)
        for t in range(4):
            if t == 1 and qpos == 4: qdma()
            a("s_add_u32 m0, s55, %d" % (t * 4096))
            if t == 0: a("s_nop 0")
            else: a("s_nop 0")
            for r in range(4):
                a("buffer_load_dwordx4 v%d, s[24:27], %s offen offset:%d %s lds" % (KD + r, ["0", "s44", "s45", "s46"][t], r * 1024, ld))
        if qpos == 16: qdma()
    else:
        a("s_mov_b32 s58, 0")
        for i in range(16):
            if i == qpos: qdma()
            if i == 0 or i == qpos:
                a("s_add_u32 m0, s55, %d" % (i * 1024))
                a("s_nop 0")
            a("buffer_load_dwordx4 v%d, s[24:27], s58 offen %s lds" % (KD + (i & 3), ld))
            if i < 15:
                if i + 1 != qpos: a("s_add_u32 m0, m0, 1024")
                a("s_add_u32 s58, s58, 0x2000")
    a("s_add_u32 s28, s8, s54")
    a("s_addc_u32 s29, s9, 0")
    a("s_and_b32 s29, s29, 0xffff")
    a("s_mov_b32 s32, s20")
    a("s_and_b32 s33, s21, 0xffff")
    if vwarm == 1:
        a("buffer_load_dword v%d, off, s[28:31], 0 nt" % (T + 15))
    if vwarm == 3:
        a("v_lshlrev_b32 v%d, 14, v2" % (T + 14))
        a("s_mov_b64 exec, 1")
        a("buffer_load_dword v%d, v%d, s[28:31], 0 offen nt" % (T + 15, T + 14))
        a("s_mov_b64 exec, -1")
    if vwarm == 2:
        a("s_cmp_eq_u32 s3, 0")
        a("s_cbranch_scc0 L_novw")
        a("v_and_b32 v%d, 15, v0" % (T + 14))
        a("v_lshlrev_b32 v%d, 13, v%d" % (T + 14, T + 14))
        a("s_mov_b64 exec, 0xffff")
        a("buffer_load_dword v%d, v%d, s[28:31], 0 offen nt" % (T + 15, T + 14))
        a("s_mov_b64 exec, -1")
        a.label("L_novw")
    a("s_lshl_b32 s58, s22, 7")
    a("s_add_u32 s60, s58, 0x%x" % WS_W)
    a("buffer_load_dword v%d, off, s[32:35], s60 %s" % (vNonce, hs))
    if mlwarm:
        a("s_lshl_b32 s58, s51, 6")
        a("s_add_u32 s58, s58, 0x%x" % WS_ML)
        a("buffer_load_dword v%d, off, s[32:35], s58 %s" % (T + 15, hs))
    if early_small:
        a("v_lshlrev_b32 v%d, 1, v3" % vVT)
        a("v_lshl_add_u32 v%d, v2, 5, v%d" % (vVT, vVT))
        a("v_add_u32 v%d, s53, v%d" % (vVT, vVT))
        a("global_load_ushort v%d, v%d, s[12:13]" % (vVT, vVT))
        if owarm:
            a("v_mov_b32 v%d, s52" % (T + 14))
            a("global_load_ushort v%d, v%d, s[16:17]" % (T + 15, T + 14))
    if wswarm:
        a("s_cmp_eq_u32 s3, 2")
        a("s_cbranch_scc0 L_nowsw")
        a("s_mul_i32 s58, s22, %d" % (16 * SSTR))
        a("v_lshlrev_b32 v%d, 9, v1" % (T + 14))
        a("buffer_load_dword v%d, v%d, s[32:35], s58 offen %s" % (T + 15, T + 14, hs))
        a("s_add_u32 s58, s58, 0x%x" % WS_B)
        a("buffer_load_dword v%d, v%d, s[32:35], s58 offen %s" % (T + 15, T + 14, hs))
        a.label("L_nowsw")
    if ibar == 1: a("s_barrier")
    def vloads(i0, i1):
        a("s_add_u32 m0, s55, %d" % (i0 * 1024))
        a("s_mov_b32 s58, 0x%x" % (i0 * 0x2000))
        for i in range(i0, i1):
            a("buffer_load_dwordx4 v%d, s[28:31], s58 offen %s lds" % (VD + (i & 1), ld))
            if i < i1 - 1:
                a("s_add_u32 m0, m0, 1024")
                a("s_add_u32 s58, s58, 0x2000")
    a("v_lshlrev_b32 v%d, 8, v2" % vOoff)
    a("v_lshl_add_u32 v%d, v1, 2, v%d" % (vOoff, vOoff))
    a("v_and_b32 v%d, 1, v4" % (T + 8))
    a("v_lshlrev_b32 v%d, 1, v%d" % (T + 9, T + 8))
    a("v_lshrrev_b32 v%d, 1, v4" % (T + 10))
    a("v_or_b32 v%d, v%d, v%d" % (vHead, T + 9, T + 10))
    if not early_small:
        a("v_lshlrev_b32 v%d, 1, v3" % vVT)
        a("v_lshl_add_u32 v%d, v2, 5, v%d" % (vVT, vVT))
        a("v_add_u32 v%d, s53, v%d" % (vVT, vVT))
    a("v_and_b32 v%d, 1, v2" % (T + 9))
    a("v_lshlrev_b32 v%d, 2, v%d" % (T + 9, T + 9))
    a("v_lshl_add_u32 v%d, v%d, 3, v%d" % (T + 9, T + 8, T + 9))
    a("v_xor_b32 v%d, v3, v%d" % (T + 9, T + 9))
    a("v_lshlrev_b32 v%d, 10, v2" % (T + 10))
    a("v_lshl_add_u32 v%d, v4, 8, v%d" % (T + 10, T + 10))
    a("v_lshl_add_u32 v%d, v%d, 4, v%d" % (VD, T + 9, T + 10))
    a("v_xor_b32 v%d, 2, v%d" % (T + 9, T + 9))
    a("v_lshl_add_u32 v%d, v%d, 4, v%d" % (VD + 1, T + 9, T + 10))
    a("v_lshrrev_b32 v%d, 2, v3" % (T + 9))
    a("v_lshlrev_b32 v%d, 1, v%d" % (T + 10, T + 9))
    a("v_lshl_add_u32 v%d, v%d, 3, v%d" % (T + 10, T + 8, T + 10))
    a("v_bfe_u32 v%d, v3, 1, 1" % (T + 11))
    a("v_lshl_add_u32 v%d, v2, 1, v%d" % (T + 11, T + 11))
    a("v_xor_b32 v%d, v%d, v%d" % (T + 10, T + 10, T + 11))
    a("v_lshlrev_b32 v%d, 4, v%d" % (vTR0, T + 10))
    a("v_and_b32 v%d, 1, v3" % (T + 11))
    a("v_lshl_add_u32 v%d, v%d, 3, v%d" % (vTR0, T + 11, vTR0))
    a("v_lshl_add_u32 v%d, v4, 8, v%d" % (vTR0, vTR0))
    a("v_and_b32 v%d, 1, v%d" % (T + 11, T + 9))
    a("v_lshl_add_u32 v%d, v%d, 10, v%d" % (vTR0, T + 11, vTR0))
    a("v_lshrrev_b32 v%d, 1, v%d" % (T + 11, T + 9))
    a("v_lshl_add_u32 v%d, v%d, 14, v%d" % (vTR0, T + 11, vTR0))
    a("v_add_u32 v%d, 0x10000, v%d" % (vTR1, vTR0))
    a("v_lshlrev_b32 v%d, 6, v4" % vPR)
    a("v_lshl_add_u32 v%d, v3, 4, v%d" % (vPW, vPR))
    a("v_lshl_add_u32 v%d, v%d, 4, v%d" % (vPR, T + 9, vPR))
    a("s_lshr_b32 s36, s3, 2")
    a("s_lshl_b32 s36, s36, 8")
    a("s_and_b32 s37, s3, 3")
    a("s_lshl_b32 s37, s37, 2")
    a("s_add_u32 s36, s36, s37")
    a("v_add_u32 v%d, s36, v%d" % (vPW, vPW))
    a("v_lshrrev_b32 v%d, 3, v1" % (T + 8))
    a("v_and_b32 v%d, 7, v1" % (T + 9))
    a("s_mul_i32 s36, s22, %d" % (16 * SSTR))
    a("s_lshl_b32 s37, s23, 7")
    a("s_add_u32 s36, s36, s37")
    a("v_mul_u32_u24 v%d, %d, v%d" % (vFO, SSTR, T + 8))
    a("v_lshl_add_u32 v%d, v%d, 4, v%d" % (vFO, T + 9, vFO))
    a("v_add_u32 v%d, s36, v%d" % (vFO, vFO))
    a("v_lshrrev_b32 v%d, 2, v%d" % (vFH, T + 9))
    a("s_and_b32 s37, s23, 1")
    a("s_lshl_b32 s37, s37, 1")
    a("v_add_u32 v%d, s37, v%d" % (vFH, vFH))
    a("v_lshlrev_b32 v%d, 6, v%d" % (vFM, T + 8))
    a("v_lshl_add_u32 v%d, v%d, 4, v%d" % (vFM, vFH, vFM))
    a("s_lshl_b32 s37, s22, 10")
    a("s_add_u32 s37, s37, 0x%x" % WS_ML)
    a("v_add_u32 v%d, s37, v%d" % (vFM, vFM))
    a("v_and_b32 v%d, 3, v%d" % (T + 9, T + 9))
    a("v_lshl_add_u32 v%d, v%d, 2, v%d" % (T + 9, T + 9, vHead))
    a("v_lshlrev_b32 v%d, 1, v%d" % (T + 9, T + 9))
    a("v_lshl_add_u32 v%d, v%d, 8, v%d" % (vFA, vFH, T + 9))
    a("s_lshr_b32 s37, s23, 1")
    a("s_lshl_b32 s37, s37, 5")
    a("s_add_u32 s37, s37, s52")
    a("v_add_u32 v%d, s37, v%d" % (vFA, vFA))
    a("s_mov_b32 s38, %d" % (8 * SSTR))
    a("v_and_b32 v%d, 3, v3" % (T + 1))
    a("v_lshlrev_b32 v%d, 14, v2" % (T + 3))
    a("v_lshl_add_u32 v%d, v%d, 10, v%d" % (T + 3, T + 1, T + 3))
    a("v_lshrrev_b32 v%d, 2, v3" % (T + 2))
    a("v_lshl_add_u32 v%d, v%d, 8, v%d" % (T + 3, T + 2, T + 3))
    a("v_xor_b32 v%d, v4, v3" % (T + 2))
    for j in range(4):
        a("v_xor_b32 v%d, %d, v%d" % (KR + j, 4 * j, T + 2))
        a("v_lshl_add_u32 v%d, v%d, 4, v%d" % (KR + j, KR + j, T + 3))
    a("v_lshlrev_b32 v%d, 8, v%d" % (vQr, T + 1))
    a("v_lshl_add_u32 v%d, v4, 4, v%d" % (vQr, vQr))
    if ibar == 2: a("s_barrier")
    for _ in range(vdelay): a("s_nop 15")
    def kwait(t):
        last = 4 * t + 3
        younger = 15 - last
        if qpos > last:
            younger = 15 - (qpos - 1) if False else 15 - max(last, qpos - 1)
            younger = (15 - (qpos - 1))
        return younger + 1 + (1 if mlwarm else 0) + (1 if vwarm in (1, 3) else 0) + ((1 + (1 if owarm else 0)) if early_small else 0)
    for t in range(4):
        a("s_waitcnt vmcnt(%d)" % kwait(t))
        if t == 0: stamp(13)
        kb = K + (t & 1) * 16
        if t == 0:
            for j in range(4):
                a("ds_read_b128 %s, v%d offset:%d" % (vq(Q + 4 * j), vQr, L_Q + j * 64))
        for j in range(4):
            a("ds_read_b128 %s, v%d offset:%d" % (vq(kb + 4 * j), KR + j, L_K + t * 4096))
        for j in range(4):
            a("s_waitcnt lgkmcnt(%d)" % (3 - j))
            a("v_mfma_f32_16x16x32_bf16 %s, %s, %s, %s" % (vq(S + 4 * t), vq(kb + 4 * j), vq(Q + 4 * j), "0" if j == 0 else vq(S + 4 * t)))
    vloads(0, 8)
    stamp(2)
    a("s_cmp_eq_u32 s3, 0")
    a("s_cbranch_scc0 L_notree")
    a("v_mov_b32 v%d, %s" % (T + 8, f32hex(-3.0e38)))
    a("s_cmp_eq_u32 s23, 0")
    a("s_cbranch_scc0 L_tree1")
    for j in range(4):
        a("v_mfma_f32_16x16x32_bf16 %s, %s, %s, %s" % (vq(ST), vq(KT + 4 * j), vq(Q + 4 * j), "0" if j == 0 else vq(ST)))
    a("s_waitcnt lgkmcnt(0)")
    a("s_lshr_b32 s58, s22, 3")
    a("s_lshl_b32 s58, s58, 4")
    a("s_lshr_b32 s58, s62, s58")
    a("s_lshl_b32 s58, s58, 16")
    a("v_mov_b32 v%d, s58" % (T + 8))
    a("v_sub_f32 v%d, 1.0, v%d" % (T + 8, T + 8))
    a("s_mov_b32 s58, %s" % f32hex(-1e9 / SCALE))
    a("s_nop 3")
    a("v_fma_f32 v%d, v%d, s58, v%d" % (T + 8, T + 8, ST))
    a.label("L_tree1")
    a("v_lshlrev_b32 v%d, 2, v3" % (T + 9))
    a("s_mov_b64 exec, 0xf")
    a("ds_write_b32 v%d, v%d offset:%d" % (T + 9, T + 8, L_ST))
    a("s_mov_b64 exec, -1")
    a.label("L_notree")
    a("v_max3_f32 v%d, v%d, v%d, v%d" % (T, S + 0, S + 1, S + 2))
    a("v_max3_f32 v%d, v%d, v%d, v%d" % (T + 1, S + 3, S + 4, S + 5))
    a("v_max3_f32 v%d, v%d, v%d, v%d" % (T + 2, S + 6, S + 7, S + 8))
    a("v_max3_f32 v%d, v%d, v%d, v%d" % (T + 3, S + 9, S + 10, S + 11))
    a("s_nop 4")
    a("v_max3_f32 v%d, v%d, v%d, v%d" % (T, T, S + 12, S + 13))
    a("v_max3_f32 v%d, v%d, v%d, v%d" % (T + 1, T + 1, S + 14, S + 15))
    a("v_max3_f32 v%d, v%d, v%d, v%d" % (T, T, T + 1, T + 2))
    a("v_max_f32 v%d, v%d, v%d" % (T, T, T + 3))
    def xlane(op, r, t):
        a("v_mov_b32 v%d, v%d" % (t, r))
        a("s_nop 1")
        a("v_permlane32_swap_b32 v%d, v%d" % (r, t))
        a("%s v%d, v%d, v%d" % (op, r, r, t))
        a("v_mov_b32 v%d, v%d" % (t, r))
        a("s_nop 1")
        a("v_permlane16_swap_b32 v%d, v%d" % (r, t))
        a("%s v%d, v%d, v%d" % (op, r, r, t))
    xlane("v_max_f32", T, T + 1)
    a("v_and_b32 v%d, 3, v3" % (T + 10))
    a("v_lshlrev_b32 v%d, 5, v%d" % (T + 2, T + 10))
    a("s_lshl_b32 s58, s3, 2")
    a("v_add_u32 v%d, s58, v%d" % (T + 3, T + 2))
    a("v_lshlrev_b32 v%d, 2, v%d" % (T + 10, T + 10))
    a("s_mov_b64 exec, 0xf")
    a("ds_write_b32 v%d, v%d offset:%d" % (T + 3, T, L_M))
    a("s_mov_b64 exec, -1")
    a("s_waitcnt lgkmcnt(0)")
    a("s_barrier")
    stamp(3)
    if not early_small:
        a("global_load_ushort v%d, v%d, s[12:13]" % (vVT, vVT))
        if owarm:
            a("global_load_ushort v%d, v%d, s[16:17]" % (T + 15, vFA))
    if gwarm:
        a("buffer_load_dword v%d, v%d, s[32:35], 0 offen %s" % (T + 15, vFO, hl))
        a("buffer_load_dword v%d, v%d, s[32:35], s38 offen %s" % (T + 15, vFO, hl))
    a("s_mul_i32 s57, s51, %d" % SSTR)
    a("buffer_load_dword v%d, v%d, s[32:35], s57 offen %s" % (T + 15, vOoff, hs))
    vloads(8, 12)
    a("ds_read_b128 %s, v%d offset:%d" % (vq(T + 4), T + 2, L_M))
    a("ds_read_b128 %s, v%d offset:%d" % (vq(K), T + 2, L_M + 16))
    a("ds_read_b32 v%d, v%d offset:%d" % (T + 8, T + 10, L_ST))
    a("s_mov_b32 s63, %s" % f32hex(C))
    a("s_waitcnt vmcnt(%d)" % (13 + (0 if early_small else 1 + (1 if owarm else 0)) + (2 if gwarm else 0)))
    a("v_add_u32 v%d, 1, v%d" % (vNonce, vNonce))
    a("s_nop 0")
    a("v_readfirstlane_b32 s39, v%d" % vNonce)
    a("s_nop 1")
    a("s_and_b32 s47, s39, 0xff")
    a("s_mul_i32 s47, s47, 0x01010100")
    a("s_and_b32 s48, s39, 0x7f7f7f7f")
    a("s_and_b32 s49, s47, 0x7f7f7f7f")
    a("s_add_u32 s48, s48, s49")
    a("s_xor_b32 s47, s47, s39")
    a("s_and_b32 s47, s47, 0x80808080")
    a("s_xor_b32 s50, s48, s47")
    a("v_and_b32 v%d, 3, v3" % (T + 11))
    a("v_lshlrev_b32 v%d, 3, v%d" % (T + 11, T + 11))
    a("v_lshrrev_b32 v%d, v%d, s50" % (vTagO, T + 11))
    a("v_and_b32 v%d, 0xff, v%d" % (vTagO, vTagO))
    a("v_xor_b32 v%d, 0xff, v%d" % (T + 11, vTagO))
    a("v_lshlrev_b32 v%d, 2, v1" % (T + 9))
    a("ds_write_b32 v%d, v%d offset:%d" % (T + 9, T + 11, L_X))
    a("s_waitcnt lgkmcnt(0)")
    a("v_max3_f32 v%d, v%d, v%d, v%d" % (T, T + 4, T + 5, T + 6))
    a("v_max3_f32 v%d, v%d, v%d, v%d" % (T + 1, T + 7, K, K + 1))
    a("v_max3_f32 v%d, v%d, v%d, v%d" % (T, T, K + 2, K + 3))
    a("v_max3_f32 v%d, v%d, v%d, v%d" % (T, T, T + 1, T + 8))
    for r in range(16):
        a("v_sub_f32 v%d, v%d, v%d" % (S + r, S + r, T))
    a("v_sub_f32 v%d, v%d, v%d" % (T + 8, T + 8, T))
    for r in range(16):
        a("v_mul_f32 v%d, s63, v%d" % (S + r, S + r))
    a("v_mul_f32 v%d, s63, v%d" % (T + 8, T + 8))
    for r in range(16):
        a("v_exp_f32 v%d, v%d" % (S + r, S + r))
    a("v_exp_f32 v%d, v%d" % (T + 8, T + 8))
    a("v_mul_f32 v%d, s63, v%d" % (T, T))
    a("v_add_f32 v%d, v%d, v%d" % (T + 1, S + 0, S + 1))
    a("v_add_f32 v%d, v%d, v%d" % (T + 4, S + 2, S + 3))
    for r in range(4, 16, 2):
        a("v_add_f32 v%d, v%d, v%d" % (T + 1, T + 1, S + r))
        a("v_add_f32 v%d, v%d, v%d" % (T + 4, T + 4, S + r + 1))
    a("v_add_f32 v%d, v%d, v%d" % (T + 1, T + 1, T + 4))
    for u in range(2):
        for hq in range(2):
            t = 2 * u + hq
            a("v_cvt_pk_bf16_f32 v%d, v%d, v%d" % (PR + 4 * u + 2 * hq, S + 4 * t, S + 4 * t + 1))
            a("v_cvt_pk_bf16_f32 v%d, v%d, v%d" % (PR + 4 * u + 2 * hq + 1, S + 4 * t + 2, S + 4 * t + 3))
    xlane("v_add_f32", T + 1, T + 4)
    a("s_mov_b64 exec, 0xf")
    a("ds_write_b32 v%d, v%d offset:%d" % (T + 3, T + 1, L_L))
    a("s_cmp_eq_u32 s3, 0")
    a("s_cbranch_scc0 L_nomq")
    a("ds_write_b32 v%d, v%d offset:%d" % (T + 10, T + 8, L_PT))
    a.label("L_nomq")
    a("s_mov_b64 exec, -1")
    a("s_mov_b32 exec_lo, 0x000f000f")
    a("s_mov_b32 exec_hi, 0x000f000f")
    for c in range(8):
        a("ds_write_b32 v%d, v%d offset:%d" % (vPW, PR + c, L_P + c * 512))
    a("s_mov_b64 exec, -1")
    a("s_waitcnt lgkmcnt(0)")
    a("s_barrier")
    a("v_lshlrev_b32 v%d, 2, v4" % (T + 9))
    a("ds_read_b32 v%d, v%d offset:%d" % (vPT, T + 9, L_PT))
    a("s_cmp_eq_u32 s3, 0")
    a("s_cbranch_scc0 L_noml")
    a("ds_read_b128 %s, v%d offset:%d" % (vq(K), T + 2, L_L))
    a("ds_read_b128 %s, v%d offset:%d" % (vq(K + 4), T + 2, L_L + 16))
    a("s_lshl_b32 s61, s51, 6")
    a("s_add_u32 s61, s61, 0x%x" % WS_ML)
    a("s_add_u32 s56, s61, 0x%x" % WS_B)
    a("v_lshlrev_b32 v%d, 4, v3" % (K + 12))
    a("s_waitcnt lgkmcnt(0)")
    a("v_add_f32 v%d, v%d, v%d" % (K, K, K + 1))
    a("v_add_f32 v%d, v%d, v%d" % (K + 2, K + 2, K + 3))
    a("v_add_f32 v%d, v%d, v%d" % (K + 4, K + 4, K + 5))
    a("v_add_f32 v%d, v%d, v%d" % (K + 6, K + 6, K + 7))
    a("v_add_f32 v%d, v%d, v%d" % (K, K, K + 2))
    a("v_add_f32 v%d, v%d, v%d" % (K + 4, K + 4, K + 6))
    a("v_add_f32 v%d, v%d, v%d" % (K, K, K + 4))
    a("v_mov_b32 v%d, v%d" % (K + 8, T))
    a("v_add_f32 v%d, v%d, v%d" % (K + 9, K, T + 8))
    a("v_mov_b32 v%d, v%d" % (K + 10, vNonce))
    a("v_mov_b32 v%d, v%d" % (K + 11, vNonce))
    a("s_mov_b64 exec, 0xf")
    a("buffer_store_dwordx4 %s, v%d, s[32:35], s61 offen" % (vq(K + 8), K + 12))
    a("buffer_store_dwordx4 %s, v%d, s[32:35], s56 offen %s" % (vq(K + 8), K + 12, hs))
    a("s_mov_b64 exec, -1")
    a.label("L_noml")
    vloads(12, 16)
    for c in range(8):
        if c == 5: a("s_waitcnt lgkmcnt(4)")
        for bq in range(2):
            a("ds_read_b128 %s, v%d offset:%d" % (vq(PF + (c * 2 + bq) * 4), vPR, L_P + c * 512 + bq * 256))
    def tr_reads(c, bq, q):
        base = vTR0 if bq == 0 else vTR1
        a("ds_read_b64_tr_b16 %s, v%d offset:%d" % (vq(VF + 4 * q, 2), base, L_K + c * 2048))
        a("ds_read_b64_tr_b16 %s, v%d offset:%d" % (vq(VF + 4 * q + 2, 2), base, L_K + c * 2048 + 32768))
    def pv_mfma(c, bq, q):
        d = D0 if bq == 0 else D1
        a("v_mfma_f32_16x16x32_bf16 %s, %s, %s, %s" % (vq(d), vq(PF + (c * 2 + bq) * 4), vq(VF + 4 * q), "0" if c == 0 else vq(d)))
    def pv_group(chunks):
        blocks = [(c, bq) for c in chunks for bq in range(2)]
        for b0 in range(0, len(blocks), 4):
            batch = blocks[b0:b0 + 4]
            for q, (c, bq) in enumerate(batch): tr_reads(c, bq, q + 4 * ((b0 // 4) & 1))
            for q, (c, bq) in enumerate(batch):
                a("s_waitcnt lgkmcnt(%d)" % (2 * (len(batch) - 1 - q)))
                pv_mfma(c, bq, q + 4 * ((b0 // 4) & 1))
    X0, X1, M0, M1 = 52, 56, 60, 64
    B1, B2, F0, F1, LS, TT = 68, 69, 70, 71, 72, 73
    AC = 76
    a("s_waitcnt vmcnt(%d) lgkmcnt(0)" % (9 + (0 if early_small else 1 + (1 if owarm else 0)) + (2 if gwarm else 0)))
    a("s_barrier")
    pv_group([0, 1, 2, 3])
    a("s_waitcnt vmcnt(4)")
    a("v_lshlrev_b32 v%d, 16, v%d" % (vVT, vVT))
    a("v_mul_f32 v%d, v%d, v%d" % (vPT, vPT, vVT))
    a("s_barrier")
    pv_group([4, 5])
    a("s_waitcnt vmcnt(2)")
    a("s_barrier")
    pv_group([6])
    a("s_add_u32 s59, s57, 0x%x" % WS_B)
    a("s_mov_b32 s58, 0xffffff00")
    a("s_waitcnt vmcnt(0)")
    stamp(4)
    a("s_cmp_eq_u32 s3, %d" % fw)
    a("s_cbranch_scc0 L_nomlphase")
    a("buffer_load_dwordx4 %s, v%d, s[32:35], 0 offen %s" % (vq(M0), vFM, hl))
    a("buffer_load_dwordx4 %s, v%d, s[32:35], 0 offen offset:512 %s" % (vq(M1), vFM, hl))
    a.label("L_nomlphase")
    a("s_barrier")
    stamp(5)
    pv_group([7])
    A = K
    a("v_lshlrev_b32 v%d, 2, v1" % (A + 2))
    a("s_nop 6")
    a("v_add_f32 v%d, v%d, v%d" % (A, D0, D1))
    a("v_add_f32 v%d, v%d, v%d" % (A, A, vPT))
    a("v_and_or_b32 v%d, v%d, s58, v%d" % (A + 1, A, vTagO))
    a("buffer_store_dword v%d, v%d, s[32:35], s57 offen" % (A + 1, vOoff))
    a("s_cmp_eq_u32 s3, %d" % fw)
    a("s_cbranch_scc1 L_final")
    a("buffer_store_dword v%d, v%d, s[32:35], s59 offen %s" % (A + 1, vOoff, hs))
    a("s_cmp_eq_u32 s3, 0")
    a("s_cbranch_scc0 L_pubdone")
    a("s_mov_b32 s54, 0")
    a.label("L_bpoll")
    a("ds_read_b32 v%d, v%d offset:%d" % (A + 3, A + 2, L_X))
    a("s_waitcnt lgkmcnt(0)")
    a("v_xor_b32 v%d, v%d, v%d" % (A + 4, A + 3, vTagO))
    a("v_and_b32 v%d, 0xff, v%d" % (A + 4, A + 4))
    a("v_cmp_ne_u32 vcc, 0, v%d" % (A + 4))
    a("s_cbranch_vccz L_bgo")
    a("s_add_u32 s54, s54, 1")
    a("s_cmp_lt_u32 s54, 0x400000")
    a("s_cbranch_scc1 L_bpoll")
    a.label("L_bgo")
    a("v_add_u32 v%d, %d, v%d" % (A + 5, fw * 256, vOoff))
    a("buffer_store_dword v%d, v%d, s[32:35], s59 offen %s" % (A + 3, A + 5, hs))
    a.label("L_pubdone")
    stamp(6)
    stamp_flush(7)
    a("s_branch L_end")
    a.label("L_final")
    stamp(6)
    a("ds_write_b32 v%d, v%d offset:%d" % (A + 2, A + 1, L_X))
    a("s_and_b32 s40, s50, 0xff")
    a("s_bfe_u32 s41, s50, 0x80008")
    a("s_bfe_u32 s42, s50, 0x80010")
    a("s_lshr_b32 s43, s50, 24")
    a("s_mov_b32 s54, 0")
    if npipe and early0:
        a("buffer_load_dwordx4 %s, v%d, s[32:35], 0 offen %s" % (vq(PF), vFO, hl))
        a("buffer_load_dwordx4 %s, v%d, s[32:35], s38 offen %s" % (vq(PF + 4), vFO, hl))
        a("s_waitcnt vmcnt(3)")
    else:
        a("s_waitcnt vmcnt(1)")
    a("s_branch L_mlchk")
    a.label("L_mlpoll")
    a("buffer_load_dwordx4 %s, v%d, s[32:35], 0 offen %s" % (vq(M0), vFM, hl))
    a("buffer_load_dwordx4 %s, v%d, s[32:35], 0 offen offset:512 %s" % (vq(M1), vFM, hl))
    a("s_waitcnt vmcnt(0)")
    a.label("L_mlchk")
    a("v_xor_b32 v%d, s39, v%d" % (B1, M0 + 2))
    a("v_bitop3_b32 v%d, v%d, s39, v%d bitop3:0xbe" % (B1, M1 + 2, B1))
    a("v_bitop3_b32 v%d, v%d, s39, v%d bitop3:0xbe" % (B1, M0 + 3, B1))
    a("v_bitop3_b32 v%d, v%d, s39, v%d bitop3:0xbe" % (B1, M1 + 3, B1))
    a("v_cmp_ne_u32 vcc, 0, v%d" % B1)
    a("s_cbranch_vccz L_mlok")
    a("s_add_u32 s54, s54, 1")
    a("s_cmp_lt_u32 s54, 0x40000")
    a("s_cbranch_scc0 L_mlok")
    a("s_cmp_lt_u32 s54, %d" % na)
    a("s_cbranch_scc1 L_mlpoll")
    a("v_xor_b32 v%d, 0x%x, v%d" % (vFM, WS_B, vFM))
    a("s_branch L_mlpoll")
    a.label("L_mlok")
    stamp(7)
    Y0, Y1 = 100, 104
    def o_loads2(x0, x1):
        a("buffer_load_dwordx4 %s, v%d, s[32:35], 0 offen %s" % (vq(x0), vFO, hl))
        a("buffer_load_dwordx4 %s, v%d, s[32:35], s38 offen %s" % (vq(x1), vFO, hl))
    def o_check(x0, x1):
        a("v_xor_b32 v%d, s40, v%d" % (B1, x0))
        a("v_xor_b32 v%d, s41, v%d" % (B2, x0 + 1))
        a("v_bitop3_b32 v%d, v%d, s42, v%d bitop3:0xbe" % (B1, x0 + 2, B1))
        a("v_bitop3_b32 v%d, v%d, s43, v%d bitop3:0xbe" % (B2, x0 + 3, B2))
        a("v_bitop3_b32 v%d, v%d, s40, v%d bitop3:0xbe" % (B1, x1, B1))
        a("v_bitop3_b32 v%d, v%d, s41, v%d bitop3:0xbe" % (B2, x1 + 1, B2))
        a("v_bitop3_b32 v%d, v%d, s42, v%d bitop3:0xbe" % (B1, x1 + 2, B1))
        a("v_bitop3_b32 v%d, v%d, s43, v%d bitop3:0xbe" % (B2, x1 + 3, B2))
        a("v_or_b32 v%d, v%d, v%d" % (B1, B1, B2))
        a("v_and_b32 v%d, 0xff, v%d" % (B1, B1))
        a("v_cmp_ne_u32 vcc, 0, v%d" % B1)
    a("v_max_f32 v%d, v%d, v%d" % (F0, M0, M1))
    a("s_mov_b32 s54, 0")
    a("s_nop 0")
    a("v_max_f32_dpp v%d, v%d, v%d row_ror:8 row_mask:0xf bank_mask:0xf" % (F0, F0, F0))
    xlane("v_max_f32", F0, F1)
    a("v_sub_f32 v%d, v%d, v%d" % (F1, M1, F0))
    a("v_sub_f32 v%d, v%d, v%d" % (F0, M0, F0))
    a("v_exp_f32 v%d, v%d" % (F1, F1))
    a("v_exp_f32 v%d, v%d" % (F0, F0))
    issued = [0]
    if npipe and early0:
        issued[0] = 1
        if npipe >= 2:
            o_loads2(PF + 8, PF + 12); issued[0] = 2
    elif npipe:
        o_loads2(PF, PF + 4); issued[0] = 1
    elif xpos == 0: o_loads2(X0, X1)
    a("s_nop 0")
    a("v_mul_f32 v%d, v%d, v%d" % (LS, F1, M1 + 1))
    a("v_fmac_f32 v%d, v%d, v%d" % (LS, F0, M0 + 1))
    a("s_nop 1")
    a("v_add_f32_dpp v%d, v%d, v%d row_ror:8 row_mask:0xf bank_mask:0xf" % (LS, LS, LS))
    if npipe > issued[0] and npipe >= 2:
        k_ = issued[0]
        o_loads2(PF + 8 * k_, PF + 8 * k_ + 4); issued[0] = k_ + 1
    xlane("v_add_f32", LS, TT)
    a("v_rcp_f32 v%d, v%d" % (LS, LS))
    if xpos == 1 and not npipe: o_loads2(X0, X1)
    def final_math(x0, x1):
        for c in range(4):
            a("v_and_b32 v%d, s58, v%d" % (x0 + c, x0 + c))
        for c in range(4):
            a("v_and_b32 v%d, s58, v%d" % (x1 + c, x1 + c))
        for c in range(4):
            a("v_mul_f32 v%d, v%d, v%d" % (AC + c, F0, x0 + c))
        for c in range(4):
            a("v_fmac_f32 v%d, v%d, v%d" % (AC + c, F1, x1 + c))
    if npipe:
        sets = [(PF + 8 * i, PF + 8 * i + 4) for i in range(npipe)]
        for i in range(issued[0], npipe): o_loads2(*sets[i])
        a.label("L_owait")
        for i in range(npipe):
            a("s_waitcnt vmcnt(%d)" % (2 * (npipe - 1)))
            o_check(*sets[i])
            a("s_cbranch_vccz L_ok%d" % i)
            if i == npipe - 1:
                a("s_add_u32 s54, s54, 1")
                a("s_cmp_lt_u32 s54, 0x40000")
                a("s_cbranch_scc0 L_ok%d" % i)
                a("s_cmp_lt_u32 s54, %d" % na)
                a("s_cbranch_scc1 L_otog")
                a("v_xor_b32 v%d, 0x%x, v%d" % (vFO, WS_B, vFO))
                a.label("L_otog")
            o_loads2(*sets[i])
        a("s_branch L_owait")
        for i in range(npipe):
            a.label("L_ok%d" % i)
            stamp(10)
            final_math(*sets[i])
            if i < npipe - 1: a("s_branch L_ook")
    else:
        a.label("L_owait")
        a("s_waitcnt vmcnt(0)")
        o_check(X0, X1)
        a("s_cbranch_vccz L_xok")
        a("s_add_u32 s54, s54, 1")
        a("s_cmp_lt_u32 s54, 0x40000")
        a("s_cbranch_scc0 L_xok")
        a("s_cmp_lt_u32 s54, %d" % na)
        a("s_cbranch_scc1 L_otog")
        a("v_xor_b32 v%d, 0x%x, v%d" % (vFO, WS_B, vFO))
        a.label("L_otog")
        o_loads2(X0, X1)
        a("s_branch L_owait")
        a.label("L_xok")
        stamp(10)
        final_math(X0, X1)
    a.label("L_ook")
    for c in range(4):
        a("v_add_f32_dpp v%d, v%d, v%d row_ror:8 row_mask:0xf bank_mask:0xf" % (AC + c, AC + c, AC + c))
    a("s_nop 0")
    a("v_permlane32_swap_b32 v%d, v%d" % (AC, AC + 1))
    a("v_permlane32_swap_b32 v%d, v%d" % (AC + 2, AC + 3))
    a("v_add_f32 v%d, v%d, v%d" % (AC, AC, AC + 1))
    a("v_add_f32 v%d, v%d, v%d" % (AC + 2, AC + 2, AC + 3))
    a("s_nop 1")
    a("v_permlane16_swap_b32 v%d, v%d" % (AC, AC + 2))
    a("v_add_f32 v%d, v%d, v%d" % (AC, AC, AC + 2))
    a("v_mul_f32 v%d, v%d, v%d" % (AC, AC, LS))
    a("v_cvt_pk_bf16_f32 v%d, v%d, v%d" % (AC, AC, AC))
    a("s_mov_b32 exec_lo, 0x00ff00ff")
    a("s_mov_b32 exec_hi, 0x00ff00ff")
    a("global_store_short v%d, v%d, s[16:17]" % (vFA, AC))
    a("s_cmp_eq_u32 s23, 15")
    a("s_cbranch_scc0 L_now")
    a("s_mov_b64 exec, 1")
    a("buffer_store_dword v%d, off, s[32:35], s60" % vNonce)
    a.label("L_now")
    a("s_mov_b64 exec, -1")
    if stamps:
        stamp(11)
        a("s_waitcnt vmcnt(0)")
    stamp(12)
    if stamps:
        a("s_mov_b32 s82, s54")
        a("s_mov_b32 s83, 0")
    stamp_flush(14)
    a.label("L_end")
    if spin:
        a("s_waitcnt vmcnt(0) lgkmcnt(0)")
        a.label("L_spin")
        a("s_memrealtime s[92:93]")
        a("s_waitcnt lgkmcnt(0)")
        a("s_sub_u32 s94, s92, s90")
        if spinref is not None:
            a("s_sub_u32 s95, s96, s90")
            a("s_sub_u32 s94, s94, s95")
        a("s_cmp_lt_u32 s94, %d" % spin)
        a("s_cbranch_scc1 L_spin")
    a("s_endpgm")
    out = HEADER + "; @launch grid=(256,1,1) block=(512,1,1) lds=%d\n" % LDS
    out += '.amdgcn_target "amdgcn-amd-amdhsa--gfx950"\n.text\n.globl %s_kernel\n.p2align 8\n.type %s_kernel,@function\n%s_kernel:\n' % (NAME, NAME, NAME)
    out += a.text()
    out += """.section .rodata,"a"
.p2align 6
.amdhsa_kernel %s_kernel
  .amdhsa_next_free_vgpr 256
  .amdhsa_next_free_sgpr 100
  .amdhsa_accum_offset 256
  .amdhsa_group_segment_fixed_size 0
  .amdhsa_kernarg_size 72
  .amdhsa_user_sgpr_count 2
  .amdhsa_user_sgpr_kernarg_segment_ptr 1
  .amdhsa_system_sgpr_workgroup_id_x 1
  .amdhsa_float_denorm_mode_32 3
.end_amdhsa_kernel
""" % NAME
    return out

if __name__ == "__main__":
    import argparse
    p = argparse.ArgumentParser()
    p.add_argument("-o", default="cdna_kernels/%s.s" % NAME)
    p.add_argument("--ld", default="nt")
    p.add_argument("--hs", default="sc1")
    p.add_argument("--stamps", action="store_true")
    p.add_argument("--spin", type=int, default=0)
    p.add_argument("--spinref", type=int, default=None)
    p.add_argument("--ibar", type=int, default=1)
    p.add_argument("--vsplit", type=int, default=8)
    p.add_argument("--cons", type=int, default=15)
    p.add_argument("--nonlocal", dest="nonlocal_", action="store_true")
    p.add_argument("--na", type=int, default=8)
    p.add_argument("--swave", type=int, default=0)
    p.add_argument("--skew", type=int, default=0)
    p.add_argument("--qpos", type=int, default=4)
    p.add_argument("--fw", type=int, default=1)
    p.add_argument("--dpoll", type=int, default=0)
    p.add_argument("--xpos", type=int, default=1)
    p.add_argument("--nomlwarm", action="store_true")
    p.add_argument("--hl", default="sc1")
    p.add_argument("--sstr", type=int, default=2048)
    p.add_argument("--nokslim", action="store_true")
    p.add_argument("--vdelay", type=int, default=0)
    p.add_argument("--vwarm", type=int, default=1)
    p.add_argument("--noowarm", action="store_true")
    p.add_argument("--gwarm", action="store_true")
    p.add_argument("--wswarm", action="store_true")
    p.add_argument("--late_small", action="store_true")
    p.add_argument("--npipe", type=int, default=3)
    p.add_argument("--noearly0", action="store_true")
    p.add_argument("--v2a", type=int, default=4)
    x = p.parse_args()
    open(x.o, "w").write(gen(x.ld, x.hs, x.stamps, x.spin, x.spinref, x.ibar, x.vsplit, x.cons, not x.nonlocal_, x.na, x.skew, x.swave, x.qpos, x.fw, x.dpoll, x.xpos, not x.nomlwarm, x.hl, x.v2a, x.sstr, not x.nokslim, x.vdelay, x.vwarm, x.npipe, not x.noearly0, not x.noowarm, x.gwarm, not x.late_small, x.wswarm))
```

```python
import sys, math, struct
NAME = "standalone__tree_speculative_verify_tree_attention_over_candidate_token_tree__decode"
HEADER = """; Kernarg layout for this problem (72 bytes, ptrs only, base s[0:1]):
;
"""
def f32hex(x):
    return "0x%08x" % struct.unpack("<I", struct.pack("<f", x))[0]
class Asm:
    def __init__(self): self.lines = []
    def __call__(self, s): self.lines.append("    " + s)
    def label(self, s): self.lines.append(s + ":")
    def c(self, s): self.lines.append("    ; " + s)
    def text(self): return "\n".join(self.lines) + "\n"
def vq(base, n=4): return "v[%d:%d]" % (base, base + n - 1)

def gen(ld="nt", hs="sc1", stamps=False, spin=0, spinref=None, ibar=1, vsplit=8, cons=15, local=True, na=24,
        skew=0, swave=0, qpos=16, fw=1, dpoll=0, xpos=1, mlwarm=True, hl="sc1", v2a=4, sstr=2048, kslim=True, vdelay=0, vwarm=1, npipe=3, early0=True, owarm=True, gwarm=False, early_small=True, wswarm=False, groups=0):
    a = Asm()
    LOG2E = 1.4426950408889634
    SCALE = 128 ** -0.5
    C = SCALE * LOG2E
    Q, KT, K = 12, 28, 44
    PR = 28
    KD, KR = 76, 80
    VD, vTR0, vTR1, vPW, vPR = 84, 86, 87, 88, 89
    S, ST = 92, 108
    PF = 112
    VF = 176
    D0, D1 = 208, 212
    T = 232
    vQr, vKToff, vVT, vOoff = 7, 8, 9, 10
    vTagO, vHead, vNonce = 248, 250, 251
    vFO, vFM, vFH, vFA = 11, 5, 246, 245
    vPT = 244
    L_M, L_L, L_ST, L_PT, L_Q, L_P, L_K = 0, 128, 256, 288, 512, 1536, 5632
    L_X = L_Q
    LDS = L_K + 8 * 16384
    WS_ML, WS_W, WS_B = 0xa0000, 0xb0000, 0x100000
    SSTR = sstr
    def stamp(i):
        if spinref == i: a("s_memrealtime s[96:97]")
        if stamps: a("s_memrealtime s[%d:%d]" % (64 + 2 * i, 65 + 2 * i))
    nfl = [0]
    def stamp_flush(n):
        if stamps:
            nfl[0] += 1
            a("s_waitcnt lgkmcnt(0)")
            a("s_cmp_eq_u32 s3, %d" % swave)
            a("s_cbranch_scc0 L_nostamp%d" % nfl[0])
            a("s_lshl_b32 s58, s2, 7")
            a("s_add_u32 s58, s58, 0x1000000")
            a("v_mov_b32 v252, s58")
            a("s_mov_b64 exec, 1")
            for i in range(n):
                a("v_mov_b32 v254, s%d" % (64 + 2 * i))
                a("v_mov_b32 v255, s%d" % (65 + 2 * i))
                a("global_store_dwordx2 v252, v[254:255], s[20:21] offset:%d" % (8 * i))
                a("s_nop 1")
            a("s_mov_b64 exec, -1")
            a.label("L_nostamp%d" % nfl[0])
    stamp(0)
    if spin: a("s_memrealtime s[90:91]")
    a("s_load_dwordx16 s[4:19], s[0:1], 0")
    a("s_load_dwordx2 s[20:21], s[0:1], 64")
    a("s_cmp_ge_u32 s2, 256")
    a("s_cbranch_scc1 L_end")
    if skew:
        a("s_mul_i32 s58, s2, 0x9E3779B1")
        a("s_lshr_b32 s58, s58, 29")
        a("s_mul_i32 s58, s58, %d" % skew)
        a("s_memrealtime s[90:91]")
        a("s_waitcnt lgkmcnt(0)")
        a.label("L_skew")
        a("s_memrealtime s[92:93]")
        a("s_waitcnt lgkmcnt(0)")
        a("s_sub_u32 s94, s92, s90")
        a("s_cmp_lt_u32 s94, s58")
        a("s_cbranch_scc1 L_skew")
    a("v_and_b32 v1, 63, v0")
    a("v_lshrrev_b32 v2, 6, v0")
    a("v_and_b32 v3, 15, v0")
    a("v_bfe_u32 v4, v0, 4, 2")
    a("v_readfirstlane_b32 s3, v2")
    if local:
        a("s_and_b32 s22, s2, 15")
        a("s_lshr_b32 s23, s2, 4")
    else:
        a("s_lshr_b32 s22, s2, 4")
        a("s_and_b32 s23, s2, 15")
    a("s_lshl_b32 s51, s22, 4")
    a("s_add_u32 s51, s51, s23")
    a("s_lshl_b32 s54, s51, 17")
    a("v_lshlrev_b32 v%d, 10, v2" % T)
    a("v_lshlrev_b32 v%d, 2, v4" % (T + 2))
    a("v_xor_b32 v%d, v3, v%d" % (T + 2, T + 2))
    a("v_lshl_add_u32 v%d, v4, 8, v%d" % (T + 3, T))
    for r in range(4):
        a("v_xor_b32 v%d, %d, v%d" % (KD + r, r, T + 2))
        a("v_lshl_add_u32 v%d, v%d, 4, v%d" % (KD + r, KD + r, T + 3))
        if kslim and r: a("v_add_u32 v%d, %d, v%d" % (KD + r, r * 7168, KD + r))
    if kslim:
        a("s_mov_b32 s44, 0x8000")
        a("s_mov_b32 s45, 0x10000")
        a("s_mov_b32 s46, 0x18000")
    a("v_lshlrev_b32 v%d, 4, v1" % vQr)
    a("s_mov_b32 s26, 0x20000")
    a("s_mov_b32 s27, 0x00020000")
    a("s_mov_b32 s30, 0x20000")
    a("s_mov_b32 s31, 0x00020000")
    a("s_mov_b32 s34, 0x200000")
    a("s_mov_b32 s35, 0x00020000")
    a("s_mov_b32 s86, 0x400")
    a("s_mov_b32 s87, 0x00020000")
    a("s_lshl_b32 s52, s22, 10")
    a("s_lshl_b32 s53, s22, 8")
    a("s_lshl_b32 s55, s3, 14")
    a("s_add_u32 s55, s55, %d" % L_K)
    a("s_waitcnt lgkmcnt(0)")
    stamp(1)
    a("s_add_u32 s24, s6, s54")
    a("s_addc_u32 s25, s7, 0")
    a("s_and_b32 s25, s25, 0xffff")
    a("s_add_u32 s84, s4, s52")
    a("s_addc_u32 s85, s5, 0")
    a("s_and_b32 s85, s85, 0xffff")
    a("s_or_b32 s56, s3, s23")
    a("s_cmp_eq_u32 s56, 0")
    a("s_cbranch_scc0 L_nokt")
    a("v_lshlrev_b32 v%d, 4, v4" % vKToff)
    a("v_add_u32 v%d, s53, v%d" % (vKToff, vKToff))
    for j in range(4):
        a("global_load_dwordx4 %s, v%d, s[10:11] offset:%d" % (vq(KT + 4 * j), vKToff, j * 64))
    a("s_load_dword s62, s[14:15], 0")
    a.label("L_nokt")
    def qdma():
        a("s_mov_b32 m0, %d" % L_Q)
        a("s_nop 0")
        a("buffer_load_dwordx4 v%d, s[84:87], 0 offen lds" % vQr)
    if kslim:
        assert qpos in (4, 16)
        for t in range(4):
            if t == 1 and qpos == 4: qdma()
            a("s_add_u32 m0, s55, %d" % (t * 4096))
            if t == 0: a("s_nop 0")
            else: a("s_nop 0")
            for r in range(4):
                a("buffer_load_dwordx4 v%d, s[24:27], %s offen offset:%d %s lds" % (KD + r, ["0", "s44", "s45", "s46"][t], r * 1024, ld))
        if qpos == 16: qdma()
    else:
        a("s_mov_b32 s58, 0")
        for i in range(16):
            if i == qpos: qdma()
            if i == 0 or i == qpos:
                a("s_add_u32 m0, s55, %d" % (i * 1024))
                a("s_nop 0")
            a("buffer_load_dwordx4 v%d, s[24:27], s58 offen %s lds" % (KD + (i & 3), ld))
            if i < 15:
                if i + 1 != qpos: a("s_add_u32 m0, m0, 1024")
                a("s_add_u32 s58, s58, 0x2000")
    a("s_add_u32 s28, s8, s54")
    a("s_addc_u32 s29, s9, 0")
    a("s_and_b32 s29, s29, 0xffff")
    a("s_mov_b32 s32, s20")
    a("s_and_b32 s33, s21, 0xffff")
    if vwarm == 1:
        a("buffer_load_dword v%d, off, s[28:31], 0 nt" % (T + 15))
    if vwarm == 3:
        a("v_lshlrev_b32 v%d, 14, v2" % (T + 14))
        a("s_mov_b64 exec, 1")
        a("buffer_load_dword v%d, v%d, s[28:31], 0 offen nt" % (T + 15, T + 14))
        a("s_mov_b64 exec, -1")
    if vwarm == 2:
        a("s_cmp_eq_u32 s3, 0")
        a("s_cbranch_scc0 L_novw")
        a("v_and_b32 v%d, 15, v0" % (T + 14))
        a("v_lshlrev_b32 v%d, 13, v%d" % (T + 14, T + 14))
        a("s_mov_b64 exec, 0xffff")
        a("buffer_load_dword v%d, v%d, s[28:31], 0 offen nt" % (T + 15, T + 14))
        a("s_mov_b64 exec, -1")
        a.label("L_novw")
    a("s_lshl_b32 s58, s22, 7")
    a("s_add_u32 s60, s58, 0x%x" % WS_W)
    a("buffer_load_dword v%d, off, s[32:35], s60 %s" % (vNonce, hs))
    if mlwarm:
        a("s_lshl_b32 s58, s51, 6")
        a("s_add_u32 s58, s58, 0x%x" % WS_ML)
        a("buffer_load_dword v%d, off, s[32:35], s58 %s" % (T + 15, hs))
    if early_small:
        a("v_lshlrev_b32 v%d, 1, v3" % vVT)
        a("v_lshl_add_u32 v%d, v2, 5, v%d" % (vVT, vVT))
        a("v_add_u32 v%d, s53, v%d" % (vVT, vVT))
        a("global_load_ushort v%d, v%d, s[12:13]" % (vVT, vVT))
        if owarm:
            a("v_mov_b32 v%d, s52" % (T + 14))
            a("global_load_ushort v%d, v%d, s[16:17]" % (T + 15, T + 14))
    if wswarm:
        a("s_cmp_eq_u32 s3, 2")
        a("s_cbranch_scc0 L_nowsw")
        a("s_mul_i32 s58, s22, %d" % (16 * SSTR))
        a("v_lshlrev_b32 v%d, 9, v1" % (T + 14))
        a("buffer_load_dword v%d, v%d, s[32:35], s58 offen %s" % (T + 15, T + 14, hs))
        a("s_add_u32 s58, s58, 0x%x" % WS_B)
        a("buffer_load_dword v%d, v%d, s[32:35], s58 offen %s" % (T + 15, T + 14, hs))
        a.label("L_nowsw")
    if ibar == 1: a("s_barrier")
    def vloads(i0, i1):
        a("s_add_u32 m0, s55, %d" % (i0 * 1024))
        a("s_mov_b32 s58, 0x%x" % (i0 * 0x2000))
        for i in range(i0, i1):
            a("buffer_load_dwordx4 v%d, s[28:31], s58 offen %s lds" % (VD + (i & 1), ld))
            if i < i1 - 1:
                a("s_add_u32 m0, m0, 1024")
                a("s_add_u32 s58, s58, 0x2000")
    a("v_lshlrev_b32 v%d, 8, v2" % vOoff)
    a("v_lshl_add_u32 v%d, v1, 2, v%d" % (vOoff, vOoff))
    a("v_and_b32 v%d, 1, v4" % (T + 8))
    a("v_lshlrev_b32 v%d, 1, v%d" % (T + 9, T + 8))
    a("v_lshrrev_b32 v%d, 1, v4" % (T + 10))
    a("v_or_b32 v%d, v%d, v%d" % (vHead, T + 9, T + 10))
    if not early_small:
        a("v_lshlrev_b32 v%d, 1, v3" % vVT)
        a("v_lshl_add_u32 v%d, v2, 5, v%d" % (vVT, vVT))
        a("v_add_u32 v%d, s53, v%d" % (vVT, vVT))
    a("v_and_b32 v%d, 1, v2" % (T + 9))
    a("v_lshlrev_b32 v%d, 2, v%d" % (T + 9, T + 9))
    a("v_lshl_add_u32 v%d, v%d, 3, v%d" % (T + 9, T + 8, T + 9))
    a("v_xor_b32 v%d, v3, v%d" % (T + 9, T + 9))
    a("v_lshlrev_b32 v%d, 10, v2" % (T + 10))
    a("v_lshl_add_u32 v%d, v4, 8, v%d" % (T + 10, T + 10))
    a("v_lshl_add_u32 v%d, v%d, 4, v%d" % (VD, T + 9, T + 10))
    a("v_xor_b32 v%d, 2, v%d" % (T + 9, T + 9))
    a("v_lshl_add_u32 v%d, v%d, 4, v%d" % (VD + 1, T + 9, T + 10))
    a("v_lshrrev_b32 v%d, 2, v3" % (T + 9))
    a("v_lshlrev_b32 v%d, 1, v%d" % (T + 10, T + 9))
    a("v_lshl_add_u32 v%d, v%d, 3, v%d" % (T + 10, T + 8, T + 10))
    a("v_bfe_u32 v%d, v3, 1, 1" % (T + 11))
    a("v_lshl_add_u32 v%d, v2, 1, v%d" % (T + 11, T + 11))
    a("v_xor_b32 v%d, v%d, v%d" % (T + 10, T + 10, T + 11))
    a("v_lshlrev_b32 v%d, 4, v%d" % (vTR0, T + 10))
    a("v_and_b32 v%d, 1, v3" % (T + 11))
    a("v_lshl_add_u32 v%d, v%d, 3, v%d" % (vTR0, T + 11, vTR0))
    a("v_lshl_add_u32 v%d, v4, 8, v%d" % (vTR0, vTR0))
    a("v_and_b32 v%d, 1, v%d" % (T + 11, T + 9))
    a("v_lshl_add_u32 v%d, v%d, 10, v%d" % (vTR0, T + 11, vTR0))
    a("v_lshrrev_b32 v%d, 1, v%d" % (T + 11, T + 9))
    a("v_lshl_add_u32 v%d, v%d, 14, v%d" % (vTR0, T + 11, vTR0))
    a("v_add_u32 v%d, 0x10000, v%d" % (vTR1, vTR0))
    a("v_lshlrev_b32 v%d, 6, v4" % vPR)
    a("v_lshl_add_u32 v%d, v3, 4, v%d" % (vPW, vPR))
    a("v_lshl_add_u32 v%d, v%d, 4, v%d" % (vPR, T + 9, vPR))
    a("s_lshr_b32 s36, s3, 2")
    a("s_lshl_b32 s36, s36, 8")
    a("s_and_b32 s37, s3, 3")
    a("s_lshl_b32 s37, s37, 2")
    a("s_add_u32 s36, s36, s37")
    a("v_add_u32 v%d, s36, v%d" % (vPW, vPW))
    a("v_lshrrev_b32 v%d, 3, v1" % (T + 8))
    a("v_and_b32 v%d, 7, v1" % (T + 9))
    a("s_mul_i32 s36, s22, %d" % (16 * SSTR))
    a("s_lshl_b32 s37, s23, 7")
    a("s_add_u32 s36, s36, s37")
    a("v_mul_u32_u24 v%d, %d, v%d" % (vFO, SSTR, T + 8))
    a("v_lshl_add_u32 v%d, v%d, 4, v%d" % (vFO, T + 9, vFO))
    a("v_add_u32 v%d, s36, v%d" % (vFO, vFO))
    a("v_lshrrev_b32 v%d, 2, v%d" % (vFH, T + 9))
    a("s_and_b32 s37, s23, 1")
    a("s_lshl_b32 s37, s37, 1")
    a("v_add_u32 v%d, s37, v%d" % (vFH, vFH))
    a("v_lshlrev_b32 v%d, 6, v%d" % (vFM, T + 8))
    a("v_lshl_add_u32 v%d, v%d, 4, v%d" % (vFM, vFH, vFM))
    a("s_lshl_b32 s37, s22, 10")
    a("s_add_u32 s37, s37, 0x%x" % WS_ML)
    a("v_add_u32 v%d, s37, v%d" % (vFM, vFM))
    a("v_and_b32 v%d, 3, v%d" % (T + 9, T + 9))
    a("v_lshl_add_u32 v%d, v%d, 2, v%d" % (T + 9, T + 9, vHead))
    a("v_lshlrev_b32 v%d, 1, v%d" % (T + 9, T + 9))
    a("v_lshl_add_u32 v%d, v%d, 8, v%d" % (vFA, vFH, T + 9))
    a("s_lshr_b32 s37, s23, 1")
    a("s_lshl_b32 s37, s37, 5")
    a("s_add_u32 s37, s37, s52")
    a("v_add_u32 v%d, s37, v%d" % (vFA, vFA))
    a("s_mov_b32 s38, %d" % (8 * SSTR))
    a("v_and_b32 v%d, 3, v3" % (T + 1))
    a("v_lshlrev_b32 v%d, 14, v2" % (T + 3))
    a("v_lshl_add_u32 v%d, v%d, 10, v%d" % (T + 3, T + 1, T + 3))
    a("v_lshrrev_b32 v%d, 2, v3" % (T + 2))
    a("v_lshl_add_u32 v%d, v%d, 8, v%d" % (T + 3, T + 2, T + 3))
    a("v_xor_b32 v%d, v4, v3" % (T + 2))
    for j in range(4):
        a("v_xor_b32 v%d, %d, v%d" % (KR + j, 4 * j, T + 2))
        a("v_lshl_add_u32 v%d, v%d, 4, v%d" % (KR + j, KR + j, T + 3))
    a("v_lshlrev_b32 v%d, 8, v%d" % (vQr, T + 1))
    a("v_lshl_add_u32 v%d, v4, 4, v%d" % (vQr, vQr))
    if ibar == 2: a("s_barrier")
    for _ in range(vdelay): a("s_nop 15")
    def kwait(t):
        last = 4 * t + 3
        younger = 15 - last
        if qpos > last:
            younger = 15 - (qpos - 1) if False else 15 - max(last, qpos - 1)
            younger = (15 - (qpos - 1))
        return younger + 1 + (1 if mlwarm else 0) + (1 if vwarm in (1, 3) else 0) + ((1 + (1 if owarm else 0)) if early_small else 0)
    for t in range(4):
        a("s_waitcnt vmcnt(%d)" % kwait(t))
        if t == 0: stamp(13)
        kb = K + (t & 1) * 16
        if t == 0:
            for j in range(4):
                a("ds_read_b128 %s, v%d offset:%d" % (vq(Q + 4 * j), vQr, L_Q + j * 64))
        for j in range(4):
            a("ds_read_b128 %s, v%d offset:%d" % (vq(kb + 4 * j), KR + j, L_K + t * 4096))
        for j in range(4):
            a("s_waitcnt lgkmcnt(%d)" % (3 - j))
            a("v_mfma_f32_16x16x32_bf16 %s, %s, %s, %s" % (vq(S + 4 * t), vq(kb + 4 * j), vq(Q + 4 * j), "0" if j == 0 else vq(S + 4 * t)))
    vloads(0, 8)
    stamp(2)
    a("s_cmp_eq_u32 s3, 0")
    a("s_cbranch_scc0 L_notree")
    a("v_mov_b32 v%d, %s" % (T + 8, f32hex(-3.0e38)))
    a("s_cmp_eq_u32 s23, 0")
    a("s_cbranch_scc0 L_tree1")
    for j in range(4):
        a("v_mfma_f32_16x16x32_bf16 %s, %s, %s, %s" % (vq(ST), vq(KT + 4 * j), vq(Q + 4 * j), "0" if j == 0 else vq(ST)))
    a("s_waitcnt lgkmcnt(0)")
    a("s_lshr_b32 s58, s22, 3")
    a("s_lshl_b32 s58, s58, 4")
    a("s_lshr_b32 s58, s62, s58")
    a("s_lshl_b32 s58, s58, 16")
    a("v_mov_b32 v%d, s58" % (T + 8))
    a("v_sub_f32 v%d, 1.0, v%d" % (T + 8, T + 8))
    a("s_mov_b32 s58, %s" % f32hex(-1e9 / SCALE))
    a("s_nop 3")
    a("v_fma_f32 v%d, v%d, s58, v%d" % (T + 8, T + 8, ST))
    a.label("L_tree1")
    a("v_lshlrev_b32 v%d, 2, v3" % (T + 9))
    a("s_mov_b64 exec, 0xf")
    a("ds_write_b32 v%d, v%d offset:%d" % (T + 9, T + 8, L_ST))
    a("s_mov_b64 exec, -1")
    a.label("L_notree")
    a("v_max3_f32 v%d, v%d, v%d, v%d" % (T, S + 0, S + 1, S + 2))
    a("v_max3_f32 v%d, v%d, v%d, v%d" % (T + 1, S + 3, S + 4, S + 5))
    a("v_max3_f32 v%d, v%d, v%d, v%d" % (T + 2, S + 6, S + 7, S + 8))
    a("v_max3_f32 v%d, v%d, v%d, v%d" % (T + 3, S + 9, S + 10, S + 11))
    a("s_nop 4")
    a("v_max3_f32 v%d, v%d, v%d, v%d" % (T, T, S + 12, S + 13))
    a("v_max3_f32 v%d, v%d, v%d, v%d" % (T + 1, T + 1, S + 14, S + 15))
    a("v_max3_f32 v%d, v%d, v%d, v%d" % (T, T, T + 1, T + 2))
    a("v_max_f32 v%d, v%d, v%d" % (T, T, T + 3))
    def xlane(op, r, t):
        a("v_mov_b32 v%d, v%d" % (t, r))
        a("s_nop 1")
        a("v_permlane32_swap_b32 v%d, v%d" % (r, t))
        a("%s v%d, v%d, v%d" % (op, r, r, t))
        a("v_mov_b32 v%d, v%d" % (t, r))
        a("s_nop 1")
        a("v_permlane16_swap_b32 v%d, v%d" % (r, t))
        a("%s v%d, v%d, v%d" % (op, r, r, t))
    xlane("v_max_f32", T, T + 1)
    a("v_and_b32 v%d, 3, v3" % (T + 10))
    a("v_lshlrev_b32 v%d, 5, v%d" % (T + 2, T + 10))
    a("s_lshl_b32 s58, s3, 2")
    a("v_add_u32 v%d, s58, v%d" % (T + 3, T + 2))
    a("v_lshlrev_b32 v%d, 2, v%d" % (T + 10, T + 10))
    a("s_mov_b64 exec, 0xf")
    a("ds_write_b32 v%d, v%d offset:%d" % (T + 3, T, L_M))
    a("s_mov_b64 exec, -1")
    a("s_waitcnt lgkmcnt(0)")
    a("s_barrier")
    stamp(3)
    if not early_small:
        a("global_load_ushort v%d, v%d, s[12:13]" % (vVT, vVT))
        if owarm:
            a("global_load_ushort v%d, v%d, s[16:17]" % (T + 15, vFA))
    if gwarm:
        a("buffer_load_dword v%d, v%d, s[32:35], 0 offen %s" % (T + 15, vFO, hl))
        a("buffer_load_dword v%d, v%d, s[32:35], s38 offen %s" % (T + 15, vFO, hl))
    a("s_mul_i32 s57, s51, %d" % SSTR)
    a("buffer_load_dword v%d, v%d, s[32:35], s57 offen %s" % (T + 15, vOoff, hs))
    vloads(8, 12)
    a("ds_read_b128 %s, v%d offset:%d" % (vq(T + 4), T + 2, L_M))
    a("ds_read_b128 %s, v%d offset:%d" % (vq(K), T + 2, L_M + 16))
    a("ds_read_b32 v%d, v%d offset:%d" % (T + 8, T + 10, L_ST))
    a("s_mov_b32 s63, %s" % f32hex(C))
    a("s_waitcnt vmcnt(%d)" % (13 + (0 if early_small else 1 + (1 if owarm else 0)) + (2 if gwarm else 0)))
    a("v_add_u32 v%d, 1, v%d" % (vNonce, vNonce))
    a("s_nop 0")
    a("v_readfirstlane_b32 s39, v%d" % vNonce)
    a("s_nop 1")
    a("s_and_b32 s47, s39, 0xff")
    a("s_mul_i32 s47, s47, 0x01010100")
    a("s_and_b32 s48, s39, 0x7f7f7f7f")
    a("s_and_b32 s49, s47, 0x7f7f7f7f")
    a("s_add_u32 s48, s48, s49")
    a("s_xor_b32 s47, s47, s39")
    a("s_and_b32 s47, s47, 0x80808080")
    a("s_xor_b32 s50, s48, s47")
    a("v_and_b32 v%d, 3, v3" % (T + 11))
    a("v_lshlrev_b32 v%d, 3, v%d" % (T + 11, T + 11))
    a("v_lshrrev_b32 v%d, v%d, s50" % (vTagO, T + 11))
    a("v_and_b32 v%d, 0xff, v%d" % (vTagO, vTagO))
    a("v_xor_b32 v%d, 0xff, v%d" % (T + 11, vTagO))
    a("v_lshlrev_b32 v%d, 2, v1" % (T + 9))
    a("ds_write_b32 v%d, v%d offset:%d" % (T + 9, T + 11, L_X))
    a("s_waitcnt lgkmcnt(0)")
    a("v_max3_f32 v%d, v%d, v%d, v%d" % (T, T + 4, T + 5, T + 6))
    a("v_max3_f32 v%d, v%d, v%d, v%d" % (T + 1, T + 7, K, K + 1))
    a("v_max3_f32 v%d, v%d, v%d, v%d" % (T, T, K + 2, K + 3))
    a("v_max3_f32 v%d, v%d, v%d, v%d" % (T, T, T + 1, T + 8))
    for r in range(16):
        a("v_sub_f32 v%d, v%d, v%d" % (S + r, S + r, T))
    a("v_sub_f32 v%d, v%d, v%d" % (T + 8, T + 8, T))
    for r in range(16):
        a("v_mul_f32 v%d, s63, v%d" % (S + r, S + r))
    a("v_mul_f32 v%d, s63, v%d" % (T + 8, T + 8))
    for r in range(16):
        a("v_exp_f32 v%d, v%d" % (S + r, S + r))
    a("v_exp_f32 v%d, v%d" % (T + 8, T + 8))
    a("v_mul_f32 v%d, s63, v%d" % (T, T))
    a("v_add_f32 v%d, v%d, v%d" % (T + 1, S + 0, S + 1))
    a("v_add_f32 v%d, v%d, v%d" % (T + 4, S + 2, S + 3))
    for r in range(4, 16, 2):
        a("v_add_f32 v%d, v%d, v%d" % (T + 1, T + 1, S + r))
        a("v_add_f32 v%d, v%d, v%d" % (T + 4, T + 4, S + r + 1))
    a("v_add_f32 v%d, v%d, v%d" % (T + 1, T + 1, T + 4))
    for u in range(2):
        for hq in range(2):
            t = 2 * u + hq
            a("v_cvt_pk_bf16_f32 v%d, v%d, v%d" % (PR + 4 * u + 2 * hq, S + 4 * t, S + 4 * t + 1))
            a("v_cvt_pk_bf16_f32 v%d, v%d, v%d" % (PR + 4 * u + 2 * hq + 1, S + 4 * t + 2, S + 4 * t + 3))
    xlane("v_add_f32", T + 1, T + 4)
    a("s_mov_b64 exec, 0xf")
    a("ds_write_b32 v%d, v%d offset:%d" % (T + 3, T + 1, L_L))
    a("s_cmp_eq_u32 s3, 0")
    a("s_cbranch_scc0 L_nomq")
    a("ds_write_b32 v%d, v%d offset:%d" % (T + 10, T + 8, L_PT))
    a.label("L_nomq")
    a("s_mov_b64 exec, -1")
    a("s_mov_b32 exec_lo, 0x000f000f")
    a("s_mov_b32 exec_hi, 0x000f000f")
    for c in range(8):
        a("ds_write_b32 v%d, v%d offset:%d" % (vPW, PR + c, L_P + c * 512))
    a("s_mov_b64 exec, -1")
    a("s_waitcnt lgkmcnt(0)")
    a("s_barrier")
    a("v_lshlrev_b32 v%d, 2, v4" % (T + 9))
    a("ds_read_b32 v%d, v%d offset:%d" % (vPT, T + 9, L_PT))
    a("s_cmp_eq_u32 s3, 0")
    a("s_cbranch_scc0 L_noml")
    a("ds_read_b128 %s, v%d offset:%d" % (vq(K), T + 2, L_L))
    a("ds_read_b128 %s, v%d offset:%d" % (vq(K + 4), T + 2, L_L + 16))
    a("s_lshl_b32 s61, s51, 6")
    a("s_add_u32 s61, s61, 0x%x" % WS_ML)
    a("s_add_u32 s56, s61, 0x%x" % WS_B)
    a("v_lshlrev_b32 v%d, 4, v3" % (K + 12))
    a("s_waitcnt lgkmcnt(0)")
    a("v_add_f32 v%d, v%d, v%d" % (K, K, K + 1))
    a("v_add_f32 v%d, v%d, v%d" % (K + 2, K + 2, K + 3))
    a("v_add_f32 v%d, v%d, v%d" % (K + 4, K + 4, K + 5))
    a("v_add_f32 v%d, v%d, v%d" % (K + 6, K + 6, K + 7))
    a("v_add_f32 v%d, v%d, v%d" % (K, K, K + 2))
    a("v_add_f32 v%d, v%d, v%d" % (K + 4, K + 4, K + 6))
    a("v_add_f32 v%d, v%d, v%d" % (K, K, K + 4))
    a("v_mov_b32 v%d, v%d" % (K + 8, T))
    a("v_add_f32 v%d, v%d, v%d" % (K + 9, K, T + 8))
    a("v_mov_b32 v%d, v%d" % (K + 10, vNonce))
    a("v_mov_b32 v%d, v%d" % (K + 11, vNonce))
    a("s_mov_b64 exec, 0xf")
    a("buffer_store_dwordx4 %s, v%d, s[32:35], s61 offen" % (vq(K + 8), K + 12))
    a("buffer_store_dwordx4 %s, v%d, s[32:35], s56 offen %s" % (vq(K + 8), K + 12, hs))
    a("s_mov_b64 exec, -1")
    a.label("L_noml")
    vloads(12, 16)
    for c in range(8):
        if c == 5: a("s_waitcnt lgkmcnt(4)")
        for bq in range(2):
            a("ds_read_b128 %s, v%d offset:%d" % (vq(PF + (c * 2 + bq) * 4), vPR, L_P + c * 512 + bq * 256))
    def tr_reads(c, bq, q):
        base = vTR0 if bq == 0 else vTR1
        a("ds_read_b64_tr_b16 %s, v%d offset:%d" % (vq(VF + 4 * q, 2), base, L_K + c * 2048))
        a("ds_read_b64_tr_b16 %s, v%d offset:%d" % (vq(VF + 4 * q + 2, 2), base, L_K + c * 2048 + 32768))
    def pv_mfma(c, bq, q):
        d = D0 if bq == 0 else D1
        a("v_mfma_f32_16x16x32_bf16 %s, %s, %s, %s" % (vq(d), vq(PF + (c * 2 + bq) * 4), vq(VF + 4 * q), "0" if c == 0 else vq(d)))
    def pv_group(chunks):
        blocks = [(c, bq) for c in chunks for bq in range(2)]
        for b0 in range(0, len(blocks), 4):
            batch = blocks[b0:b0 + 4]
            for q, (c, bq) in enumerate(batch): tr_reads(c, bq, q + 4 * ((b0 // 4) & 1))
            for q, (c, bq) in enumerate(batch):
                a("s_waitcnt lgkmcnt(%d)" % (2 * (len(batch) - 1 - q)))
                pv_mfma(c, bq, q + 4 * ((b0 // 4) & 1))
    X0, X1, M0, M1 = 52, 56, 60, 64
    B1, B2, F0, F1, LS, TT = 68, 69, 70, 71, 72, 73
    AC = 76
    a("s_waitcnt vmcnt(%d) lgkmcnt(0)" % (9 + (0 if early_small else 1 + (1 if owarm else 0)) + (2 if gwarm else 0)))
    a("s_barrier")
    pv_group([0, 1, 2, 3])
    a("s_waitcnt vmcnt(4)")
    a("v_lshlrev_b32 v%d, 16, v%d" % (vVT, vVT))
    a("v_mul_f32 v%d, v%d, v%d" % (vPT, vPT, vVT))
    if groups == 0:
        a("s_barrier")
        pv_group([4, 5])
        a("s_waitcnt vmcnt(2)")
        a("s_barrier")
        pv_group([6])
        last = [7]
    elif groups == 1:
        a("s_barrier")
        pv_group([4, 5])
        last = [6, 7]
    else:
        a("s_waitcnt vmcnt(2)")
        a("s_barrier")
        pv_group([4, 5, 6])
        last = [7]
    a("s_add_u32 s59, s57, 0x%x" % WS_B)
    a("s_mov_b32 s58, 0xffffff00")
    a("s_waitcnt vmcnt(0)")
    stamp(4)
    a("s_cmp_eq_u32 s3, %d" % fw)
    a("s_cbranch_scc0 L_nomlphase")
    a("buffer_load_dwordx4 %s, v%d, s[32:35], 0 offen %s" % (vq(M0), vFM, hl))
    a("buffer_load_dwordx4 %s, v%d, s[32:35], 0 offen offset:512 %s" % (vq(M1), vFM, hl))
    a.label("L_nomlphase")
    a("s_barrier")
    stamp(5)
    pv_group(last)
    A = K
    a("v_lshlrev_b32 v%d, 2, v1" % (A + 2))
    a("s_nop 6")
    a("v_add_f32 v%d, v%d, v%d" % (A, D0, D1))
    a("v_add_f32 v%d, v%d, v%d" % (A, A, vPT))
    a("v_and_or_b32 v%d, v%d, s58, v%d" % (A + 1, A, vTagO))
    a("buffer_store_dword v%d, v%d, s[32:35], s57 offen" % (A + 1, vOoff))
    a("s_cmp_eq_u32 s3, %d" % fw)
    a("s_cbranch_scc1 L_final")
    a("buffer_store_dword v%d, v%d, s[32:35], s59 offen %s" % (A + 1, vOoff, hs))
    a("s_cmp_eq_u32 s3, 0")
    a("s_cbranch_scc0 L_pubdone")
    a("s_mov_b32 s54, 0")
    a.label("L_bpoll")
    a("ds_read_b32 v%d, v%d offset:%d" % (A + 3, A + 2, L_X))
    a("s_waitcnt lgkmcnt(0)")
    a("v_xor_b32 v%d, v%d, v%d" % (A + 4, A + 3, vTagO))
    a("v_and_b32 v%d, 0xff, v%d" % (A + 4, A + 4))
    a("v_cmp_ne_u32 vcc, 0, v%d" % (A + 4))
    a("s_cbranch_vccz L_bgo")
    a("s_add_u32 s54, s54, 1")
    a("s_cmp_lt_u32 s54, 0x400000")
    a("s_cbranch_scc1 L_bpoll")
    a.label("L_bgo")
    a("v_add_u32 v%d, %d, v%d" % (A + 5, fw * 256, vOoff))
    a("buffer_store_dword v%d, v%d, s[32:35], s59 offen %s" % (A + 3, A + 5, hs))
    a.label("L_pubdone")
    stamp(6)
    stamp_flush(7)
    a("s_branch L_end")
    a.label("L_final")
    stamp(6)
    a("ds_write_b32 v%d, v%d offset:%d" % (A + 2, A + 1, L_X))
    a("s_and_b32 s40, s50, 0xff")
    a("s_bfe_u32 s41, s50, 0x80008")
    a("s_bfe_u32 s42, s50, 0x80010")
    a("s_lshr_b32 s43, s50, 24")
    a("s_mov_b32 s54, 0")
    if npipe and early0:
        a("buffer_load_dwordx4 %s, v%d, s[32:35], 0 offen %s" % (vq(PF), vFO, hl))
        a("buffer_load_dwordx4 %s, v%d, s[32:35], s38 offen %s" % (vq(PF + 4), vFO, hl))
        a("s_waitcnt vmcnt(3)")
    else:
        a("s_waitcnt vmcnt(1)")
    a("s_branch L_mlchk")
    a.label("L_mlpoll")
    a("buffer_load_dwordx4 %s, v%d, s[32:35], 0 offen %s" % (vq(M0), vFM, hl))
    a("buffer_load_dwordx4 %s, v%d, s[32:35], 0 offen offset:512 %s" % (vq(M1), vFM, hl))
    a("s_waitcnt vmcnt(0)")
    a.label("L_mlchk")
    a("v_xor_b32 v%d, s39, v%d" % (B1, M0 + 2))
    a("v_bitop3_b32 v%d, v%d, s39, v%d bitop3:0xbe" % (B1, M1 + 2, B1))
    a("v_bitop3_b32 v%d, v%d, s39, v%d bitop3:0xbe" % (B1, M0 + 3, B1))
    a("v_bitop3_b32 v%d, v%d, s39, v%d bitop3:0xbe" % (B1, M1 + 3, B1))
    a("v_cmp_ne_u32 vcc, 0, v%d" % B1)
    a("s_cbranch_vccz L_mlok")
    a("s_add_u32 s54, s54, 1")
    a("s_cmp_lt_u32 s54, 0x40000")
    a("s_cbranch_scc0 L_mlok")
    a("s_cmp_lt_u32 s54, %d" % na)
    a("s_cbranch_scc1 L_mlpoll")
    a("v_xor_b32 v%d, 0x%x, v%d" % (vFM, WS_B, vFM))
    a("s_branch L_mlpoll")
    a.label("L_mlok")
    stamp(7)
    Y0, Y1 = 100, 104
    def o_loads2(x0, x1):
        a("buffer_load_dwordx4 %s, v%d, s[32:35], 0 offen %s" % (vq(x0), vFO, hl))
        a("buffer_load_dwordx4 %s, v%d, s[32:35], s38 offen %s" % (vq(x1), vFO, hl))
    def o_check(x0, x1):
        a("v_xor_b32 v%d, s40, v%d" % (B1, x0))
        a("v_xor_b32 v%d, s41, v%d" % (B2, x0 + 1))
        a("v_bitop3_b32 v%d, v%d, s42, v%d bitop3:0xbe" % (B1, x0 + 2, B1))
        a("v_bitop3_b32 v%d, v%d, s43, v%d bitop3:0xbe" % (B2, x0 + 3, B2))
        a("v_bitop3_b32 v%d, v%d, s40, v%d bitop3:0xbe" % (B1, x1, B1))
        a("v_bitop3_b32 v%d, v%d, s41, v%d bitop3:0xbe" % (B2, x1 + 1, B2))
        a("v_bitop3_b32 v%d, v%d, s42, v%d bitop3:0xbe" % (B1, x1 + 2, B1))
        a("v_bitop3_b32 v%d, v%d, s43, v%d bitop3:0xbe" % (B2, x1 + 3, B2))
        a("v_or_b32 v%d, v%d, v%d" % (B1, B1, B2))
        a("v_and_b32 v%d, 0xff, v%d" % (B1, B1))
        a("v_cmp_ne_u32 vcc, 0, v%d" % B1)
    a("v_max_f32 v%d, v%d, v%d" % (F0, M0, M1))
    a("s_mov_b32 s54, 0")
    a("s_nop 0")
    a("v_max_f32_dpp v%d, v%d, v%d row_ror:8 row_mask:0xf bank_mask:0xf" % (F0, F0, F0))
    xlane("v_max_f32", F0, F1)
    a("v_sub_f32 v%d, v%d, v%d" % (F1, M1, F0))
    a("v_sub_f32 v%d, v%d, v%d" % (F0, M0, F0))
    a("v_exp_f32 v%d, v%d" % (F1, F1))
    a("v_exp_f32 v%d, v%d" % (F0, F0))
    issued = [0]
    if npipe and early0:
        issued[0] = 1
        if npipe >= 2:
            o_loads2(PF + 8, PF + 12); issued[0] = 2
    elif npipe:
        o_loads2(PF, PF + 4); issued[0] = 1
    elif xpos == 0: o_loads2(X0, X1)
    a("s_nop 0")
    a("v_mul_f32 v%d, v%d, v%d" % (LS, F1, M1 + 1))
    a("v_fmac_f32 v%d, v%d, v%d" % (LS, F0, M0 + 1))
    a("s_nop 1")
    a("v_add_f32_dpp v%d, v%d, v%d row_ror:8 row_mask:0xf bank_mask:0xf" % (LS, LS, LS))
    if npipe > issued[0] and npipe >= 2:
        k_ = issued[0]
        o_loads2(PF + 8 * k_, PF + 8 * k_ + 4); issued[0] = k_ + 1
    xlane("v_add_f32", LS, TT)
    a("v_rcp_f32 v%d, v%d" % (LS, LS))
    if xpos == 1 and not npipe: o_loads2(X0, X1)
    def final_math(x0, x1):
        for c in range(4):
            a("v_and_b32 v%d, s58, v%d" % (x0 + c, x0 + c))
        for c in range(4):
            a("v_and_b32 v%d, s58, v%d" % (x1 + c, x1 + c))
        for c in range(4):
            a("v_mul_f32 v%d, v%d, v%d" % (AC + c, F0, x0 + c))
        for c in range(4):
            a("v_fmac_f32 v%d, v%d, v%d" % (AC + c, F1, x1 + c))
    if npipe:
        sets = [(PF + 8 * i, PF + 8 * i + 4) for i in range(npipe)]
        for i in range(issued[0], npipe): o_loads2(*sets[i])
        a.label("L_owait")
        for i in range(npipe):
            a("s_waitcnt vmcnt(%d)" % (2 * (npipe - 1)))
            o_check(*sets[i])
            a("s_cbranch_vccz L_ok%d" % i)
            if i == npipe - 1:
                a("s_add_u32 s54, s54, 1")
                a("s_cmp_lt_u32 s54, 0x40000")
                a("s_cbranch_scc0 L_ok%d" % i)
                a("s_cmp_lt_u32 s54, %d" % na)
                a("s_cbranch_scc1 L_otog")
                a("v_xor_b32 v%d, 0x%x, v%d" % (vFO, WS_B, vFO))
                a.label("L_otog")
            o_loads2(*sets[i])
        a("s_branch L_owait")
        for i in range(npipe):
            a.label("L_ok%d" % i)
            stamp(10)
            final_math(*sets[i])
            if i < npipe - 1: a("s_branch L_ook")
    else:
        a.label("L_owait")
        a("s_waitcnt vmcnt(0)")
        o_check(X0, X1)
        a("s_cbranch_vccz L_xok")
        a("s_add_u32 s54, s54, 1")
        a("s_cmp_lt_u32 s54, 0x40000")
        a("s_cbranch_scc0 L_xok")
        a("s_cmp_lt_u32 s54, %d" % na)
        a("s_cbranch_scc1 L_otog")
        a("v_xor_b32 v%d, 0x%x, v%d" % (vFO, WS_B, vFO))
        a.label("L_otog")
        o_loads2(X0, X1)
        a("s_branch L_owait")
        a.label("L_xok")
        stamp(10)
        final_math(X0, X1)
    a.label("L_ook")
    for c in range(4):
        a("v_add_f32_dpp v%d, v%d, v%d row_ror:8 row_mask:0xf bank_mask:0xf" % (AC + c, AC + c, AC + c))
    a("s_nop 0")
    a("v_permlane32_swap_b32 v%d, v%d" % (AC, AC + 1))
    a("v_permlane32_swap_b32 v%d, v%d" % (AC + 2, AC + 3))
    a("v_add_f32 v%d, v%d, v%d" % (AC, AC, AC + 1))
    a("v_add_f32 v%d, v%d, v%d" % (AC + 2, AC + 2, AC + 3))
    a("s_nop 1")
    a("v_permlane16_swap_b32 v%d, v%d" % (AC, AC + 2))
    a("v_add_f32 v%d, v%d, v%d" % (AC, AC, AC + 2))
    a("v_mul_f32 v%d, v%d, v%d" % (AC, AC, LS))
    a("v_cvt_pk_bf16_f32 v%d, v%d, v%d" % (AC, AC, AC))
    a("s_mov_b32 exec_lo, 0x00ff00ff")
    a("s_mov_b32 exec_hi, 0x00ff00ff")
    a("global_store_short v%d, v%d, s[16:17]" % (vFA, AC))
    a("s_cmp_eq_u32 s23, 15")
    a("s_cbranch_scc0 L_now")
    a("s_mov_b64 exec, 1")
    a("buffer_store_dword v%d, off, s[32:35], s60" % vNonce)
    a.label("L_now")
    a("s_mov_b64 exec, -1")
    if stamps:
        stamp(11)
        a("s_waitcnt vmcnt(0)")
    stamp(12)
    if stamps:
        a("s_mov_b32 s82, s54")
        a("s_mov_b32 s83, 0")
    stamp_flush(14)
    a.label("L_end")
    if spin:
        a("s_waitcnt vmcnt(0) lgkmcnt(0)")
        a.label("L_spin")
        a("s_memrealtime s[92:93]")
        a("s_waitcnt lgkmcnt(0)")
        a("s_sub_u32 s94, s92, s90")
        if spinref is not None:
            a("s_sub_u32 s95, s96, s90")
            a("s_sub_u32 s94, s94, s95")
        a("s_cmp_lt_u32 s94, %d" % spin)
        a("s_cbranch_scc1 L_spin")
    a("s_endpgm")
    out = HEADER + "; @launch grid=(256,1,1) block=(512,1,1) lds=%d\n" % LDS
    out += '.amdgcn_target "amdgcn-amd-amdhsa--gfx950"\n.text\n.globl %s_kernel\n.p2align 8\n.type %s_kernel,@function\n%s_kernel:\n' % (NAME, NAME, NAME)
    out += a.text()
    out += """.section .rodata,"a"
.p2align 6
.amdhsa_kernel %s_kernel
  .amdhsa_next_free_vgpr 256
  .amdhsa_next_free_sgpr 100
  .amdhsa_accum_offset 256
  .amdhsa_group_segment_fixed_size 0
  .amdhsa_kernarg_size 72
  .amdhsa_user_sgpr_count 2
  .amdhsa_user_sgpr_kernarg_segment_ptr 1
  .amdhsa_system_sgpr_workgroup_id_x 1
  .amdhsa_float_denorm_mode_32 3
.end_amdhsa_kernel
""" % NAME
    return out

if __name__ == "__main__":
    import argparse
    p = argparse.ArgumentParser()
    p.add_argument("-o", default="cdna_kernels/%s.s" % NAME)
    p.add_argument("--ld", default="nt")
    p.add_argument("--hs", default="sc1")
    p.add_argument("--stamps", action="store_true")
    p.add_argument("--spin", type=int, default=0)
    p.add_argument("--spinref", type=int, default=None)
    p.add_argument("--ibar", type=int, default=1)
    p.add_argument("--vsplit", type=int, default=8)
    p.add_argument("--cons", type=int, default=15)
    p.add_argument("--nonlocal", dest="nonlocal_", action="store_true")
    p.add_argument("--na", type=int, default=24)
    p.add_argument("--swave", type=int, default=0)
    p.add_argument("--skew", type=int, default=0)
    p.add_argument("--qpos", type=int, default=16)
    p.add_argument("--fw", type=int, default=1)
    p.add_argument("--dpoll", type=int, default=0)
    p.add_argument("--xpos", type=int, default=1)
    p.add_argument("--nomlwarm", action="store_true")
    p.add_argument("--hl", default="sc1")
    p.add_argument("--sstr", type=int, default=2048)
    p.add_argument("--nokslim", action="store_true")
    p.add_argument("--vdelay", type=int, default=0)
    p.add_argument("--vwarm", type=int, default=1)
    p.add_argument("--noowarm", action="store_true")
    p.add_argument("--gwarm", action="store_true")
    p.add_argument("--wswarm", action="store_true")
    p.add_argument("--groups", type=int, default=0)
    p.add_argument("--late_small", action="store_true")
    p.add_argument("--npipe", type=int, default=3)
    p.add_argument("--noearly0", action="store_true")
    p.add_argument("--v2a", type=int, default=4)
    x = p.parse_args()
    open(x.o, "w").write(gen(x.ld, x.hs, x.stamps, x.spin, x.spinref, x.ibar, x.vsplit, x.cons, not x.nonlocal_, x.na, x.skew, x.swave, x.qpos, x.fw, x.dpoll, x.xpos, not x.nomlwarm, x.hl, x.v2a, x.sstr, not x.nokslim, x.vdelay, x.vwarm, x.npipe, not x.noearly0, not x.noowarm, x.gwarm, not x.late_small, x.wswarm, x.groups))
```

```python
import sys, math, struct
NAME = "standalone__tree_speculative_verify_tree_attention_over_candidate_token_tree__decode"
HEADER = """; Kernarg layout for this problem (72 bytes, ptrs only, base s[0:1]):
;
"""
def f32hex(x):
    return "0x%08x" % struct.unpack("<I", struct.pack("<f", x))[0]
class Asm:
    def __init__(self): self.lines = []
    def __call__(self, s): self.lines.append("    " + s)
    def label(self, s): self.lines.append(s + ":")
    def c(self, s): self.lines.append("    ; " + s)
    def text(self): return "\n".join(self.lines) + "\n"
def vq(base, n=4): return "v[%d:%d]" % (base, base + n - 1)

def gen(ld="nt", hs="sc1", stamps=False, spin=0, spinref=None, ibar=1, vsplit=8, cons=15, local=True, na=24,
        skew=0, swave=0, qpos=16, fw=1, dpoll=0, xpos=1, mlwarm=True, hl="sc1", v2a=4, sstr=2048, kslim=True, vdelay=0, vwarm=1, npipe=3, early0=True, owarm=True, gwarm=False, early_small=True, wswarm=False, groups=0, wslate=True, swarm=False):
    a = Asm()
    LOG2E = 1.4426950408889634
    SCALE = 128 ** -0.5
    C = SCALE * LOG2E
    Q, KT, K = 12, 28, 44
    PR = 28
    KD, KR = 76, 80
    VD, vTR0, vTR1, vPW, vPR = 84, 86, 87, 88, 89
    S, ST = 92, 108
    PF = 112
    VF = 176
    D0, D1 = 208, 212
    T = 232
    vQr, vKToff, vVT, vOoff = 7, 8, 9, 10
    vTagO, vHead, vNonce = 248, 250, 251
    vFO, vFM, vFH, vFA = 11, 5, 246, 245
    vPT = 244
    L_M, L_L, L_ST, L_PT, L_Q, L_P, L_K = 0, 128, 256, 288, 512, 1536, 5632
    L_X = L_Q
    LDS = L_K + 8 * 16384
    WS_ML, WS_W, WS_B = 0xa0000, 0xb0000, 0x100000
    SSTR = sstr
    def stamp(i):
        if spinref == i: a("s_memrealtime s[96:97]")
        if stamps: a("s_memrealtime s[%d:%d]" % (64 + 2 * i, 65 + 2 * i))
    nfl = [0]
    def stamp_flush(n):
        if stamps:
            nfl[0] += 1
            a("s_waitcnt lgkmcnt(0)")
            a("s_cmp_eq_u32 s3, %d" % swave)
            a("s_cbranch_scc0 L_nostamp%d" % nfl[0])
            a("s_lshl_b32 s58, s2, 7")
            a("s_add_u32 s58, s58, 0x1000000")
            a("v_mov_b32 v252, s58")
            a("s_mov_b64 exec, 1")
            for i in range(n):
                a("v_mov_b32 v254, s%d" % (64 + 2 * i))
                a("v_mov_b32 v255, s%d" % (65 + 2 * i))
                a("global_store_dwordx2 v252, v[254:255], s[20:21] offset:%d" % (8 * i))
                a("s_nop 1")
            a("s_mov_b64 exec, -1")
            a.label("L_nostamp%d" % nfl[0])
    stamp(0)
    if spin: a("s_memrealtime s[90:91]")
    a("s_load_dwordx16 s[4:19], s[0:1], 0")
    if not wslate: a("s_load_dwordx2 s[20:21], s[0:1], 64")
    a("s_cmp_ge_u32 s2, 256")
    a("s_cbranch_scc1 L_end")
    if skew:
        a("s_mul_i32 s58, s2, 0x9E3779B1")
        a("s_lshr_b32 s58, s58, 29")
        a("s_mul_i32 s58, s58, %d" % skew)
        a("s_memrealtime s[90:91]")
        a("s_waitcnt lgkmcnt(0)")
        a.label("L_skew")
        a("s_memrealtime s[92:93]")
        a("s_waitcnt lgkmcnt(0)")
        a("s_sub_u32 s94, s92, s90")
        a("s_cmp_lt_u32 s94, s58")
        a("s_cbranch_scc1 L_skew")
    a("v_and_b32 v1, 63, v0")
    a("v_lshrrev_b32 v2, 6, v0")
    a("v_and_b32 v3, 15, v0")
    a("v_bfe_u32 v4, v0, 4, 2")
    a("v_readfirstlane_b32 s3, v2")
    if local:
        a("s_and_b32 s22, s2, 15")
        a("s_lshr_b32 s23, s2, 4")
    else:
        a("s_lshr_b32 s22, s2, 4")
        a("s_and_b32 s23, s2, 15")
    a("s_lshl_b32 s51, s22, 4")
    a("s_add_u32 s51, s51, s23")
    a("s_lshl_b32 s54, s51, 17")
    a("v_lshlrev_b32 v%d, 10, v2" % T)
    a("v_lshlrev_b32 v%d, 2, v4" % (T + 2))
    a("v_xor_b32 v%d, v3, v%d" % (T + 2, T + 2))
    a("v_lshl_add_u32 v%d, v4, 8, v%d" % (T + 3, T))
    for r in range(4):
        a("v_xor_b32 v%d, %d, v%d" % (KD + r, r, T + 2))
        a("v_lshl_add_u32 v%d, v%d, 4, v%d" % (KD + r, KD + r, T + 3))
        if kslim and r: a("v_add_u32 v%d, %d, v%d" % (KD + r, r * 7168, KD + r))
    if kslim:
        a("s_mov_b32 s44, 0x8000")
        a("s_mov_b32 s45, 0x10000")
        a("s_mov_b32 s46, 0x18000")
    a("v_lshlrev_b32 v%d, 4, v1" % vQr)
    a("s_mov_b32 s26, 0x20000")
    a("s_mov_b32 s27, 0x00020000")
    a("s_mov_b32 s30, 0x20000")
    a("s_mov_b32 s31, 0x00020000")
    a("s_mov_b32 s34, 0x200000")
    a("s_mov_b32 s35, 0x00020000")
    a("s_mov_b32 s86, 0x400")
    a("s_mov_b32 s87, 0x00020000")
    a("s_lshl_b32 s52, s22, 10")
    a("s_lshl_b32 s53, s22, 8")
    a("s_lshl_b32 s55, s3, 14")
    a("s_add_u32 s55, s55, %d" % L_K)
    a("s_waitcnt lgkmcnt(0)")
    stamp(1)
    if wslate: a("s_load_dwordx2 s[20:21], s[0:1], 64")
    a("s_add_u32 s24, s6, s54")
    a("s_addc_u32 s25, s7, 0")
    a("s_and_b32 s25, s25, 0xffff")
    a("s_add_u32 s84, s4, s52")
    a("s_addc_u32 s85, s5, 0")
    a("s_and_b32 s85, s85, 0xffff")
    def kt_block():
        a("s_or_b32 s56, s3, s23")
        a("s_cmp_eq_u32 s56, 0")
        a("s_cbranch_scc0 L_nokt")
        a("v_lshlrev_b32 v%d, 4, v4" % vKToff)
        a("v_add_u32 v%d, s53, v%d" % (vKToff, vKToff))
        for j in range(4):
            a("global_load_dwordx4 %s, v%d, s[10:11] offset:%d" % (vq(KT + 4 * j), vKToff, j * 64))
        a("s_load_dword s62, s[14:15], 0")
        a.label("L_nokt")
    if swarm:
        a("s_add_u32 s28, s8, s54")
        a("s_addc_u32 s29, s9, 0")
        a("s_and_b32 s29, s29, 0xffff")
        a("s_cmp_eq_u32 s3, 0")
        a("s_cbranch_scc0 L_nosw")
        a("s_load_dword s88, s[84:85], 0")
        a("s_load_dword s88, s[28:29], 0")
        a("s_load_dword s88, s[12:13], 0")
        a("s_load_dword s88, s[16:17], 0")
        a("s_load_dword s88, s[10:11], 0")
        a.label("L_nosw")
    else:
        kt_block()
    def qdma():
        a("s_mov_b32 m0, %d" % L_Q)
        a("s_nop 0")
        a("buffer_load_dwordx4 v%d, s[84:87], 0 offen lds" % vQr)
    if kslim:
        assert qpos in (4, 16)
        for t in range(4):
            if t == 1 and qpos == 4: qdma()
            a("s_add_u32 m0, s55, %d" % (t * 4096))
            if t == 0: a("s_nop 0")
            else: a("s_nop 0")
            for r in range(4):
                a("buffer_load_dwordx4 v%d, s[24:27], %s offen offset:%d %s lds" % (KD + r, ["0", "s44", "s45", "s46"][t], r * 1024, ld))
        if qpos == 16: qdma()
    else:
        a("s_mov_b32 s58, 0")
        for i in range(16):
            if i == qpos: qdma()
            if i == 0 or i == qpos:
                a("s_add_u32 m0, s55, %d" % (i * 1024))
                a("s_nop 0")
            a("buffer_load_dwordx4 v%d, s[24:27], s58 offen %s lds" % (KD + (i & 3), ld))
            if i < 15:
                if i + 1 != qpos: a("s_add_u32 m0, m0, 1024")
                a("s_add_u32 s58, s58, 0x2000")
    if swarm:
        kt_block()
    else:
        a("s_add_u32 s28, s8, s54")
        a("s_addc_u32 s29, s9, 0")
        a("s_and_b32 s29, s29, 0xffff")
    if wslate: a("s_waitcnt lgkmcnt(0)")
    a("s_mov_b32 s32, s20")
    a("s_and_b32 s33, s21, 0xffff")
    if swarm:
        a("s_cmp_eq_u32 s3, 0")
        a("s_cbranch_scc0 L_nosw2")
        a("s_load_dword s88, s[20:21], 0")
        a.label("L_nosw2")
        if ibar == 1: a("s_barrier")
    if vwarm == 1:
        a("buffer_load_dword v%d, off, s[28:31], 0 nt" % (T + 15))
    if vwarm == 3:
        a("v_lshlrev_b32 v%d, 14, v2" % (T + 14))
        a("s_mov_b64 exec, 1")
        a("buffer_load_dword v%d, v%d, s[28:31], 0 offen nt" % (T + 15, T + 14))
        a("s_mov_b64 exec, -1")
    if vwarm == 2:
        a("s_cmp_eq_u32 s3, 0")
        a("s_cbranch_scc0 L_novw")
        a("v_and_b32 v%d, 15, v0" % (T + 14))
        a("v_lshlrev_b32 v%d, 13, v%d" % (T + 14, T + 14))
        a("s_mov_b64 exec, 0xffff")
        a("buffer_load_dword v%d, v%d, s[28:31], 0 offen nt" % (T + 15, T + 14))
        a("s_mov_b64 exec, -1")
        a.label("L_novw")
    a("s_lshl_b32 s58, s22, 7")
    a("s_add_u32 s60, s58, 0x%x" % WS_W)
    a("buffer_load_dword v%d, off, s[32:35], s60 %s" % (vNonce, hs))
    if mlwarm:
        a("s_lshl_b32 s58, s51, 6")
        a("s_add_u32 s58, s58, 0x%x" % WS_ML)
        a("buffer_load_dword v%d, off, s[32:35], s58 %s" % (T + 15, hs))
    if early_small:
        a("v_lshlrev_b32 v%d, 1, v3" % vVT)
        a("v_lshl_add_u32 v%d, v2, 5, v%d" % (vVT, vVT))
        a("v_add_u32 v%d, s53, v%d" % (vVT, vVT))
        a("global_load_ushort v%d, v%d, s[12:13]" % (vVT, vVT))
        if owarm:
            a("v_mov_b32 v%d, s52" % (T + 14))
            a("global_load_ushort v%d, v%d, s[16:17]" % (T + 15, T + 14))
    if wswarm:
        a("s_cmp_eq_u32 s3, 2")
        a("s_cbranch_scc0 L_nowsw")
        a("s_mul_i32 s58, s22, %d" % (16 * SSTR))
        a("v_lshlrev_b32 v%d, 9, v1" % (T + 14))
        a("buffer_load_dword v%d, v%d, s[32:35], s58 offen %s" % (T + 15, T + 14, hs))
        a("s_add_u32 s58, s58, 0x%x" % WS_B)
        a("buffer_load_dword v%d, v%d, s[32:35], s58 offen %s" % (T + 15, T + 14, hs))
        a.label("L_nowsw")
    if ibar == 1 and not swarm: a("s_barrier")
    def vloads(i0, i1):
        a("s_add_u32 m0, s55, %d" % (i0 * 1024))
        a("s_mov_b32 s58, 0x%x" % (i0 * 0x2000))
        for i in range(i0, i1):
            a("buffer_load_dwordx4 v%d, s[28:31], s58 offen %s lds" % (VD + (i & 1), ld))
            if i < i1 - 1:
                a("s_add_u32 m0, m0, 1024")
                a("s_add_u32 s58, s58, 0x2000")
    a("v_lshlrev_b32 v%d, 8, v2" % vOoff)
    a("v_lshl_add_u32 v%d, v1, 2, v%d" % (vOoff, vOoff))
    a("v_and_b32 v%d, 1, v4" % (T + 8))
    a("v_lshlrev_b32 v%d, 1, v%d" % (T + 9, T + 8))
    a("v_lshrrev_b32 v%d, 1, v4" % (T + 10))
    a("v_or_b32 v%d, v%d, v%d" % (vHead, T + 9, T + 10))
    if not early_small:
        a("v_lshlrev_b32 v%d, 1, v3" % vVT)
        a("v_lshl_add_u32 v%d, v2, 5, v%d" % (vVT, vVT))
        a("v_add_u32 v%d, s53, v%d" % (vVT, vVT))
    a("v_and_b32 v%d, 1, v2" % (T + 9))
    a("v_lshlrev_b32 v%d, 2, v%d" % (T + 9, T + 9))
    a("v_lshl_add_u32 v%d, v%d, 3, v%d" % (T + 9, T + 8, T + 9))
    a("v_xor_b32 v%d, v3, v%d" % (T + 9, T + 9))
    a("v_lshlrev_b32 v%d, 10, v2" % (T + 10))
    a("v_lshl_add_u32 v%d, v4, 8, v%d" % (T + 10, T + 10))
    a("v_lshl_add_u32 v%d, v%d, 4, v%d" % (VD, T + 9, T + 10))
    a("v_xor_b32 v%d, 2, v%d" % (T + 9, T + 9))
    a("v_lshl_add_u32 v%d, v%d, 4, v%d" % (VD + 1, T + 9, T + 10))
    a("v_lshrrev_b32 v%d, 2, v3" % (T + 9))
    a("v_lshlrev_b32 v%d, 1, v%d" % (T + 10, T + 9))
    a("v_lshl_add_u32 v%d, v%d, 3, v%d" % (T + 10, T + 8, T + 10))
    a("v_bfe_u32 v%d, v3, 1, 1" % (T + 11))
    a("v_lshl_add_u32 v%d, v2, 1, v%d" % (T + 11, T + 11))
    a("v_xor_b32 v%d, v%d, v%d" % (T + 10, T + 10, T + 11))
    a("v_lshlrev_b32 v%d, 4, v%d" % (vTR0, T + 10))
    a("v_and_b32 v%d, 1, v3" % (T + 11))
    a("v_lshl_add_u32 v%d, v%d, 3, v%d" % (vTR0, T + 11, vTR0))
    a("v_lshl_add_u32 v%d, v4, 8, v%d" % (vTR0, vTR0))
    a("v_and_b32 v%d, 1, v%d" % (T + 11, T + 9))
    a("v_lshl_add_u32 v%d, v%d, 10, v%d" % (vTR0, T + 11, vTR0))
    a("v_lshrrev_b32 v%d, 1, v%d" % (T + 11, T + 9))
    a("v_lshl_add_u32 v%d, v%d, 14, v%d" % (vTR0, T + 11, vTR0))
    a("v_add_u32 v%d, 0x10000, v%d" % (vTR1, vTR0))
    a("v_lshlrev_b32 v%d, 6, v4" % vPR)
    a("v_lshl_add_u32 v%d, v3, 4, v%d" % (vPW, vPR))
    a("v_lshl_add_u32 v%d, v%d, 4, v%d" % (vPR, T + 9, vPR))
    a("s_lshr_b32 s36, s3, 2")
    a("s_lshl_b32 s36, s36, 8")
    a("s_and_b32 s37, s3, 3")
    a("s_lshl_b32 s37, s37, 2")
    a("s_add_u32 s36, s36, s37")
    a("v_add_u32 v%d, s36, v%d" % (vPW, vPW))
    a("v_lshrrev_b32 v%d, 3, v1" % (T + 8))
    a("v_and_b32 v%d, 7, v1" % (T + 9))
    a("s_mul_i32 s36, s22, %d" % (16 * SSTR))
    a("s_lshl_b32 s37, s23, 7")
    a("s_add_u32 s36, s36, s37")
    a("v_mul_u32_u24 v%d, %d, v%d" % (vFO, SSTR, T + 8))
    a("v_lshl_add_u32 v%d, v%d, 4, v%d" % (vFO, T + 9, vFO))
    a("v_add_u32 v%d, s36, v%d" % (vFO, vFO))
    a("v_lshrrev_b32 v%d, 2, v%d" % (vFH, T + 9))
    a("s_and_b32 s37, s23, 1")
    a("s_lshl_b32 s37, s37, 1")
    a("v_add_u32 v%d, s37, v%d" % (vFH, vFH))
    a("v_lshlrev_b32 v%d, 6, v%d" % (vFM, T + 8))
    a("v_lshl_add_u32 v%d, v%d, 4, v%d" % (vFM, vFH, vFM))
    a("s_lshl_b32 s37, s22, 10")
    a("s_add_u32 s37, s37, 0x%x" % WS_ML)
    a("v_add_u32 v%d, s37, v%d" % (vFM, vFM))
    a("v_and_b32 v%d, 3, v%d" % (T + 9, T + 9))
    a("v_lshl_add_u32 v%d, v%d, 2, v%d" % (T + 9, T + 9, vHead))
    a("v_lshlrev_b32 v%d, 1, v%d" % (T + 9, T + 9))
    a("v_lshl_add_u32 v%d, v%d, 8, v%d" % (vFA, vFH, T + 9))
    a("s_lshr_b32 s37, s23, 1")
    a("s_lshl_b32 s37, s37, 5")
    a("s_add_u32 s37, s37, s52")
    a("v_add_u32 v%d, s37, v%d" % (vFA, vFA))
    a("s_mov_b32 s38, %d" % (8 * SSTR))
    a("v_and_b32 v%d, 3, v3" % (T + 1))
    a("v_lshlrev_b32 v%d, 14, v2" % (T + 3))
    a("v_lshl_add_u32 v%d, v%d, 10, v%d" % (T + 3, T + 1, T + 3))
    a("v_lshrrev_b32 v%d, 2, v3" % (T + 2))
    a("v_lshl_add_u32 v%d, v%d, 8, v%d" % (T + 3, T + 2, T + 3))
    a("v_xor_b32 v%d, v4, v3" % (T + 2))
    for j in range(4):
        a("v_xor_b32 v%d, %d, v%d" % (KR + j, 4 * j, T + 2))
        a("v_lshl_add_u32 v%d, v%d, 4, v%d" % (KR + j, KR + j, T + 3))
    a("v_lshlrev_b32 v%d, 8, v%d" % (vQr, T + 1))
    a("v_lshl_add_u32 v%d, v4, 4, v%d" % (vQr, vQr))
    if ibar == 2: a("s_barrier")
    for _ in range(vdelay): a("s_nop 15")
    def kwait(t):
        last = 4 * t + 3
        younger = 15 - last
        if qpos > last:
            younger = 15 - (qpos - 1) if False else 15 - max(last, qpos - 1)
            younger = (15 - (qpos - 1))
        return younger + 1 + (1 if mlwarm else 0) + (1 if vwarm in (1, 3) else 0) + ((1 + (1 if owarm else 0)) if early_small else 0)
    for t in range(4):
        a("s_waitcnt vmcnt(%d)" % kwait(t))
        if t == 0: stamp(13)
        kb = K + (t & 1) * 16
        if t == 0:
            for j in range(4):
                a("ds_read_b128 %s, v%d offset:%d" % (vq(Q + 4 * j), vQr, L_Q + j * 64))
        for j in range(4):
            a("ds_read_b128 %s, v%d offset:%d" % (vq(kb + 4 * j), KR + j, L_K + t * 4096))
        for j in range(4):
            a("s_waitcnt lgkmcnt(%d)" % (3 - j))
            a("v_mfma_f32_16x16x32_bf16 %s, %s, %s, %s" % (vq(S + 4 * t), vq(kb + 4 * j), vq(Q + 4 * j), "0" if j == 0 else vq(S + 4 * t)))
    vloads(0, 8)
    stamp(2)
    a("s_cmp_eq_u32 s3, 0")
    a("s_cbranch_scc0 L_notree")
    a("v_mov_b32 v%d, %s" % (T + 8, f32hex(-3.0e38)))
    a("s_cmp_eq_u32 s23, 0")
    a("s_cbranch_scc0 L_tree1")
    if swarm: a("s_waitcnt vmcnt(8)")
    for j in range(4):
        a("v_mfma_f32_16x16x32_bf16 %s, %s, %s, %s" % (vq(ST), vq(KT + 4 * j), vq(Q + 4 * j), "0" if j == 0 else vq(ST)))
    a("s_waitcnt lgkmcnt(0)")
    a("s_lshr_b32 s58, s22, 3")
    a("s_lshl_b32 s58, s58, 4")
    a("s_lshr_b32 s58, s62, s58")
    a("s_lshl_b32 s58, s58, 16")
    a("v_mov_b32 v%d, s58" % (T + 8))
    a("v_sub_f32 v%d, 1.0, v%d" % (T + 8, T + 8))
    a("s_mov_b32 s58, %s" % f32hex(-1e9 / SCALE))
    a("s_nop 3")
    a("v_fma_f32 v%d, v%d, s58, v%d" % (T + 8, T + 8, ST))
    a.label("L_tree1")
    a("v_lshlrev_b32 v%d, 2, v3" % (T + 9))
    a("s_mov_b64 exec, 0xf")
    a("ds_write_b32 v%d, v%d offset:%d" % (T + 9, T + 8, L_ST))
    a("s_mov_b64 exec, -1")
    a.label("L_notree")
    a("v_max3_f32 v%d, v%d, v%d, v%d" % (T, S + 0, S + 1, S + 2))
    a("v_max3_f32 v%d, v%d, v%d, v%d" % (T + 1, S + 3, S + 4, S + 5))
    a("v_max3_f32 v%d, v%d, v%d, v%d" % (T + 2, S + 6, S + 7, S + 8))
    a("v_max3_f32 v%d, v%d, v%d, v%d" % (T + 3, S + 9, S + 10, S + 11))
    a("s_nop 4")
    a("v_max3_f32 v%d, v%d, v%d, v%d" % (T, T, S + 12, S + 13))
    a("v_max3_f32 v%d, v%d, v%d, v%d" % (T + 1, T + 1, S + 14, S + 15))
    a("v_max3_f32 v%d, v%d, v%d, v%d" % (T, T, T + 1, T + 2))
    a("v_max_f32 v%d, v%d, v%d" % (T, T, T + 3))
    def xlane(op, r, t):
        a("v_mov_b32 v%d, v%d" % (t, r))
        a("s_nop 1")
        a("v_permlane32_swap_b32 v%d, v%d" % (r, t))
        a("%s v%d, v%d, v%d" % (op, r, r, t))
        a("v_mov_b32 v%d, v%d" % (t, r))
        a("s_nop 1")
        a("v_permlane16_swap_b32 v%d, v%d" % (r, t))
        a("%s v%d, v%d, v%d" % (op, r, r, t))
    xlane("v_max_f32", T, T + 1)
    a("v_and_b32 v%d, 3, v3" % (T + 10))
    a("v_lshlrev_b32 v%d, 5, v%d" % (T + 2, T + 10))
    a("s_lshl_b32 s58, s3, 2")
    a("v_add_u32 v%d, s58, v%d" % (T + 3, T + 2))
    a("v_lshlrev_b32 v%d, 2, v%d" % (T + 10, T + 10))
    a("s_mov_b64 exec, 0xf")
    a("ds_write_b32 v%d, v%d offset:%d" % (T + 3, T, L_M))
    a("s_mov_b64 exec, -1")
    a("s_waitcnt lgkmcnt(0)")
    a("s_barrier")
    stamp(3)
    if not early_small:
        a("global_load_ushort v%d, v%d, s[12:13]" % (vVT, vVT))
        if owarm:
            a("global_load_ushort v%d, v%d, s[16:17]" % (T + 15, vFA))
    if gwarm:
        a("buffer_load_dword v%d, v%d, s[32:35], 0 offen %s" % (T + 15, vFO, hl))
        a("buffer_load_dword v%d, v%d, s[32:35], s38 offen %s" % (T + 15, vFO, hl))
    a("s_mul_i32 s57, s51, %d" % SSTR)
    a("buffer_load_dword v%d, v%d, s[32:35], s57 offen %s" % (T + 15, vOoff, hs))
    vloads(8, 12)
    a("ds_read_b128 %s, v%d offset:%d" % (vq(T + 4), T + 2, L_M))
    a("ds_read_b128 %s, v%d offset:%d" % (vq(K), T + 2, L_M + 16))
    a("ds_read_b32 v%d, v%d offset:%d" % (T + 8, T + 10, L_ST))
    a("s_mov_b32 s63, %s" % f32hex(C))
    a("s_waitcnt vmcnt(%d)" % (13 + (0 if early_small else 1 + (1 if owarm else 0)) + (2 if gwarm else 0)))
    a("v_add_u32 v%d, 1, v%d" % (vNonce, vNonce))
    a("s_nop 0")
    a("v_readfirstlane_b32 s39, v%d" % vNonce)
    a("s_nop 1")
    a("s_and_b32 s47, s39, 0xff")
    a("s_mul_i32 s47, s47, 0x01010100")
    a("s_and_b32 s48, s39, 0x7f7f7f7f")
    a("s_and_b32 s49, s47, 0x7f7f7f7f")
    a("s_add_u32 s48, s48, s49")
    a("s_xor_b32 s47, s47, s39")
    a("s_and_b32 s47, s47, 0x80808080")
    a("s_xor_b32 s50, s48, s47")
    a("v_and_b32 v%d, 3, v3" % (T + 11))
    a("v_lshlrev_b32 v%d, 3, v%d" % (T + 11, T + 11))
    a("v_lshrrev_b32 v%d, v%d, s50" % (vTagO, T + 11))
    a("v_and_b32 v%d, 0xff, v%d" % (vTagO, vTagO))
    a("v_xor_b32 v%d, 0xff, v%d" % (T + 11, vTagO))
    a("v_lshlrev_b32 v%d, 2, v1" % (T + 9))
    a("ds_write_b32 v%d, v%d offset:%d" % (T + 9, T + 11, L_X))
    a("s_waitcnt lgkmcnt(0)")
    a("v_max3_f32 v%d, v%d, v%d, v%d" % (T, T + 4, T + 5, T + 6))
    a("v_max3_f32 v%d, v%d, v%d, v%d" % (T + 1, T + 7, K, K + 1))
    a("v_max3_f32 v%d, v%d, v%d, v%d" % (T, T, K + 2, K + 3))
    a("v_max3_f32 v%d, v%d, v%d, v%d" % (T, T, T + 1, T + 8))
    for r in range(16):
        a("v_sub_f32 v%d, v%d, v%d" % (S + r, S + r, T))
    a("v_sub_f32 v%d, v%d, v%d" % (T + 8, T + 8, T))
    for r in range(16):
        a("v_mul_f32 v%d, s63, v%d" % (S + r, S + r))
    a("v_mul_f32 v%d, s63, v%d" % (T + 8, T + 8))
    for r in range(16):
        a("v_exp_f32 v%d, v%d" % (S + r, S + r))
    a("v_exp_f32 v%d, v%d" % (T + 8, T + 8))
    a("v_mul_f32 v%d, s63, v%d" % (T, T))
    a("v_add_f32 v%d, v%d, v%d" % (T + 1, S + 0, S + 1))
    a("v_add_f32 v%d, v%d, v%d" % (T + 4, S + 2, S + 3))
    for r in range(4, 16, 2):
        a("v_add_f32 v%d, v%d, v%d" % (T + 1, T + 1, S + r))
        a("v_add_f32 v%d, v%d, v%d" % (T + 4, T + 4, S + r + 1))
    a("v_add_f32 v%d, v%d, v%d" % (T + 1, T + 1, T + 4))
    for u in range(2):
        for hq in range(2):
            t = 2 * u + hq
            a("v_cvt_pk_bf16_f32 v%d, v%d, v%d" % (PR + 4 * u + 2 * hq, S + 4 * t, S + 4 * t + 1))
            a("v_cvt_pk_bf16_f32 v%d, v%d, v%d" % (PR + 4 * u + 2 * hq + 1, S + 4 * t + 2, S + 4 * t + 3))
    xlane("v_add_f32", T + 1, T + 4)
    a("s_mov_b64 exec, 0xf")
    a("ds_write_b32 v%d, v%d offset:%d" % (T + 3, T + 1, L_L))
    a("s_cmp_eq_u32 s3, 0")
    a("s_cbranch_scc0 L_nomq")
    a("ds_write_b32 v%d, v%d offset:%d" % (T + 10, T + 8, L_PT))
    a.label("L_nomq")
    a("s_mov_b64 exec, -1")
    a("s_mov_b32 exec_lo, 0x000f000f")
    a("s_mov_b32 exec_hi, 0x000f000f")
    for c in range(8):
        a("ds_write_b32 v%d, v%d offset:%d" % (vPW, PR + c, L_P + c * 512))
    a("s_mov_b64 exec, -1")
    a("s_waitcnt lgkmcnt(0)")
    a("s_barrier")
    a("v_lshlrev_b32 v%d, 2, v4" % (T + 9))
    a("ds_read_b32 v%d, v%d offset:%d" % (vPT, T + 9, L_PT))
    a("s_cmp_eq_u32 s3, 0")
    a("s_cbranch_scc0 L_noml")
    a("ds_read_b128 %s, v%d offset:%d" % (vq(K), T + 2, L_L))
    a("ds_read_b128 %s, v%d offset:%d" % (vq(K + 4), T + 2, L_L + 16))
    a("s_lshl_b32 s61, s51, 6")
    a("s_add_u32 s61, s61, 0x%x" % WS_ML)
    a("s_add_u32 s56, s61, 0x%x" % WS_B)
    a("v_lshlrev_b32 v%d, 4, v3" % (K + 12))
    a("s_waitcnt lgkmcnt(0)")
    a("v_add_f32 v%d, v%d, v%d" % (K, K, K + 1))
    a("v_add_f32 v%d, v%d, v%d" % (K + 2, K + 2, K + 3))
    a("v_add_f32 v%d, v%d, v%d" % (K + 4, K + 4, K + 5))
    a("v_add_f32 v%d, v%d, v%d" % (K + 6, K + 6, K + 7))
    a("v_add_f32 v%d, v%d, v%d" % (K, K, K + 2))
    a("v_add_f32 v%d, v%d, v%d" % (K + 4, K + 4, K + 6))
    a("v_add_f32 v%d, v%d, v%d" % (K, K, K + 4))
    a("v_mov_b32 v%d, v%d" % (K + 8, T))
    a("v_add_f32 v%d, v%d, v%d" % (K + 9, K, T + 8))
    a("v_mov_b32 v%d, v%d" % (K + 10, vNonce))
    a("v_mov_b32 v%d, v%d" % (K + 11, vNonce))
    a("s_mov_b64 exec, 0xf")
    a("buffer_store_dwordx4 %s, v%d, s[32:35], s61 offen" % (vq(K + 8), K + 12))
    a("buffer_store_dwordx4 %s, v%d, s[32:35], s56 offen %s" % (vq(K + 8), K + 12, hs))
    a("s_mov_b64 exec, -1")
    a.label("L_noml")
    vloads(12, 16)
    for c in range(8):
        if c == 5: a("s_waitcnt lgkmcnt(4)")
        for bq in range(2):
            a("ds_read_b128 %s, v%d offset:%d" % (vq(PF + (c * 2 + bq) * 4), vPR, L_P + c * 512 + bq * 256))
    def tr_reads(c, bq, q):
        base = vTR0 if bq == 0 else vTR1
        a("ds_read_b64_tr_b16 %s, v%d offset:%d" % (vq(VF + 4 * q, 2), base, L_K + c * 2048))
        a("ds_read_b64_tr_b16 %s, v%d offset:%d" % (vq(VF + 4 * q + 2, 2), base, L_K + c * 2048 + 32768))
    def pv_mfma(c, bq, q):
        d = D0 if bq == 0 else D1
        a("v_mfma_f32_16x16x32_bf16 %s, %s, %s, %s" % (vq(d), vq(PF + (c * 2 + bq) * 4), vq(VF + 4 * q), "0" if c == 0 else vq(d)))
    def pv_group(chunks):
        blocks = [(c, bq) for c in chunks for bq in range(2)]
        for b0 in range(0, len(blocks), 4):
            batch = blocks[b0:b0 + 4]
            for q, (c, bq) in enumerate(batch): tr_reads(c, bq, q + 4 * ((b0 // 4) & 1))
            for q, (c, bq) in enumerate(batch):
                a("s_waitcnt lgkmcnt(%d)" % (2 * (len(batch) - 1 - q)))
                pv_mfma(c, bq, q + 4 * ((b0 // 4) & 1))
    X0, X1, M0, M1 = 52, 56, 60, 64
    B1, B2, F0, F1, LS, TT = 68, 69, 70, 71, 72, 73
    AC = 76
    a("s_waitcnt vmcnt(%d) lgkmcnt(0)" % (9 + (0 if early_small else 1 + (1 if owarm else 0)) + (2 if gwarm else 0)))
    a("s_barrier")
    pv_group([0, 1, 2, 3])
    a("s_waitcnt vmcnt(4)")
    a("v_lshlrev_b32 v%d, 16, v%d" % (vVT, vVT))
    a("v_mul_f32 v%d, v%d, v%d" % (vPT, vPT, vVT))
    if groups == 0:
        a("s_barrier")
        pv_group([4, 5])
        a("s_waitcnt vmcnt(2)")
        a("s_barrier")
        pv_group([6])
        last = [7]
    elif groups == 1:
        a("s_barrier")
        pv_group([4, 5])
        last = [6, 7]
    else:
        a("s_waitcnt vmcnt(2)")
        a("s_barrier")
        pv_group([4, 5, 6])
        last = [7]
    a("s_add_u32 s59, s57, 0x%x" % WS_B)
    a("s_mov_b32 s58, 0xffffff00")
    a("s_waitcnt vmcnt(0)")
    stamp(4)
    a("s_cmp_eq_u32 s3, %d" % fw)
    a("s_cbranch_scc0 L_nomlphase")
    a("buffer_load_dwordx4 %s, v%d, s[32:35], 0 offen %s" % (vq(M0), vFM, hl))
    a("buffer_load_dwordx4 %s, v%d, s[32:35], 0 offen offset:512 %s" % (vq(M1), vFM, hl))
    a.label("L_nomlphase")
    a("s_barrier")
    stamp(5)
    pv_group(last)
    A = K
    a("v_lshlrev_b32 v%d, 2, v1" % (A + 2))
    a("s_nop 6")
    a("v_add_f32 v%d, v%d, v%d" % (A, D0, D1))
    a("v_add_f32 v%d, v%d, v%d" % (A, A, vPT))
    a("v_and_or_b32 v%d, v%d, s58, v%d" % (A + 1, A, vTagO))
    a("buffer_store_dword v%d, v%d, s[32:35], s57 offen" % (A + 1, vOoff))
    a("s_cmp_eq_u32 s3, %d" % fw)
    a("s_cbranch_scc1 L_final")
    a("buffer_store_dword v%d, v%d, s[32:35], s59 offen %s" % (A + 1, vOoff, hs))
    a("s_cmp_eq_u32 s3, 0")
    a("s_cbranch_scc0 L_pubdone")
    a("s_mov_b32 s54, 0")
    a.label("L_bpoll")
    a("ds_read_b32 v%d, v%d offset:%d" % (A + 3, A + 2, L_X))
    a("s_waitcnt lgkmcnt(0)")
    a("v_xor_b32 v%d, v%d, v%d" % (A + 4, A + 3, vTagO))
    a("v_and_b32 v%d, 0xff, v%d" % (A + 4, A + 4))
    a("v_cmp_ne_u32 vcc, 0, v%d" % (A + 4))
    a("s_cbranch_vccz L_bgo")
    a("s_add_u32 s54, s54, 1")
    a("s_cmp_lt_u32 s54, 0x400000")
    a("s_cbranch_scc1 L_bpoll")
    a.label("L_bgo")
    a("v_add_u32 v%d, %d, v%d" % (A + 5, fw * 256, vOoff))
    a("buffer_store_dword v%d, v%d, s[32:35], s59 offen %s" % (A + 3, A + 5, hs))
    a.label("L_pubdone")
    stamp(6)
    stamp_flush(7)
    a("s_branch L_end")
    a.label("L_final")
    stamp(6)
    a("ds_write_b32 v%d, v%d offset:%d" % (A + 2, A + 1, L_X))
    a("s_and_b32 s40, s50, 0xff")
    a("s_bfe_u32 s41, s50, 0x80008")
    a("s_bfe_u32 s42, s50, 0x80010")
    a("s_lshr_b32 s43, s50, 24")
    a("s_mov_b32 s54, 0")
    if npipe and early0:
        a("buffer_load_dwordx4 %s, v%d, s[32:35], 0 offen %s" % (vq(PF), vFO, hl))
        a("buffer_load_dwordx4 %s, v%d, s[32:35], s38 offen %s" % (vq(PF + 4), vFO, hl))
        a("s_waitcnt vmcnt(3)")
    else:
        a("s_waitcnt vmcnt(1)")
    a("s_branch L_mlchk")
    a.label("L_mlpoll")
    a("buffer_load_dwordx4 %s, v%d, s[32:35], 0 offen %s" % (vq(M0), vFM, hl))
    a("buffer_load_dwordx4 %s, v%d, s[32:35], 0 offen offset:512 %s" % (vq(M1), vFM, hl))
    a("s_waitcnt vmcnt(0)")
    a.label("L_mlchk")
    a("v_xor_b32 v%d, s39, v%d" % (B1, M0 + 2))
    a("v_bitop3_b32 v%d, v%d, s39, v%d bitop3:0xbe" % (B1, M1 + 2, B1))
    a("v_bitop3_b32 v%d, v%d, s39, v%d bitop3:0xbe" % (B1, M0 + 3, B1))
    a("v_bitop3_b32 v%d, v%d, s39, v%d bitop3:0xbe" % (B1, M1 + 3, B1))
    a("v_cmp_ne_u32 vcc, 0, v%d" % B1)
    a("s_cbranch_vccz L_mlok")
    a("s_add_u32 s54, s54, 1")
    a("s_cmp_lt_u32 s54, 0x40000")
    a("s_cbranch_scc0 L_mlok")
    a("s_cmp_lt_u32 s54, %d" % na)
    a("s_cbranch_scc1 L_mlpoll")
    a("v_xor_b32 v%d, 0x%x, v%d" % (vFM, WS_B, vFM))
    a("s_branch L_mlpoll")
    a.label("L_mlok")
    stamp(7)
    Y0, Y1 = 100, 104
    def o_loads2(x0, x1):
        a("buffer_load_dwordx4 %s, v%d, s[32:35], 0 offen %s" % (vq(x0), vFO, hl))
        a("buffer_load_dwordx4 %s, v%d, s[32:35], s38 offen %s" % (vq(x1), vFO, hl))
    def o_check(x0, x1):
        a("v_xor_b32 v%d, s40, v%d" % (B1, x0))
        a("v_xor_b32 v%d, s41, v%d" % (B2, x0 + 1))
        a("v_bitop3_b32 v%d, v%d, s42, v%d bitop3:0xbe" % (B1, x0 + 2, B1))
        a("v_bitop3_b32 v%d, v%d, s43, v%d bitop3:0xbe" % (B2, x0 + 3, B2))
        a("v_bitop3_b32 v%d, v%d, s40, v%d bitop3:0xbe" % (B1, x1, B1))
        a("v_bitop3_b32 v%d, v%d, s41, v%d bitop3:0xbe" % (B2, x1 + 1, B2))
        a("v_bitop3_b32 v%d, v%d, s42, v%d bitop3:0xbe" % (B1, x1 + 2, B1))
        a("v_bitop3_b32 v%d, v%d, s43, v%d bitop3:0xbe" % (B2, x1 + 3, B2))
        a("v_or_b32 v%d, v%d, v%d" % (B1, B1, B2))
        a("v_and_b32 v%d, 0xff, v%d" % (B1, B1))
        a("v_cmp_ne_u32 vcc, 0, v%d" % B1)
    a("v_max_f32 v%d, v%d, v%d" % (F0, M0, M1))
    a("s_mov_b32 s54, 0")
    a("s_nop 0")
    a("v_max_f32_dpp v%d, v%d, v%d row_ror:8 row_mask:0xf bank_mask:0xf" % (F0, F0, F0))
    xlane("v_max_f32", F0, F1)
    a("v_sub_f32 v%d, v%d, v%d" % (F1, M1, F0))
    a("v_sub_f32 v%d, v%d, v%d" % (F0, M0, F0))
    a("v_exp_f32 v%d, v%d" % (F1, F1))
    a("v_exp_f32 v%d, v%d" % (F0, F0))
    issued = [0]
    if npipe and early0:
        issued[0] = 1
        if npipe >= 2:
            o_loads2(PF + 8, PF + 12); issued[0] = 2
    elif npipe:
        o_loads2(PF, PF + 4); issued[0] = 1
    elif xpos == 0: o_loads2(X0, X1)
    a("s_nop 0")
    a("v_mul_f32 v%d, v%d, v%d" % (LS, F1, M1 + 1))
    a("v_fmac_f32 v%d, v%d, v%d" % (LS, F0, M0 + 1))
    a("s_nop 1")
    a("v_add_f32_dpp v%d, v%d, v%d row_ror:8 row_mask:0xf bank_mask:0xf" % (LS, LS, LS))
    if npipe > issued[0] and npipe >= 2:
        k_ = issued[0]
        o_loads2(PF + 8 * k_, PF + 8 * k_ + 4); issued[0] = k_ + 1
    xlane("v_add_f32", LS, TT)
    a("v_rcp_f32 v%d, v%d" % (LS, LS))
    if xpos == 1 and not npipe: o_loads2(X0, X1)
    def final_math(x0, x1):
        for c in range(4):
            a("v_and_b32 v%d, s58, v%d" % (x0 + c, x0 + c))
        for c in range(4):
            a("v_and_b32 v%d, s58, v%d" % (x1 + c, x1 + c))
        for c in range(4):
            a("v_mul_f32 v%d, v%d, v%d" % (AC + c, F0, x0 + c))
        for c in range(4):
            a("v_fmac_f32 v%d, v%d, v%d" % (AC + c, F1, x1 + c))
    if npipe:
        sets = [(PF + 8 * i, PF + 8 * i + 4) for i in range(npipe)]
        for i in range(issued[0], npipe): o_loads2(*sets[i])
        a.label("L_owait")
        for i in range(npipe):
            a("s_waitcnt vmcnt(%d)" % (2 * (npipe - 1)))
            o_check(*sets[i])
            a("s_cbranch_vccz L_ok%d" % i)
            if i == npipe - 1:
                a("s_add_u32 s54, s54, 1")
                a("s_cmp_lt_u32 s54, 0x40000")
                a("s_cbranch_scc0 L_ok%d" % i)
                a("s_cmp_lt_u32 s54, %d" % na)
                a("s_cbranch_scc1 L_otog")
                a("v_xor_b32 v%d, 0x%x, v%d" % (vFO, WS_B, vFO))
                a.label("L_otog")
            o_loads2(*sets[i])
        a("s_branch L_owait")
        for i in range(npipe):
            a.label("L_ok%d" % i)
            stamp(10)
            final_math(*sets[i])
            if i < npipe - 1: a("s_branch L_ook")
    else:
        a.label("L_owait")
        a("s_waitcnt vmcnt(0)")
        o_check(X0, X1)
        a("s_cbranch_vccz L_xok")
        a("s_add_u32 s54, s54, 1")
        a("s_cmp_lt_u32 s54, 0x40000")
        a("s_cbranch_scc0 L_xok")
        a("s_cmp_lt_u32 s54, %d" % na)
        a("s_cbranch_scc1 L_otog")
        a("v_xor_b32 v%d, 0x%x, v%d" % (vFO, WS_B, vFO))
        a.label("L_otog")
        o_loads2(X0, X1)
        a("s_branch L_owait")
        a.label("L_xok")
        stamp(10)
        final_math(X0, X1)
    a.label("L_ook")
    for c in range(4):
        a("v_add_f32_dpp v%d, v%d, v%d row_ror:8 row_mask:0xf bank_mask:0xf" % (AC + c, AC + c, AC + c))
    a("s_nop 0")
    a("v_permlane32_swap_b32 v%d, v%d" % (AC, AC + 1))
    a("v_permlane32_swap_b32 v%d, v%d" % (AC + 2, AC + 3))
    a("v_add_f32 v%d, v%d, v%d" % (AC, AC, AC + 1))
    a("v_add_f32 v%d, v%d, v%d" % (AC + 2, AC + 2, AC + 3))
    a("s_nop 1")
    a("v_permlane16_swap_b32 v%d, v%d" % (AC, AC + 2))
    a("v_add_f32 v%d, v%d, v%d" % (AC, AC, AC + 2))
    a("v_mul_f32 v%d, v%d, v%d" % (AC, AC, LS))
    a("v_cvt_pk_bf16_f32 v%d, v%d, v%d" % (AC, AC, AC))
    a("s_mov_b32 exec_lo, 0x00ff00ff")
    a("s_mov_b32 exec_hi, 0x00ff00ff")
    a("global_store_short v%d, v%d, s[16:17]" % (vFA, AC))
    a("s_cmp_eq_u32 s23, 15")
    a("s_cbranch_scc0 L_now")
    a("s_mov_b64 exec, 1")
    a("buffer_store_dword v%d, off, s[32:35], s60" % vNonce)
    a.label("L_now")
    a("s_mov_b64 exec, -1")
    if stamps:
        stamp(11)
        a("s_waitcnt vmcnt(0)")
    stamp(12)
    if stamps:
        a("s_mov_b32 s82, s54")
        a("s_mov_b32 s83, 0")
    stamp_flush(14)
    a.label("L_end")
    if spin:
        a("s_waitcnt vmcnt(0) lgkmcnt(0)")
        a.label("L_spin")
        a("s_memrealtime s[92:93]")
        a("s_waitcnt lgkmcnt(0)")
        a("s_sub_u32 s94, s92, s90")
        if spinref is not None:
            a("s_sub_u32 s95, s96, s90")
            a("s_sub_u32 s94, s94, s95")
        a("s_cmp_lt_u32 s94, %d" % spin)
        a("s_cbranch_scc1 L_spin")
    a("s_endpgm")
    out = HEADER + "; @launch grid=(256,1,1) block=(512,1,1) lds=%d\n" % LDS
    out += '.amdgcn_target "amdgcn-amd-amdhsa--gfx950"\n.text\n.globl %s_kernel\n.p2align 8\n.type %s_kernel,@function\n%s_kernel:\n' % (NAME, NAME, NAME)
    out += a.text()
    out += """.section .rodata,"a"
.p2align 6
.amdhsa_kernel %s_kernel
  .amdhsa_next_free_vgpr 256
  .amdhsa_next_free_sgpr 100
  .amdhsa_accum_offset 256
  .amdhsa_group_segment_fixed_size 0
  .amdhsa_kernarg_size 72
  .amdhsa_user_sgpr_count 2
  .amdhsa_user_sgpr_kernarg_segment_ptr 1
  .amdhsa_system_sgpr_workgroup_id_x 1
  .amdhsa_float_denorm_mode_32 3
.end_amdhsa_kernel
""" % NAME
    return out

if __name__ == "__main__":
    import argparse
    p = argparse.ArgumentParser()
    p.add_argument("-o", default="cdna_kernels/%s.s" % NAME)
    p.add_argument("--ld", default="nt")
    p.add_argument("--hs", default="sc1")
    p.add_argument("--stamps", action="store_true")
    p.add_argument("--spin", type=int, default=0)
    p.add_argument("--spinref", type=int, default=None)
    p.add_argument("--ibar", type=int, default=1)
    p.add_argument("--vsplit", type=int, default=8)
    p.add_argument("--cons", type=int, default=15)
    p.add_argument("--nonlocal", dest="nonlocal_", action="store_true")
    p.add_argument("--na", type=int, default=24)
    p.add_argument("--swave", type=int, default=0)
    p.add_argument("--skew", type=int, default=0)
    p.add_argument("--qpos", type=int, default=16)
    p.add_argument("--fw", type=int, default=1)
    p.add_argument("--dpoll", type=int, default=0)
    p.add_argument("--xpos", type=int, default=1)
    p.add_argument("--nomlwarm", action="store_true")
    p.add_argument("--hl", default="sc1")
    p.add_argument("--sstr", type=int, default=2048)
    p.add_argument("--nokslim", action="store_true")
    p.add_argument("--vdelay", type=int, default=0)
    p.add_argument("--vwarm", type=int, default=1)
    p.add_argument("--noowarm", action="store_true")
    p.add_argument("--gwarm", action="store_true")
    p.add_argument("--wswarm", action="store_true")
    p.add_argument("--groups", type=int, default=0)
    p.add_argument("--swarm", action="store_true")
    p.add_argument("--wsearly", action="store_true")
    p.add_argument("--late_small", action="store_true")
    p.add_argument("--npipe", type=int, default=3)
    p.add_argument("--noearly0", action="store_true")
    p.add_argument("--v2a", type=int, default=4)
    x = p.parse_args()
    open(x.o, "w").write(gen(x.ld, x.hs, x.stamps, x.spin, x.spinref, x.ibar, x.vsplit, x.cons, not x.nonlocal_, x.na, x.skew, x.swave, x.qpos, x.fw, x.dpoll, x.xpos, not x.nomlwarm, x.hl, x.v2a, x.sstr, not x.nokslim, x.vdelay, x.vwarm, x.npipe, not x.noearly0, not x.noowarm, x.gwarm, not x.late_small, x.wswarm, x.groups, not x.wsearly, x.swarm))
```

```python
import sys, math, struct
NAME = "standalone__tree_speculative_verify_tree_attention_over_candidate_token_tree__decode"
HEADER = """; Kernarg layout for this problem (72 bytes, ptrs only, base s[0:1]):
;
"""
def f32hex(x):
    return "0x%08x" % struct.unpack("<I", struct.pack("<f", x))[0]
class Asm:
    def __init__(self): self.lines = []
    def __call__(self, s): self.lines.append("    " + s)
    def label(self, s): self.lines.append(s + ":")
    def c(self, s): self.lines.append("    ; " + s)
    def text(self): return "\n".join(self.lines) + "\n"
def vq(base, n=4): return "v[%d:%d]" % (base, base + n - 1)

def gen(ld="nt", hs="sc1", stamps=False, spin=0, spinref=None, ibar=1, vsplit=8, cons=15, local=True, na=24,
        skew=0, swave=0, qpos=16, fw=1, dpoll=0, xpos=1, mlwarm=True, hl="sc1", v2a=4, sstr=2048, kslim=True, vdelay=0, vwarm=0, npipe=3, early0=True, owarm=False, gwarm=False, early_small=True, wswarm=False, groups=0, wslate=True, swarm=True):
    a = Asm()
    LOG2E = 1.4426950408889634
    SCALE = 128 ** -0.5
    C = SCALE * LOG2E
    Q, KT, K = 12, 28, 44
    PR = 28
    KD, KR = 76, 80
    VD, vTR0, vTR1, vPW, vPR = 84, 86, 87, 88, 89
    S, ST = 92, 108
    PF = 112
    VF = 176
    D0, D1 = 208, 212
    T = 232
    vQr, vKToff, vVT, vOoff = 7, 8, 9, 10
    vTagO, vHead, vNonce = 248, 250, 251
    vFO, vFM, vFH, vFA = 11, 5, 246, 245
    vPT = 244
    L_M, L_L, L_ST, L_PT, L_Q, L_P, L_K = 0, 128, 256, 288, 512, 1536, 5632
    L_X = L_Q
    LDS = L_K + 8 * 16384
    WS_ML, WS_W, WS_B = 0xa0000, 0xb0000, 0x100000
    SSTR = sstr
    def stamp(i):
        if spinref == i: a("s_memrealtime s[96:97]")
        if stamps: a("s_memrealtime s[%d:%d]" % (64 + 2 * i, 65 + 2 * i))
    nfl = [0]
    def stamp_flush(n):
        if stamps:
            nfl[0] += 1
            a("s_waitcnt lgkmcnt(0)")
            a("s_cmp_eq_u32 s3, %d" % swave)
            a("s_cbranch_scc0 L_nostamp%d" % nfl[0])
            a("s_lshl_b32 s58, s2, 7")
            a("s_add_u32 s58, s58, 0x1000000")
            a("v_mov_b32 v252, s58")
            a("s_mov_b64 exec, 1")
            for i in range(n):
                a("v_mov_b32 v254, s%d" % (64 + 2 * i))
                a("v_mov_b32 v255, s%d" % (65 + 2 * i))
                a("global_store_dwordx2 v252, v[254:255], s[20:21] offset:%d" % (8 * i))
                a("s_nop 1")
            a("s_mov_b64 exec, -1")
            a.label("L_nostamp%d" % nfl[0])
    stamp(0)
    if spin: a("s_memrealtime s[90:91]")
    a("s_load_dwordx16 s[4:19], s[0:1], 0")
    if not wslate: a("s_load_dwordx2 s[20:21], s[0:1], 64")
    a("s_cmp_ge_u32 s2, 256")
    a("s_cbranch_scc1 L_end")
    if skew:
        a("s_mul_i32 s58, s2, 0x9E3779B1")
        a("s_lshr_b32 s58, s58, 29")
        a("s_mul_i32 s58, s58, %d" % skew)
        a("s_memrealtime s[90:91]")
        a("s_waitcnt lgkmcnt(0)")
        a.label("L_skew")
        a("s_memrealtime s[92:93]")
        a("s_waitcnt lgkmcnt(0)")
        a("s_sub_u32 s94, s92, s90")
        a("s_cmp_lt_u32 s94, s58")
        a("s_cbranch_scc1 L_skew")
    a("v_and_b32 v1, 63, v0")
    a("v_lshrrev_b32 v2, 6, v0")
    a("v_and_b32 v3, 15, v0")
    a("v_bfe_u32 v4, v0, 4, 2")
    a("v_readfirstlane_b32 s3, v2")
    if local:
        a("s_and_b32 s22, s2, 15")
        a("s_lshr_b32 s23, s2, 4")
    else:
        a("s_lshr_b32 s22, s2, 4")
        a("s_and_b32 s23, s2, 15")
    a("s_lshl_b32 s51, s22, 4")
    a("s_add_u32 s51, s51, s23")
    a("s_lshl_b32 s54, s51, 17")
    a("v_lshlrev_b32 v%d, 10, v2" % T)
    a("v_lshlrev_b32 v%d, 2, v4" % (T + 2))
    a("v_xor_b32 v%d, v3, v%d" % (T + 2, T + 2))
    a("v_lshl_add_u32 v%d, v4, 8, v%d" % (T + 3, T))
    for r in range(4):
        a("v_xor_b32 v%d, %d, v%d" % (KD + r, r, T + 2))
        a("v_lshl_add_u32 v%d, v%d, 4, v%d" % (KD + r, KD + r, T + 3))
        if kslim and r: a("v_add_u32 v%d, %d, v%d" % (KD + r, r * 7168, KD + r))
    if kslim:
        a("s_mov_b32 s44, 0x8000")
        a("s_mov_b32 s45, 0x10000")
        a("s_mov_b32 s46, 0x18000")
    a("v_lshlrev_b32 v%d, 4, v1" % vQr)
    a("s_mov_b32 s26, 0x20000")
    a("s_mov_b32 s27, 0x00020000")
    a("s_mov_b32 s30, 0x20000")
    a("s_mov_b32 s31, 0x00020000")
    a("s_mov_b32 s34, 0x200000")
    a("s_mov_b32 s35, 0x00020000")
    a("s_mov_b32 s86, 0x400")
    a("s_mov_b32 s87, 0x00020000")
    a("s_lshl_b32 s52, s22, 10")
    a("s_lshl_b32 s53, s22, 8")
    a("s_lshl_b32 s55, s3, 14")
    a("s_add_u32 s55, s55, %d" % L_K)
    a("s_waitcnt lgkmcnt(0)")
    stamp(1)
    if wslate: a("s_load_dwordx2 s[20:21], s[0:1], 64")
    a("s_add_u32 s24, s6, s54")
    a("s_addc_u32 s25, s7, 0")
    a("s_and_b32 s25, s25, 0xffff")
    a("s_add_u32 s84, s4, s52")
    a("s_addc_u32 s85, s5, 0")
    a("s_and_b32 s85, s85, 0xffff")
    def kt_block():
        a("s_or_b32 s56, s3, s23")
        a("s_cmp_eq_u32 s56, 0")
        a("s_cbranch_scc0 L_nokt")
        a("v_lshlrev_b32 v%d, 4, v4" % vKToff)
        a("v_add_u32 v%d, s53, v%d" % (vKToff, vKToff))
        for j in range(4):
            a("global_load_dwordx4 %s, v%d, s[10:11] offset:%d" % (vq(KT + 4 * j), vKToff, j * 64))
        a("s_load_dword s62, s[14:15], 0")
        a.label("L_nokt")
    if swarm:
        a("s_add_u32 s28, s8, s54")
        a("s_addc_u32 s29, s9, 0")
        a("s_and_b32 s29, s29, 0xffff")
        a("s_cmp_eq_u32 s3, 0")
        a("s_cbranch_scc0 L_nosw")
        a("s_load_dword s88, s[84:85], 0")
        a("s_load_dword s88, s[28:29], 0")
        a("s_load_dword s88, s[12:13], 0")
        a("s_load_dword s88, s[16:17], 0")
        a("s_load_dword s88, s[10:11], 0")
        a.label("L_nosw")
    else:
        kt_block()
    def qdma():
        a("s_mov_b32 m0, %d" % L_Q)
        a("s_nop 0")
        a("buffer_load_dwordx4 v%d, s[84:87], 0 offen lds" % vQr)
    if kslim:
        assert qpos in (4, 16)
        for t in range(4):
            if t == 1 and qpos == 4: qdma()
            a("s_add_u32 m0, s55, %d" % (t * 4096))
            if t == 0: a("s_nop 0")
            else: a("s_nop 0")
            for r in range(4):
                a("buffer_load_dwordx4 v%d, s[24:27], %s offen offset:%d %s lds" % (KD + r, ["0", "s44", "s45", "s46"][t], r * 1024, ld))
        if qpos == 16: qdma()
    else:
        a("s_mov_b32 s58, 0")
        for i in range(16):
            if i == qpos: qdma()
            if i == 0 or i == qpos:
                a("s_add_u32 m0, s55, %d" % (i * 1024))
                a("s_nop 0")
            a("buffer_load_dwordx4 v%d, s[24:27], s58 offen %s lds" % (KD + (i & 3), ld))
            if i < 15:
                if i + 1 != qpos: a("s_add_u32 m0, m0, 1024")
                a("s_add_u32 s58, s58, 0x2000")
    if swarm:
        kt_block()
    else:
        a("s_add_u32 s28, s8, s54")
        a("s_addc_u32 s29, s9, 0")
        a("s_and_b32 s29, s29, 0xffff")
    if wslate: a("s_waitcnt lgkmcnt(0)")
    a("s_mov_b32 s32, s20")
    a("s_and_b32 s33, s21, 0xffff")
    if swarm:
        a("s_cmp_eq_u32 s3, 0")
        a("s_cbranch_scc0 L_nosw2")
        a("s_load_dword s88, s[20:21], 0")
        a.label("L_nosw2")
        if ibar == 1: a("s_barrier")
    if vwarm == 1:
        a("buffer_load_dword v%d, off, s[28:31], 0 nt" % (T + 15))
    if vwarm == 3:
        a("v_lshlrev_b32 v%d, 14, v2" % (T + 14))
        a("s_mov_b64 exec, 1")
        a("buffer_load_dword v%d, v%d, s[28:31], 0 offen nt" % (T + 15, T + 14))
        a("s_mov_b64 exec, -1")
    if vwarm == 2:
        a("s_cmp_eq_u32 s3, 0")
        a("s_cbranch_scc0 L_novw")
        a("v_and_b32 v%d, 15, v0" % (T + 14))
        a("v_lshlrev_b32 v%d, 13, v%d" % (T + 14, T + 14))
        a("s_mov_b64 exec, 0xffff")
        a("buffer_load_dword v%d, v%d, s[28:31], 0 offen nt" % (T + 15, T + 14))
        a("s_mov_b64 exec, -1")
        a.label("L_novw")
    a("s_lshl_b32 s58, s22, 7")
    a("s_add_u32 s60, s58, 0x%x" % WS_W)
    a("buffer_load_dword v%d, off, s[32:35], s60 %s" % (vNonce, hs))
    if mlwarm:
        a("s_lshl_b32 s58, s51, 6")
        a("s_add_u32 s58, s58, 0x%x" % WS_ML)
        a("buffer_load_dword v%d, off, s[32:35], s58 %s" % (T + 15, hs))
    if early_small:
        a("v_lshlrev_b32 v%d, 1, v3" % vVT)
        a("v_lshl_add_u32 v%d, v2, 5, v%d" % (vVT, vVT))
        a("v_add_u32 v%d, s53, v%d" % (vVT, vVT))
        a("global_load_ushort v%d, v%d, s[12:13]" % (vVT, vVT))
        if owarm:
            a("v_mov_b32 v%d, s52" % (T + 14))
            a("global_load_ushort v%d, v%d, s[16:17]" % (T + 15, T + 14))
    if wswarm:
        a("s_cmp_eq_u32 s3, 2")
        a("s_cbranch_scc0 L_nowsw")
        a("s_mul_i32 s58, s22, %d" % (16 * SSTR))
        a("v_lshlrev_b32 v%d, 9, v1" % (T + 14))
        a("buffer_load_dword v%d, v%d, s[32:35], s58 offen %s" % (T + 15, T + 14, hs))
        a("s_add_u32 s58, s58, 0x%x" % WS_B)
        a("buffer_load_dword v%d, v%d, s[32:35], s58 offen %s" % (T + 15, T + 14, hs))
        a.label("L_nowsw")
    if ibar == 1 and not swarm: a("s_barrier")
    def vloads(i0, i1):
        a("s_add_u32 m0, s55, %d" % (i0 * 1024))
        a("s_mov_b32 s58, 0x%x" % (i0 * 0x2000))
        for i in range(i0, i1):
            a("buffer_load_dwordx4 v%d, s[28:31], s58 offen %s lds" % (VD + (i & 1), ld))
            if i < i1 - 1:
                a("s_add_u32 m0, m0, 1024")
                a("s_add_u32 s58, s58, 0x2000")
    a("v_lshlrev_b32 v%d, 8, v2" % vOoff)
    a("v_lshl_add_u32 v%d, v1, 2, v%d" % (vOoff, vOoff))
    a("v_and_b32 v%d, 1, v4" % (T + 8))
    a("v_lshlrev_b32 v%d, 1, v%d" % (T + 9, T + 8))
    a("v_lshrrev_b32 v%d, 1, v4" % (T + 10))
    a("v_or_b32 v%d, v%d, v%d" % (vHead, T + 9, T + 10))
    if not early_small:
        a("v_lshlrev_b32 v%d, 1, v3" % vVT)
        a("v_lshl_add_u32 v%d, v2, 5, v%d" % (vVT, vVT))
        a("v_add_u32 v%d, s53, v%d" % (vVT, vVT))
    a("v_and_b32 v%d, 1, v2" % (T + 9))
    a("v_lshlrev_b32 v%d, 2, v%d" % (T + 9, T + 9))
    a("v_lshl_add_u32 v%d, v%d, 3, v%d" % (T + 9, T + 8, T + 9))
    a("v_xor_b32 v%d, v3, v%d" % (T + 9, T + 9))
    a("v_lshlrev_b32 v%d, 10, v2" % (T + 10))
    a("v_lshl_add_u32 v%d, v4, 8, v%d" % (T + 10, T + 10))
    a("v_lshl_add_u32 v%d, v%d, 4, v%d" % (VD, T + 9, T + 10))
    a("v_xor_b32 v%d, 2, v%d" % (T + 9, T + 9))
    a("v_lshl_add_u32 v%d, v%d, 4, v%d" % (VD + 1, T + 9, T + 10))
    a("v_lshrrev_b32 v%d, 2, v3" % (T + 9))
    a("v_lshlrev_b32 v%d, 1, v%d" % (T + 10, T + 9))
    a("v_lshl_add_u32 v%d, v%d, 3, v%d" % (T + 10, T + 8, T + 10))
    a("v_bfe_u32 v%d, v3, 1, 1" % (T + 11))
    a("v_lshl_add_u32 v%d, v2, 1, v%d" % (T + 11, T + 11))
    a("v_xor_b32 v%d, v%d, v%d" % (T + 10, T + 10, T + 11))
    a("v_lshlrev_b32 v%d, 4, v%d" % (vTR0, T + 10))
    a("v_and_b32 v%d, 1, v3" % (T + 11))
    a("v_lshl_add_u32 v%d, v%d, 3, v%d" % (vTR0, T + 11, vTR0))
    a("v_lshl_add_u32 v%d, v4, 8, v%d" % (vTR0, vTR0))
    a("v_and_b32 v%d, 1, v%d" % (T + 11, T + 9))
    a("v_lshl_add_u32 v%d, v%d, 10, v%d" % (vTR0, T + 11, vTR0))
    a("v_lshrrev_b32 v%d, 1, v%d" % (T + 11, T + 9))
    a("v_lshl_add_u32 v%d, v%d, 14, v%d" % (vTR0, T + 11, vTR0))
    a("v_add_u32 v%d, 0x10000, v%d" % (vTR1, vTR0))
    a("v_lshlrev_b32 v%d, 6, v4" % vPR)
    a("v_lshl_add_u32 v%d, v3, 4, v%d" % (vPW, vPR))
    a("v_lshl_add_u32 v%d, v%d, 4, v%d" % (vPR, T + 9, vPR))
    a("s_lshr_b32 s36, s3, 2")
    a("s_lshl_b32 s36, s36, 8")
    a("s_and_b32 s37, s3, 3")
    a("s_lshl_b32 s37, s37, 2")
    a("s_add_u32 s36, s36, s37")
    a("v_add_u32 v%d, s36, v%d" % (vPW, vPW))
    a("v_lshrrev_b32 v%d, 3, v1" % (T + 8))
    a("v_and_b32 v%d, 7, v1" % (T + 9))
    a("s_mul_i32 s36, s22, %d" % (16 * SSTR))
    a("s_lshl_b32 s37, s23, 7")
    a("s_add_u32 s36, s36, s37")
    a("v_mul_u32_u24 v%d, %d, v%d" % (vFO, SSTR, T + 8))
    a("v_lshl_add_u32 v%d, v%d, 4, v%d" % (vFO, T + 9, vFO))
    a("v_add_u32 v%d, s36, v%d" % (vFO, vFO))
    a("v_lshrrev_b32 v%d, 2, v%d" % (vFH, T + 9))
    a("s_and_b32 s37, s23, 1")
    a("s_lshl_b32 s37, s37, 1")
    a("v_add_u32 v%d, s37, v%d" % (vFH, vFH))
    a("v_lshlrev_b32 v%d, 6, v%d" % (vFM, T + 8))
    a("v_lshl_add_u32 v%d, v%d, 4, v%d" % (vFM, vFH, vFM))
    a("s_lshl_b32 s37, s22, 10")
    a("s_add_u32 s37, s37, 0x%x" % WS_ML)
    a("v_add_u32 v%d, s37, v%d" % (vFM, vFM))
    a("v_and_b32 v%d, 3, v%d" % (T + 9, T + 9))
    a("v_lshl_add_u32 v%d, v%d, 2, v%d" % (T + 9, T + 9, vHead))
    a("v_lshlrev_b32 v%d, 1, v%d" % (T + 9, T + 9))
    a("v_lshl_add_u32 v%d, v%d, 8, v%d" % (vFA, vFH, T + 9))
    a("s_lshr_b32 s37, s23, 1")
    a("s_lshl_b32 s37, s37, 5")
    a("s_add_u32 s37, s37, s52")
    a("v_add_u32 v%d, s37, v%d" % (vFA, vFA))
    a("s_mov_b32 s38, %d" % (8 * SSTR))
    a("v_and_b32 v%d, 3, v3" % (T + 1))
    a("v_lshlrev_b32 v%d, 14, v2" % (T + 3))
    a("v_lshl_add_u32 v%d, v%d, 10, v%d" % (T + 3, T + 1, T + 3))
    a("v_lshrrev_b32 v%d, 2, v3" % (T + 2))
    a("v_lshl_add_u32 v%d, v%d, 8, v%d" % (T + 3, T + 2, T + 3))
    a("v_xor_b32 v%d, v4, v3" % (T + 2))
    for j in range(4):
        a("v_xor_b32 v%d, %d, v%d" % (KR + j, 4 * j, T + 2))
        a("v_lshl_add_u32 v%d, v%d, 4, v%d" % (KR + j, KR + j, T + 3))
    a("v_lshlrev_b32 v%d, 8, v%d" % (vQr, T + 1))
    a("v_lshl_add_u32 v%d, v4, 4, v%d" % (vQr, vQr))
    if ibar == 2: a("s_barrier")
    for _ in range(vdelay): a("s_nop 15")
    def kwait(t):
        last = 4 * t + 3
        younger = 15 - last
        if qpos > last:
            younger = 15 - (qpos - 1) if False else 15 - max(last, qpos - 1)
            younger = (15 - (qpos - 1))
        return younger + 1 + (1 if mlwarm else 0) + (1 if vwarm in (1, 3) else 0) + ((1 + (1 if owarm else 0)) if early_small else 0)
    for t in range(4):
        a("s_waitcnt vmcnt(%d)" % kwait(t))
        if t == 0: stamp(13)
        kb = K + (t & 1) * 16
        if t == 0:
            for j in range(4):
                a("ds_read_b128 %s, v%d offset:%d" % (vq(Q + 4 * j), vQr, L_Q + j * 64))
        for j in range(4):
            a("ds_read_b128 %s, v%d offset:%d" % (vq(kb + 4 * j), KR + j, L_K + t * 4096))
        for j in range(4):
            a("s_waitcnt lgkmcnt(%d)" % (3 - j))
            a("v_mfma_f32_16x16x32_bf16 %s, %s, %s, %s" % (vq(S + 4 * t), vq(kb + 4 * j), vq(Q + 4 * j), "0" if j == 0 else vq(S + 4 * t)))
    vloads(0, 8)
    stamp(2)
    a("s_cmp_eq_u32 s3, 0")
    a("s_cbranch_scc0 L_notree")
    a("v_mov_b32 v%d, %s" % (T + 8, f32hex(-3.0e38)))
    a("s_cmp_eq_u32 s23, 0")
    a("s_cbranch_scc0 L_tree1")
    if swarm: a("s_waitcnt vmcnt(8)")
    for j in range(4):
        a("v_mfma_f32_16x16x32_bf16 %s, %s, %s, %s" % (vq(ST), vq(KT + 4 * j), vq(Q + 4 * j), "0" if j == 0 else vq(ST)))
    a("s_waitcnt lgkmcnt(0)")
    a("s_lshr_b32 s58, s22, 3")
    a("s_lshl_b32 s58, s58, 4")
    a("s_lshr_b32 s58, s62, s58")
    a("s_lshl_b32 s58, s58, 16")
    a("v_mov_b32 v%d, s58" % (T + 8))
    a("v_sub_f32 v%d, 1.0, v%d" % (T + 8, T + 8))
    a("s_mov_b32 s58, %s" % f32hex(-1e9 / SCALE))
    a("s_nop 3")
    a("v_fma_f32 v%d, v%d, s58, v%d" % (T + 8, T + 8, ST))
    a.label("L_tree1")
    a("v_lshlrev_b32 v%d, 2, v3" % (T + 9))
    a("s_mov_b64 exec, 0xf")
    a("ds_write_b32 v%d, v%d offset:%d" % (T + 9, T + 8, L_ST))
    a("s_mov_b64 exec, -1")
    a.label("L_notree")
    a("v_max3_f32 v%d, v%d, v%d, v%d" % (T, S + 0, S + 1, S + 2))
    a("v_max3_f32 v%d, v%d, v%d, v%d" % (T + 1, S + 3, S + 4, S + 5))
    a("v_max3_f32 v%d, v%d, v%d, v%d" % (T + 2, S + 6, S + 7, S + 8))
    a("v_max3_f32 v%d, v%d, v%d, v%d" % (T + 3, S + 9, S + 10, S + 11))
    a("s_nop 4")
    a("v_max3_f32 v%d, v%d, v%d, v%d" % (T, T, S + 12, S + 13))
    a("v_max3_f32 v%d, v%d, v%d, v%d" % (T + 1, T + 1, S + 14, S + 15))
    a("v_max3_f32 v%d, v%d, v%d, v%d" % (T, T, T + 1, T + 2))
    a("v_max_f32 v%d, v%d, v%d" % (T, T, T + 3))
    def xlane(op, r, t):
        a("v_mov_b32 v%d, v%d" % (t, r))
        a("s_nop 1")
        a("v_permlane32_swap_b32 v%d, v%d" % (r, t))
        a("%s v%d, v%d, v%d" % (op, r, r, t))
        a("v_mov_b32 v%d, v%d" % (t, r))
        a("s_nop 1")
        a("v_permlane16_swap_b32 v%d, v%d" % (r, t))
        a("%s v%d, v%d, v%d" % (op, r, r, t))
    xlane("v_max_f32", T, T + 1)
    a("v_and_b32 v%d, 3, v3" % (T + 10))
    a("v_lshlrev_b32 v%d, 5, v%d" % (T + 2, T + 10))
    a("s_lshl_b32 s58, s3, 2")
    a("v_add_u32 v%d, s58, v%d" % (T + 3, T + 2))
    a("v_lshlrev_b32 v%d, 2, v%d" % (T + 10, T + 10))
    a("s_mov_b64 exec, 0xf")
    a("ds_write_b32 v%d, v%d offset:%d" % (T + 3, T, L_M))
    a("s_mov_b64 exec, -1")
    a("s_waitcnt lgkmcnt(0)")
    a("s_barrier")
    stamp(3)
    if not early_small:
        a("global_load_ushort v%d, v%d, s[12:13]" % (vVT, vVT))
        if owarm:
            a("global_load_ushort v%d, v%d, s[16:17]" % (T + 15, vFA))
    if gwarm:
        a("buffer_load_dword v%d, v%d, s[32:35], 0 offen %s" % (T + 15, vFO, hl))
        a("buffer_load_dword v%d, v%d, s[32:35], s38 offen %s" % (T + 15, vFO, hl))
    a("s_mul_i32 s57, s51, %d" % SSTR)
    a("buffer_load_dword v%d, v%d, s[32:35], s57 offen %s" % (T + 15, vOoff, hs))
    vloads(8, 12)
    a("ds_read_b128 %s, v%d offset:%d" % (vq(T + 4), T + 2, L_M))
    a("ds_read_b128 %s, v%d offset:%d" % (vq(K), T + 2, L_M + 16))
    a("ds_read_b32 v%d, v%d offset:%d" % (T + 8, T + 10, L_ST))
    a("s_mov_b32 s63, %s" % f32hex(C))
    a("s_waitcnt vmcnt(%d)" % (13 + (0 if early_small else 1 + (1 if owarm else 0)) + (2 if gwarm else 0)))
    a("v_add_u32 v%d, 1, v%d" % (vNonce, vNonce))
    a("s_nop 0")
    a("v_readfirstlane_b32 s39, v%d" % vNonce)
    a("s_nop 1")
    a("s_and_b32 s47, s39, 0xff")
    a("s_mul_i32 s47, s47, 0x01010100")
    a("s_and_b32 s48, s39, 0x7f7f7f7f")
    a("s_and_b32 s49, s47, 0x7f7f7f7f")
    a("s_add_u32 s48, s48, s49")
    a("s_xor_b32 s47, s47, s39")
    a("s_and_b32 s47, s47, 0x80808080")
    a("s_xor_b32 s50, s48, s47")
    a("v_and_b32 v%d, 3, v3" % (T + 11))
    a("v_lshlrev_b32 v%d, 3, v%d" % (T + 11, T + 11))
    a("v_lshrrev_b32 v%d, v%d, s50" % (vTagO, T + 11))
    a("v_and_b32 v%d, 0xff, v%d" % (vTagO, vTagO))
    a("v_xor_b32 v%d, 0xff, v%d" % (T + 11, vTagO))
    a("v_lshlrev_b32 v%d, 2, v1" % (T + 9))
    a("ds_write_b32 v%d, v%d offset:%d" % (T + 9, T + 11, L_X))
    a("s_waitcnt lgkmcnt(0)")
    a("v_max3_f32 v%d, v%d, v%d, v%d" % (T, T + 4, T + 5, T + 6))
    a("v_max3_f32 v%d, v%d, v%d, v%d" % (T + 1, T + 7, K, K + 1))
    a("v_max3_f32 v%d, v%d, v%d, v%d" % (T, T, K + 2, K + 3))
    a("v_max3_f32 v%d, v%d, v%d, v%d" % (T, T, T + 1, T + 8))
    for r in range(16):
        a("v_sub_f32 v%d, v%d, v%d" % (S + r, S + r, T))
    a("v_sub_f32 v%d, v%d, v%d" % (T + 8, T + 8, T))
    for r in range(16):
        a("v_mul_f32 v%d, s63, v%d" % (S + r, S + r))
    a("v_mul_f32 v%d, s63, v%d" % (T + 8, T + 8))
    for r in range(16):
        a("v_exp_f32 v%d, v%d" % (S + r, S + r))
    a("v_exp_f32 v%d, v%d" % (T + 8, T + 8))
    a("v_mul_f32 v%d, s63, v%d" % (T, T))
    a("v_add_f32 v%d, v%d, v%d" % (T + 1, S + 0, S + 1))
    a("v_add_f32 v%d, v%d, v%d" % (T + 4, S + 2, S + 3))
    for r in range(4, 16, 2):
        a("v_add_f32 v%d, v%d, v%d" % (T + 1, T + 1, S + r))
        a("v_add_f32 v%d, v%d, v%d" % (T + 4, T + 4, S + r + 1))
    a("v_add_f32 v%d, v%d, v%d" % (T + 1, T + 1, T + 4))
    for u in range(2):
        for hq in range(2):
            t = 2 * u + hq
            a("v_cvt_pk_bf16_f32 v%d, v%d, v%d" % (PR + 4 * u + 2 * hq, S + 4 * t, S + 4 * t + 1))
            a("v_cvt_pk_bf16_f32 v%d, v%d, v%d" % (PR + 4 * u + 2 * hq + 1, S + 4 * t + 2, S + 4 * t + 3))
    xlane("v_add_f32", T + 1, T + 4)
    a("s_mov_b64 exec, 0xf")
    a("ds_write_b32 v%d, v%d offset:%d" % (T + 3, T + 1, L_L))
    a("s_cmp_eq_u32 s3, 0")
    a("s_cbranch_scc0 L_nomq")
    a("ds_write_b32 v%d, v%d offset:%d" % (T + 10, T + 8, L_PT))
    a.label("L_nomq")
    a("s_mov_b64 exec, -1")
    a("s_mov_b32 exec_lo, 0x000f000f")
    a("s_mov_b32 exec_hi, 0x000f000f")
    for c in range(8):
        a("ds_write_b32 v%d, v%d offset:%d" % (vPW, PR + c, L_P + c * 512))
    a("s_mov_b64 exec, -1")
    a("s_waitcnt lgkmcnt(0)")
    a("s_barrier")
    a("v_lshlrev_b32 v%d, 2, v4" % (T + 9))
    a("ds_read_b32 v%d, v%d offset:%d" % (vPT, T + 9, L_PT))
    a("s_cmp_eq_u32 s3, 0")
    a("s_cbranch_scc0 L_noml")
    a("ds_read_b128 %s, v%d offset:%d" % (vq(K), T + 2, L_L))
    a("ds_read_b128 %s, v%d offset:%d" % (vq(K + 4), T + 2, L_L + 16))
    a("s_lshl_b32 s61, s51, 6")
    a("s_add_u32 s61, s61, 0x%x" % WS_ML)
    a("s_add_u32 s56, s61, 0x%x" % WS_B)
    a("v_lshlrev_b32 v%d, 4, v3" % (K + 12))
    a("s_waitcnt lgkmcnt(0)")
    a("v_add_f32 v%d, v%d, v%d" % (K, K, K + 1))
    a("v_add_f32 v%d, v%d, v%d" % (K + 2, K + 2, K + 3))
    a("v_add_f32 v%d, v%d, v%d" % (K + 4, K + 4, K + 5))
    a("v_add_f32 v%d, v%d, v%d" % (K + 6, K + 6, K + 7))
    a("v_add_f32 v%d, v%d, v%d" % (K, K, K + 2))
    a("v_add_f32 v%d, v%d, v%d" % (K + 4, K + 4, K + 6))
    a("v_add_f32 v%d, v%d, v%d" % (K, K, K + 4))
    a("v_mov_b32 v%d, v%d" % (K + 8, T))
    a("v_add_f32 v%d, v%d, v%d" % (K + 9, K, T + 8))
    a("v_mov_b32 v%d, v%d" % (K + 10, vNonce))
    a("v_mov_b32 v%d, v%d" % (K + 11, vNonce))
    a("s_mov_b64 exec, 0xf")
    a("buffer_store_dwordx4 %s, v%d, s[32:35], s61 offen" % (vq(K + 8), K + 12))
    a("buffer_store_dwordx4 %s, v%d, s[32:35], s56 offen %s" % (vq(K + 8), K + 12, hs))
    a("s_mov_b64 exec, -1")
    a.label("L_noml")
    vloads(12, 16)
    for c in range(8):
        if c == 5: a("s_waitcnt lgkmcnt(4)")
        for bq in range(2):
            a("ds_read_b128 %s, v%d offset:%d" % (vq(PF + (c * 2 + bq) * 4), vPR, L_P + c * 512 + bq * 256))
    def tr_reads(c, bq, q):
        base = vTR0 if bq == 0 else vTR1
        a("ds_read_b64_tr_b16 %s, v%d offset:%d" % (vq(VF + 4 * q, 2), base, L_K + c * 2048))
        a("ds_read_b64_tr_b16 %s, v%d offset:%d" % (vq(VF + 4 * q + 2, 2), base, L_K + c * 2048 + 32768))
    def pv_mfma(c, bq, q):
        d = D0 if bq == 0 else D1
        a("v_mfma_f32_16x16x32_bf16 %s, %s, %s, %s" % (vq(d), vq(PF + (c * 2 + bq) * 4), vq(VF + 4 * q), "0" if c == 0 else vq(d)))
    def pv_group(chunks):
        blocks = [(c, bq) for c in chunks for bq in range(2)]
        for b0 in range(0, len(blocks), 4):
            batch = blocks[b0:b0 + 4]
            for q, (c, bq) in enumerate(batch): tr_reads(c, bq, q + 4 * ((b0 // 4) & 1))
            for q, (c, bq) in enumerate(batch):
                a("s_waitcnt lgkmcnt(%d)" % (2 * (len(batch) - 1 - q)))
                pv_mfma(c, bq, q + 4 * ((b0 // 4) & 1))
    X0, X1, M0, M1 = 52, 56, 60, 64
    B1, B2, F0, F1, LS, TT = 68, 69, 70, 71, 72, 73
    AC = 76
    a("s_waitcnt vmcnt(%d) lgkmcnt(0)" % (9 + (0 if early_small else 1 + (1 if owarm else 0)) + (2 if gwarm else 0)))
    a("s_barrier")
    pv_group([0, 1, 2, 3])
    a("s_waitcnt vmcnt(4)")
    a("v_lshlrev_b32 v%d, 16, v%d" % (vVT, vVT))
    a("v_mul_f32 v%d, v%d, v%d" % (vPT, vPT, vVT))
    if groups == 0:
        a("s_barrier")
        pv_group([4, 5])
        a("s_waitcnt vmcnt(2)")
        a("s_barrier")
        pv_group([6])
        last = [7]
    elif groups == 1:
        a("s_barrier")
        pv_group([4, 5])
        last = [6, 7]
    else:
        a("s_waitcnt vmcnt(2)")
        a("s_barrier")
        pv_group([4, 5, 6])
        last = [7]
    a("s_add_u32 s59, s57, 0x%x" % WS_B)
    a("s_mov_b32 s58, 0xffffff00")
    a("s_waitcnt vmcnt(0)")
    stamp(4)
    a("s_cmp_eq_u32 s3, %d" % fw)
    a("s_cbranch_scc0 L_nomlphase")
    a("buffer_load_dwordx4 %s, v%d, s[32:35], 0 offen %s" % (vq(M0), vFM, hl))
    a("buffer_load_dwordx4 %s, v%d, s[32:35], 0 offen offset:512 %s" % (vq(M1), vFM, hl))
    a.label("L_nomlphase")
    a("s_barrier")
    stamp(5)
    pv_group(last)
    A = K
    a("v_lshlrev_b32 v%d, 2, v1" % (A + 2))
    a("s_nop 6")
    a("v_add_f32 v%d, v%d, v%d" % (A, D0, D1))
    a("v_add_f32 v%d, v%d, v%d" % (A, A, vPT))
    a("v_and_or_b32 v%d, v%d, s58, v%d" % (A + 1, A, vTagO))
    a("buffer_store_dword v%d, v%d, s[32:35], s57 offen" % (A + 1, vOoff))
    a("s_cmp_eq_u32 s3, %d" % fw)
    a("s_cbranch_scc1 L_final")
    a("buffer_store_dword v%d, v%d, s[32:35], s59 offen %s" % (A + 1, vOoff, hs))
    a("s_cmp_eq_u32 s3, 0")
    a("s_cbranch_scc0 L_pubdone")
    a("s_mov_b32 s54, 0")
    a.label("L_bpoll")
    a("ds_read_b32 v%d, v%d offset:%d" % (A + 3, A + 2, L_X))
    a("s_waitcnt lgkmcnt(0)")
    a("v_xor_b32 v%d, v%d, v%d" % (A + 4, A + 3, vTagO))
    a("v_and_b32 v%d, 0xff, v%d" % (A + 4, A + 4))
    a("v_cmp_ne_u32 vcc, 0, v%d" % (A + 4))
    a("s_cbranch_vccz L_bgo")
    a("s_add_u32 s54, s54, 1")
    a("s_cmp_lt_u32 s54, 0x400000")
    a("s_cbranch_scc1 L_bpoll")
    a.label("L_bgo")
    a("v_add_u32 v%d, %d, v%d" % (A + 5, fw * 256, vOoff))
    a("buffer_store_dword v%d, v%d, s[32:35], s59 offen %s" % (A + 3, A + 5, hs))
    a.label("L_pubdone")
    stamp(6)
    stamp_flush(7)
    a("s_branch L_end")
    a.label("L_final")
    stamp(6)
    a("ds_write_b32 v%d, v%d offset:%d" % (A + 2, A + 1, L_X))
    a("s_and_b32 s40, s50, 0xff")
    a("s_bfe_u32 s41, s50, 0x80008")
    a("s_bfe_u32 s42, s50, 0x80010")
    a("s_lshr_b32 s43, s50, 24")
    a("s_mov_b32 s54, 0")
    if npipe and early0:
        a("buffer_load_dwordx4 %s, v%d, s[32:35], 0 offen %s" % (vq(PF), vFO, hl))
        a("buffer_load_dwordx4 %s, v%d, s[32:35], s38 offen %s" % (vq(PF + 4), vFO, hl))
        a("s_waitcnt vmcnt(3)")
    else:
        a("s_waitcnt vmcnt(1)")
    a("s_branch L_mlchk")
    a.label("L_mlpoll")
    a("buffer_load_dwordx4 %s, v%d, s[32:35], 0 offen %s" % (vq(M0), vFM, hl))
    a("buffer_load_dwordx4 %s, v%d, s[32:35], 0 offen offset:512 %s" % (vq(M1), vFM, hl))
    a("s_waitcnt vmcnt(0)")
    a.label("L_mlchk")
    a("v_xor_b32 v%d, s39, v%d" % (B1, M0 + 2))
    a("v_bitop3_b32 v%d, v%d, s39, v%d bitop3:0xbe" % (B1, M1 + 2, B1))
    a("v_bitop3_b32 v%d, v%d, s39, v%d bitop3:0xbe" % (B1, M0 + 3, B1))
    a("v_bitop3_b32 v%d, v%d, s39, v%d bitop3:0xbe" % (B1, M1 + 3, B1))
    a("v_cmp_ne_u32 vcc, 0, v%d" % B1)
    a("s_cbranch_vccz L_mlok")
    a("s_add_u32 s54, s54, 1")
    a("s_cmp_lt_u32 s54, 0x40000")
    a("s_cbranch_scc0 L_mlok")
    a("s_cmp_lt_u32 s54, %d" % na)
    a("s_cbranch_scc1 L_mlpoll")
    a("v_xor_b32 v%d, 0x%x, v%d" % (vFM, WS_B, vFM))
    a("s_branch L_mlpoll")
    a.label("L_mlok")
    stamp(7)
    Y0, Y1 = 100, 104
    def o_loads2(x0, x1):
        a("buffer_load_dwordx4 %s, v%d, s[32:35], 0 offen %s" % (vq(x0), vFO, hl))
        a("buffer_load_dwordx4 %s, v%d, s[32:35], s38 offen %s" % (vq(x1), vFO, hl))
    def o_check(x0, x1):
        a("v_xor_b32 v%d, s40, v%d" % (B1, x0))
        a("v_xor_b32 v%d, s41, v%d" % (B2, x0 + 1))
        a("v_bitop3_b32 v%d, v%d, s42, v%d bitop3:0xbe" % (B1, x0 + 2, B1))
        a("v_bitop3_b32 v%d, v%d, s43, v%d bitop3:0xbe" % (B2, x0 + 3, B2))
        a("v_bitop3_b32 v%d, v%d, s40, v%d bitop3:0xbe" % (B1, x1, B1))
        a("v_bitop3_b32 v%d, v%d, s41, v%d bitop3:0xbe" % (B2, x1 + 1, B2))
        a("v_bitop3_b32 v%d, v%d, s42, v%d bitop3:0xbe" % (B1, x1 + 2, B1))
        a("v_bitop3_b32 v%d, v%d, s43, v%d bitop3:0xbe" % (B2, x1 + 3, B2))
        a("v_or_b32 v%d, v%d, v%d" % (B1, B1, B2))
        a("v_and_b32 v%d, 0xff, v%d" % (B1, B1))
        a("v_cmp_ne_u32 vcc, 0, v%d" % B1)
    a("v_max_f32 v%d, v%d, v%d" % (F0, M0, M1))
    a("s_mov_b32 s54, 0")
    a("s_nop 0")
    a("v_max_f32_dpp v%d, v%d, v%d row_ror:8 row_mask:0xf bank_mask:0xf" % (F0, F0, F0))
    xlane("v_max_f32", F0, F1)
    a("v_sub_f32 v%d, v%d, v%d" % (F1, M1, F0))
    a("v_sub_f32 v%d, v%d, v%d" % (F0, M0, F0))
    a("v_exp_f32 v%d, v%d" % (F1, F1))
    a("v_exp_f32 v%d, v%d" % (F0, F0))
    issued = [0]
    if npipe and early0:
        issued[0] = 1
        if npipe >= 2:
            o_loads2(PF + 8, PF + 12); issued[0] = 2
    elif npipe:
        o_loads2(PF, PF + 4); issued[0] = 1
    elif xpos == 0: o_loads2(X0, X1)
    a("s_nop 0")
    a("v_mul_f32 v%d, v%d, v%d" % (LS, F1, M1 + 1))
    a("v_fmac_f32 v%d, v%d, v%d" % (LS, F0, M0 + 1))
    a("s_nop 1")
    a("v_add_f32_dpp v%d, v%d, v%d row_ror:8 row_mask:0xf bank_mask:0xf" % (LS, LS, LS))
    if npipe > issued[0] and npipe >= 2:
        k_ = issued[0]
        o_loads2(PF + 8 * k_, PF + 8 * k_ + 4); issued[0] = k_ + 1
    xlane("v_add_f32", LS, TT)
    a("v_rcp_f32 v%d, v%d" % (LS, LS))
    if xpos == 1 and not npipe: o_loads2(X0, X1)
    def final_math(x0, x1):
        for c in range(4):
            a("v_and_b32 v%d, s58, v%d" % (x0 + c, x0 + c))
        for c in range(4):
            a("v_and_b32 v%d, s58, v%d" % (x1 + c, x1 + c))
        for c in range(4):
            a("v_mul_f32 v%d, v%d, v%d" % (AC + c, F0, x0 + c))
        for c in range(4):
            a("v_fmac_f32 v%d, v%d, v%d" % (AC + c, F1, x1 + c))
    if npipe:
        sets = [(PF + 8 * i, PF + 8 * i + 4) for i in range(npipe)]
        for i in range(issued[0], npipe): o_loads2(*sets[i])
        a.label("L_owait")
        for i in range(npipe):
            a("s_waitcnt vmcnt(%d)" % (2 * (npipe - 1)))
            o_check(*sets[i])
            a("s_cbranch_vccz L_ok%d" % i)
            if i == npipe - 1:
                a("s_add_u32 s54, s54, 1")
                a("s_cmp_lt_u32 s54, 0x40000")
                a("s_cbranch_scc0 L_ok%d" % i)
                a("s_cmp_lt_u32 s54, %d" % na)
                a("s_cbranch_scc1 L_otog")
                a("v_xor_b32 v%d, 0x%x, v%d" % (vFO, WS_B, vFO))
                a.label("L_otog")
            o_loads2(*sets[i])
        a("s_branch L_owait")
        for i in range(npipe):
            a.label("L_ok%d" % i)
            stamp(10)
            final_math(*sets[i])
            if i < npipe - 1: a("s_branch L_ook")
    else:
        a.label("L_owait")
        a("s_waitcnt vmcnt(0)")
        o_check(X0, X1)
        a("s_cbranch_vccz L_xok")
        a("s_add_u32 s54, s54, 1")
        a("s_cmp_lt_u32 s54, 0x40000")
        a("s_cbranch_scc0 L_xok")
        a("s_cmp_lt_u32 s54, %d" % na)
        a("s_cbranch_scc1 L_otog")
        a("v_xor_b32 v%d, 0x%x, v%d" % (vFO, WS_B, vFO))
        a.label("L_otog")
        o_loads2(X0, X1)
        a("s_branch L_owait")
        a.label("L_xok")
        stamp(10)
        final_math(X0, X1)
    a.label("L_ook")
    for c in range(4):
        a("v_add_f32_dpp v%d, v%d, v%d row_ror:8 row_mask:0xf bank_mask:0xf" % (AC + c, AC + c, AC + c))
    a("s_nop 0")
    a("v_permlane32_swap_b32 v%d, v%d" % (AC, AC + 1))
    a("v_permlane32_swap_b32 v%d, v%d" % (AC + 2, AC + 3))
    a("v_add_f32 v%d, v%d, v%d" % (AC, AC, AC + 1))
    a("v_add_f32 v%d, v%d, v%d" % (AC + 2, AC + 2, AC + 3))
    a("s_nop 1")
    a("v_permlane16_swap_b32 v%d, v%d" % (AC, AC + 2))
    a("v_add_f32 v%d, v%d, v%d" % (AC, AC, AC + 2))
    a("v_mul_f32 v%d, v%d, v%d" % (AC, AC, LS))
    a("v_cvt_pk_bf16_f32 v%d, v%d, v%d" % (AC, AC, AC))
    a("s_mov_b32 exec_lo, 0x00ff00ff")
    a("s_mov_b32 exec_hi, 0x00ff00ff")
    a("global_store_short v%d, v%d, s[16:17]" % (vFA, AC))
    a("s_cmp_eq_u32 s23, 15")
    a("s_cbranch_scc0 L_now")
    a("s_mov_b64 exec, 1")
    a("buffer_store_dword v%d, off, s[32:35], s60" % vNonce)
    a.label("L_now")
    a("s_mov_b64 exec, -1")
    if stamps:
        stamp(11)
        a("s_waitcnt vmcnt(0)")
    stamp(12)
    if stamps:
        a("s_mov_b32 s82, s54")
        a("s_mov_b32 s83, 0")
    stamp_flush(14)
    a.label("L_end")
    if spin:
        a("s_waitcnt vmcnt(0) lgkmcnt(0)")
        a.label("L_spin")
        a("s_memrealtime s[92:93]")
        a("s_waitcnt lgkmcnt(0)")
        a("s_sub_u32 s94, s92, s90")
        if spinref is not None:
            a("s_sub_u32 s95, s96, s90")
            a("s_sub_u32 s94, s94, s95")
        a("s_cmp_lt_u32 s94, %d" % spin)
        a("s_cbranch_scc1 L_spin")
    a("s_endpgm")
    out = HEADER + "; @launch grid=(256,1,1) block=(512,1,1) lds=%d\n" % LDS
    out += '.amdgcn_target "amdgcn-amd-amdhsa--gfx950"\n.text\n.globl %s_kernel\n.p2align 8\n.type %s_kernel,@function\n%s_kernel:\n' % (NAME, NAME, NAME)
    out += a.text()
    out += """.section .rodata,"a"
.p2align 6
.amdhsa_kernel %s_kernel
  .amdhsa_next_free_vgpr 256
  .amdhsa_next_free_sgpr 100
  .amdhsa_accum_offset 256
  .amdhsa_group_segment_fixed_size 0
  .amdhsa_kernarg_size 72
  .amdhsa_user_sgpr_count 2
  .amdhsa_user_sgpr_kernarg_segment_ptr 1
  .amdhsa_system_sgpr_workgroup_id_x 1
  .amdhsa_float_denorm_mode_32 3
.end_amdhsa_kernel
""" % NAME
    return out

if __name__ == "__main__":
    import argparse
    p = argparse.ArgumentParser()
    p.add_argument("-o", default="cdna_kernels/%s.s" % NAME)
    p.add_argument("--ld", default="nt")
    p.add_argument("--hs", default="sc1")
    p.add_argument("--stamps", action="store_true")
    p.add_argument("--spin", type=int, default=0)
    p.add_argument("--spinref", type=int, default=None)
    p.add_argument("--ibar", type=int, default=1)
    p.add_argument("--vsplit", type=int, default=8)
    p.add_argument("--cons", type=int, default=15)
    p.add_argument("--nonlocal", dest="nonlocal_", action="store_true")
    p.add_argument("--na", type=int, default=24)
    p.add_argument("--swave", type=int, default=0)
    p.add_argument("--skew", type=int, default=0)
    p.add_argument("--qpos", type=int, default=16)
    p.add_argument("--fw", type=int, default=1)
    p.add_argument("--dpoll", type=int, default=0)
    p.add_argument("--xpos", type=int, default=1)
    p.add_argument("--nomlwarm", action="store_true")
    p.add_argument("--hl", default="sc1")
    p.add_argument("--sstr", type=int, default=2048)
    p.add_argument("--nokslim", action="store_true")
    p.add_argument("--vdelay", type=int, default=0)
    p.add_argument("--vwarm", type=int, default=0)
    p.add_argument("--owarm", action="store_true")
    p.add_argument("--gwarm", action="store_true")
    p.add_argument("--wswarm", action="store_true")
    p.add_argument("--groups", type=int, default=0)
    p.add_argument("--noswarm", action="store_true")
    p.add_argument("--wsearly", action="store_true")
    p.add_argument("--late_small", action="store_true")
    p.add_argument("--npipe", type=int, default=3)
    p.add_argument("--noearly0", action="store_true")
    p.add_argument("--v2a", type=int, default=4)
    x = p.parse_args()
    open(x.o, "w").write(gen(x.ld, x.hs, x.stamps, x.spin, x.spinref, x.ibar, x.vsplit, x.cons, not x.nonlocal_, x.na, x.skew, x.swave, x.qpos, x.fw, x.dpoll, x.xpos, not x.nomlwarm, x.hl, x.v2a, x.sstr, not x.nokslim, x.vdelay, x.vwarm, x.npipe, not x.noearly0, x.owarm, x.gwarm, not x.late_small, x.wswarm, x.groups, not x.wsearly, not x.noswarm))
```
